```python
import torch

def _softmax(x, axis=-1):
    return torch.softmax(x, dim=axis)
def _gelu(x):
    return torch.nn.functional.gelu(x, approximate="tanh")
def _silu(x):
    return torch.nn.functional.silu(x)
def _sigmoid(x):
    return torch.sigmoid(x)
def _layernorm(x, axis=-1, eps=1e-5):
    m = x.mean(dim=axis, keepdim=True)
    v = x.var(dim=axis, keepdim=True, unbiased=False)
    return (x - m) / torch.sqrt(v + eps)
def _scatter_add(tgt, idx, src, axis=0):
    return tgt.clone().index_add_(axis, idx, src)
def _segment_sum(src, seg, n):
    out = torch.zeros((n,) + src.shape[1:], dtype=src.dtype)
    return out.index_add_(0, seg, src)
def _pad(x, pw):
    flat = tuple(v for pair in reversed(pw) for v in pair)
    return torch.nn.functional.pad(x, flat)

kernel_name = 'interleave_layers__spectral_gfnet__dense_activation_silu__prompt'

def setup_inputs():

    _w = (lambda a: (lambda t: t.to(torch.bfloat16) if t.is_floating_point() else t)(torch.as_tensor(a)))
    def _A_setup():
        B, S, D = 1, 2048, 640
        Df = D // 2 + 1
        return {
            "x": _w((lambda *s: torch.randn(*s, dtype=torch.bfloat16) * 0.05)(B, S, D)),
            "w_r": _w((lambda *s: torch.randn(*s, dtype=torch.bfloat16) * 0.4)(S, Df) * 0.02),
            "w_i": _w((lambda *s: torch.randn(*s, dtype=torch.bfloat16) * 0.4)(S, Df) * 0.02),
        }
    _A_in = _A_setup()

    def _B_setup():
        B, S, D, F = 1, 2048, 640, 1536
        return {
            "x": _w((lambda *s: torch.randn(*s, dtype=torch.bfloat16) * 0.05)(B, S, D)),
            "w1": _w((lambda *s: torch.randn(*s, dtype=torch.bfloat16) * 0.4)(D, F) * (D ** -0.5)),
            "w2": _w((lambda *s: torch.randn(*s, dtype=torch.bfloat16) * 0.1)(F, D) * (F ** -0.5)),
        }
    _B_in = _B_setup()

    return {
        "A_x": _A_in["x"],
        "A_w_r": _A_in["w_r"],
        "A_w_i": _A_in["w_i"],
        "B_x": _B_in["x"],
        "B_w1": _B_in["w1"],
        "B_w2": _B_in["w2"],
    }

def reference(A_x, A_w_r, A_w_i, B_x, B_w1, B_w2):
    def _A_ref(x, w_r, w_i):
        B, S, D = x.shape
        X = (lambda x, axes=(-2,-1): torch.fft.rfft2(x.float(), dim=axes))(x, axes=(-2, -1))
        W = w_r + 1j * w_i
        X = X * W
        y = (lambda x, s, axes=(-2,-1): torch.fft.irfft2(x, s=s, dim=axes).to(torch.bfloat16))(X, (S, D), axes=(-2, -1))
        return y

    def _B_ref(x, w1, w2):
        h = torch.einsum("bsd,df->bsf", x, w1)
        h = _silu(h)
        out = torch.einsum("bsf,fd->bsd", h, w2)
        return out

    x = A_x
    x = x + _A_ref(_layernorm(x, axis=-1), A_w_r, A_w_i)
    x = x + _B_ref(_layernorm(x, axis=-1), B_w1, B_w2)
    x = x + _A_ref(_layernorm(x, axis=-1), A_w_r, A_w_i)
    x = x + _B_ref(_layernorm(x, axis=-1), B_w1, B_w2)
    return x
```

```python
import re
import numpy as np

NV = 512
A0 = 512
S0 = 1024
VCC = S0 + 106
EXEC = S0 + 126
SCC = 2000

_reg_re = re.compile(r'^(-|\|)?(abs\()?([vas])(\d+|\[(\d+):(\d+)\])\)?\|?$')


def regs_of(tok):
    tok = tok.strip()
    if tok == 'vcc':
        return [VCC, VCC + 1]
    if tok == 'exec':
        return [EXEC, EXEC + 1]
    if tok == 'm0':
        return [S0 + 124]
    m = _reg_re.match(tok)
    if not m:
        return []
    f = m.group(3)
    base = {'v': 0, 'a': A0, 's': S0}[f]
    if m.group(5) is not None:
        lo, hi = int(m.group(5)), int(m.group(6))
    else:
        lo = hi = int(m.group(4))
    return list(range(base + lo, base + hi + 1))


def split_ops(s):
    out, depth, cur = [], 0, ''
    for ch in s:
        if ch in '[(':
            depth += 1
        if ch in '])':
            depth -= 1
        if ch == ',' and depth == 0:
            out.append(cur.strip())
            cur = ''
        else:
            cur += ch
    if cur.strip():
        out.append(cur.strip())
    return out


TRANS = ('v_exp_f32', 'v_log_f32', 'v_rcp_f32', 'v_rsq_f32', 'v_sqrt_f32', 'v_sin_f32', 'v_cos_f32',
         'v_rcp_iflag_f32')


class Ins:
    __slots__ = ('text', 'mn', 'cls', 'rd', 'wr', 'mfma_a', 'mfma_b', 'mfma_c', 'passes', 'store_data',
                 'ws', 'is_trans', 'dpp', 'wide_store')


def parse(text):
    t = text.split(';')[0].strip()
    parts = t.split(None, 1)
    mn = parts[0]
    rest = parts[1] if len(parts) > 1 else ''
    ops = split_ops(rest)
    if ops:
        last = ops[-1].split()
        ops[-1] = last[0]
        mods = ' '.join(last[1:])
    else:
        mods = ''
    I = Ins()
    I.text = text
    I.mn = mn
    I.rd, I.wr = [], []
    I.mfma_a = I.mfma_b = I.mfma_c = ()
    I.passes = 0
    I.store_data = ()
    I.ws = 1
    I.is_trans = False
    I.dpp = False
    I.wide_store = False
    base = mn.replace('_e32', '').replace('_e64', '')
    if mn.startswith('v_mfma'):
        I.cls = 'mfma'
        I.wr = regs_of(ops[0])
        I.mfma_a, I.mfma_b, I.mfma_c = regs_of(ops[1]), regs_of(ops[2]), regs_of(ops[3])
        I.rd = list(I.mfma_a) + list(I.mfma_b) + list(I.mfma_c)
        I.passes = 8 if '32x32' in mn else 4
    elif mn.startswith('v_'):
        I.cls = 'valu'
        I.is_trans = base in TRANS
        if base.startswith('v_cmp'):
            I.wr = regs_of(ops[0])
            I.rd = [r for o in ops[1:] for r in regs_of(o)]
        elif base in ('v_readfirstlane_b32', 'v_readlane_b32'):
            I.wr = regs_of(ops[0])
            I.rd = [r for o in ops[1:] for r in regs_of(o)]
        elif base.startswith('v_permlane') and 'swap' in base:
            I.wr = regs_of(ops[0]) + regs_of(ops[1])
            I.rd = regs_of(ops[0]) + regs_of(ops[1])
        elif base in ('v_add_co_u32', 'v_sub_co_u32', 'v_addc_co_u32', 'v_subb_co_u32'):
            I.wr = regs_of(ops[0]) + regs_of(ops[1])
            I.rd = [r for o in ops[2:] for r in regs_of(o)]
        else:
            I.wr = regs_of(ops[0])
            I.rd = [r for o in ops[1:] for r in regs_of(o)]
            if base in ('v_fmac_f32', 'v_pk_fmac_f32', 'v_dot2c_f32_bf16', 'v_writelane_b32'):
                I.rd += I.wr
            if base == 'v_cndmask_b32' and len(ops) == 3:
                I.rd += [VCC, VCC + 1]
        if 'row_' in mods or 'quad_perm' in mods or 'wave_' in mods or 'dpp' in mn:
            I.dpp = True
    elif mn.startswith('buffer_load') or mn.startswith('global_load'):
        I.cls = 'vmem_load'
        I.wr = regs_of(ops[0])
        I.rd = [r for o in ops[1:] for r in regs_of(o)]
    elif mn.startswith('buffer_store'):
        I.cls = 'vmem_store'
        I.store_data = regs_of(ops[0])
        I.rd = [r for o in ops for r in regs_of(o)]
        I.wide_store = mn.endswith('x3') or mn.endswith('x4')
    elif mn.startswith('global_store'):
        I.cls = 'vmem_store'
        I.store_data = regs_of(ops[1])
        I.rd = [r for o in ops for r in regs_of(o)]
        I.wide_store = mn.endswith('x3') or mn.endswith('x4')
    elif mn.startswith('buffer_atomic') or mn.startswith('global_atomic'):
        I.cls = 'vmem_store'
        I.rd = [r for o in ops for r in regs_of(o)]
    elif mn.startswith('ds_read') or mn.startswith('ds_bpermute') or mn.startswith('ds_swizzle') \
            or mn.startswith('ds_permute'):
        I.cls = 'ds_load'
        I.wr = regs_of(ops[0])
        I.rd = [r for o in ops[1:] for r in regs_of(o)]
    elif mn.startswith('ds_write'):
        I.cls = 'ds_store'
        I.rd = [r for o in ops for r in regs_of(o)]
    elif mn.startswith('s_load') or mn.startswith('s_buffer_load'):
        I.cls = 'smem'
        I.wr = regs_of(ops[0])
        I.rd = [r for o in ops[1:] for r in regs_of(o)]
    elif mn == 's_nop':
        I.cls = 'nop'
        I.ws = int(ops[0], 0) + 1
    elif mn.startswith('s_'):
        I.cls = 'salu'
        if mn in ('s_waitcnt', 's_barrier', 's_endpgm', 's_branch', 's_setprio', 's_sleep') or \
                mn.startswith('s_cbranch'):
            pass
        elif mn.startswith('s_cmp') or mn.startswith('s_bitcmp'):
            I.rd = [r for o in ops for r in regs_of(o)]
        else:
            I.wr = regs_of(ops[0])
            I.rd = [r for o in ops[1:] for r in regs_of(o)]
            if 'saveexec' in mn:
                I.wr += [EXEC, EXEC + 1]
    else:
        raise ValueError('unknown instruction ' + text)
    return I


class Kernel:
    def __init__(self, name):
        self.name = name
        self.out = []
        self.hist = []
        self.vm = []
        self.lg = []
        self.maxv = 0
        self.maxa = -1
        self.maxs = 0
        self.nlabel = 0

    def raw(self, text):
        self.out.append(text)

    def comment(self, text):
        self.out.append('    ; ' + text)

    def _emit(self, I):
        self.out.append('    ' + I.text)
        self.hist.append(I)
        if len(self.hist) > 24:
            self.hist.pop(0)

    def _need(self, I):
        need = 0
        dist = 0
        rd = set(I.rd)
        wr = set(I.wr)
        for P in reversed(self.hist):
            pw = set(P.wr)
            req = 0
            if P.cls == 'valu':
                vw = {r for r in pw if r < S0}
                sw = {r for r in pw if r >= S0}
                if I.cls == 'mfma' and vw & rd:
                    req = max(req, 2)
                if I.cls == 'valu':
                    if sw & rd:
                        req = max(req, 4 if I.mn.startswith(('v_readlane', 'v_writelane')) else 2)
                    if vw & rd:
                        if I.mn.startswith(('v_readfirstlane', 'v_readlane')):
                            req = max(req, 1)
                        if I.dpp or I.mn.startswith('v_permlane'):
                            req = max(req, 2)
                        if P.is_trans and not I.is_trans:
                            req = max(req, 1)
                        if P.is_trans:
                            req = max(req, 1)
                if I.cls in ('vmem_load', 'vmem_store') and sw & rd:
                    req = max(req, 5)
                if I.cls in ('salu', 'smem') and sw & rd:
                    req = max(req, 1)
            elif P.cls == 'mfma':
                p8 = P.passes == 8
                if I.cls == 'mfma':
                    if pw & (set(I.mfma_a) | set(I.mfma_b)):
                        req = max(req, 12 if p8 else 8)
                    c = set(I.mfma_c)
                    if pw & c:
                        if list(I.mfma_c) == list(P.wr) and I.passes == P.passes and I.mn == P.mn:
                            pass
                        else:
                            req = max(req, 10 if p8 else 6)
                    if pw & wr and not (pw & c):
                        req = max(req, 12 if p8 else 8)
                else:
                    if pw & (rd | wr):
                        req = max(req, 12 if p8 else 8)
                    if I.cls == 'valu' and set(P.mfma_c) & wr:
                        req = max(req, 7 if p8 else 3)
                    if I.cls in ('vmem_load', 'ds_load') and set(P.mfma_c) & wr:
                        req = max(req, 7 if p8 else 3)
            elif P.cls == 'vmem_store' and P.wide_store:
                if set(P.store_data) & wr:
                    req = max(req, 2)
            if req > dist:
                need = max(need, req - dist)
            dist += P.ws
            if dist > 20:
                break
        return need

    def _waits(self, I):
        touched = set(I.rd) | set(I.wr)
        vm_n = None
        for idx, dst in enumerate(self.vm):
            if dst & touched:
                vm_n = len(self.vm) - 1 - idx
        lg_n = None
        for idx, dst in enumerate(self.lg):
            if dst & touched:
                lg_n = len(self.lg) - 1 - idx
        if vm_n is not None or lg_n is not None:
            s = 's_waitcnt'
            if vm_n is not None:
                vm_n = min(vm_n, 63)
                s += ' vmcnt(%d)' % vm_n
                self.vm = self.vm[len(self.vm) - vm_n:] if vm_n else []
            if lg_n is not None:
                lg_n = min(lg_n, 15)
                s += ' lgkmcnt(%d)' % lg_n
                self.lg = self.lg[len(self.lg) - lg_n:] if lg_n else []
            self._emit(parse(s))

    def I(self, text):
        I = parse(text)
        for r in I.rd + I.wr:
            if r < 256:
                self.maxv = max(self.maxv, r)
            elif A0 <= r < A0 + 256:
                self.maxa = max(self.maxa, r - A0)
            elif S0 <= r < S0 + 102:
                self.maxs = max(self.maxs, r - S0)
            elif r < A0:
                raise ValueError('vgpr out of range: ' + text)
        self._waits(I)
        n = self._need(I)
        while n > 0:
            k = min(n, 16)
            self._emit(parse('s_nop %d' % (k - 1)))
            n -= k
        self._emit(I)
        if I.cls == 'vmem_load':
            self.vm.append(set(I.wr))
        elif I.cls == 'vmem_store':
            self.vm.append(set())
        elif I.cls == 'ds_load':
            self.lg.append(set(I.wr))
        elif I.cls == 'ds_store':
            self.lg.append(set())
        elif I.cls == 'smem':
            self.lg.append(set(I.wr))
        if I.mn == 's_waitcnt':
            m = re.search(r'vmcnt\((\d+)\)', text)
            if m:
                n = int(m.group(1))
                self.vm = self.vm[len(self.vm) - n:] if n else []
            m = re.search(r'lgkmcnt\((\d+)\)', text)
            if m:
                n = int(m.group(1))
                self.lg = self.lg[len(self.lg) - n:] if n else []

    def wait_lgkm0(self):
        self.I('s_waitcnt lgkmcnt(0)')

    def wait_vm0(self):
        self.I('s_waitcnt vmcnt(0)')

    def barrier(self):
        self.I('s_waitcnt lgkmcnt(0)')
        self.I('s_barrier')

    def label(self, name):
        self.I('s_nop 15')
        self.out.append(name + ':')

    def flush_hazards(self):
        self.I('s_nop 15')

    def newlabel(self, p='L'):
        self.nlabel += 1
        return '%s_%s_%d' % (p, self.name, self.nlabel)


def f2bf(x):
    x = np.asarray(x, dtype=np.float32)
    u = x.view(np.uint32).astype(np.uint64)
    r = ((u + 0x7FFF + ((u >> 16) & 1)) >> 16)
    return r.astype(np.uint16)


def pack_bf16(vals):
    h = f2bf(vals).astype(np.uint32)
    return h[..., 0::2] | (h[..., 1::2] << 16)


def f32bits(x):
    return np.asarray(x, dtype=np.float32).view(np.uint32)


def emit_table(name, words):
    words = np.asarray(words, dtype=np.uint32).reshape(-1)
    lines = ['.p2align 8', name + ':']
    for i in range(0, len(words), 8):
        lines.append('.long ' + ','.join('0x%x' % w for w in words[i:i + 8]))
    return lines
```

```python
import numpy as np
from asmlib import Kernel, f32bits
import gen as G
from gen import (prologue, lane_ids, xsum_g, fwd_epilogue, table_off, SRD_WS, SRD_TAB, SRD_A, SRD_B, SRD_C,
                 SRD_OUT, S, D, F)


def vr(b, n=4):
    return 'v[%d:%d]' % (b, b + n - 1)


def ar(b, n=4):
    return 'a[%d:%d]' % (b, b + n - 1)


def bf16_round2(k, a, b, tmp):
    k.I('v_cvt_pk_bf16_f32 v%d, v%d, v%d' % (tmp, a, b))
    k.I('v_lshlrev_b32 v%d, 16, v%d' % (a, tmp))
    k.I('v_and_b32 v%d, 0xffff0000, v%d' % (b, tmp))


def cmul_pk(k, xr, xi, tr, ti, o_r, o_i, conj=False):
    k.I('v_pk_mul_f32 %s, %s, %s' % (vr(o_r, 2), vr(xr, 2), vr(tr, 2)))
    if not conj:
        k.I('v_pk_mul_f32 %s, %s, %s' % (vr(o_i, 2), vr(xr, 2), vr(ti, 2)))
        k.I('v_pk_fma_f32 %s, %s, %s, %s neg_lo:[1,0,0] neg_hi:[1,0,0]' % (vr(o_r, 2), vr(xi, 2), vr(ti, 2), vr(o_r, 2)))
        k.I('v_pk_fma_f32 %s, %s, %s, %s' % (vr(o_i, 2), vr(xi, 2), vr(tr, 2), vr(o_i, 2)))
    else:
        k.I('v_pk_mul_f32 %s, %s, %s' % (vr(o_i, 2), vr(xi, 2), vr(tr, 2)))
        k.I('v_pk_fma_f32 %s, %s, %s, %s' % (vr(o_r, 2), vr(xi, 2), vr(ti, 2), vr(o_r, 2)))
        k.I('v_pk_fma_f32 %s, %s, %s, %s neg_lo:[1,0,0] neg_hi:[1,0,0]' % (vr(o_i, 2), vr(xr, 2), vr(ti, 2), vr(o_i, 2)))


MF = 'v_mfma_f32_16x16x32_bf16'
MF16 = 'v_mfma_f32_16x16x16_bf16'


def gen_c():
    k = Kernel('c_kernel')
    k.I('s_and_b32 s40, s2, 7')
    k.I('s_lshr_b32 s41, s2, 3')
    k.I('s_and_b32 s42, s41, 3')
    k.I('s_lshr_b32 s41, s41, 2')
    k.I('s_lshl_b32 s41, s41, 3')
    k.I('s_add_u32 s40, s40, s41')
    k.I('s_cmp_ge_u32 s40, 41')
    k.I('s_cbranch_scc1 L_c_end')
    prologue(k, {})
    lane_ids(k, 2, 3, 44)
    k.I('v_and_b32 v4, 63, v0')
    ST, TW, WW, AZ, TZ, RS, MB, DZ = 16, 144, 176, 192, 200, 202, 210, 218
    aP, aF32, aF64, aF32o = 0, 64, 88, 184
    k.I('v_lshlrev_b32 v5, 13, v3')
    k.I('v_lshl_add_u32 v5, v2, 4, v5')
    k.I('s_lshl_b32 s45, s44, 11')
    k.I('v_add_u32 v5, s45, v5')
    k.I('s_lshl_b32 s46, s40, 16')
    k.I('s_add_u32 s46, s46, %d' % G.WS_P)
    k.I('s_add_u32 s47, s46, 32768')
    for e in range(8):
        for h2 in range(2):
            k.I('buffer_load_dwordx4 %s, v5, %s, s%d offen offset:%d' % (ar(aP + 8 * e + 4 * h2), SRD_WS, 46 + h2, 256 * e))
    k.I('v_and_b32 v6, 3, v2')
    k.I('v_lshl_add_u32 v6, v6, 3, v3')
    k.I('v_lshlrev_b32 v6, 2, v6')
    k.I('s_lshl_b32 s48, s40, 3')
    k.I('s_lshl_b32 s49, s42, 1')
    k.I('s_add_u32 s48, s48, s49')
    k.I('s_lshl_b32 s49, s48, 6')
    k.I('s_add_u32 s49, s49, %d' % table_off['TZ'])
    k.I('buffer_load_dword v%d, v6, %s, s49 offen' % (TZ, SRD_TAB))
    k.I('buffer_load_dword v%d, v6, %s, s49 offen offset:16' % (TZ + 1, SRD_TAB))
    k.I('v_lshl_add_u32 v7, v2, 2, v3')
    k.I('v_lshlrev_b32 v7, 6, v7')
    k.I('s_lshl_b32 s45, s44, 15')
    k.I('v_add_u32 v7, s45, v7')
    for e in range(8):
        k.I('s_mov_b32 s50, %d' % (G.WS_ST + 4096 * e))
        for q in range(4):
            k.I('buffer_load_dwordx4 %s, v7, %s, s50 offen offset:%d' % (vr(ST + 16 * e + 4 * q), SRD_WS, 16 * q))
    k.I('v_lshlrev_b32 v8, 4, v4')
    k.I('s_and_b32 s51, s44, 1')
    k.I('s_mul_i32 s52, s51, 3072')
    k.I('s_add_u32 s52, s52, %d' % table_off['F32'])
    for var in range(3):
        k.I('buffer_load_dwordx4 %s, v8, %s, s52 offen offset:%d' % (ar(aF32o + 4 * var), SRD_TAB, 1024 * var))
    k.I('s_lshl_b32 s52, s51, 13')
    k.I('s_add_u32 s52, s52, %d' % table_off['TW'])
    k.I('s_add_u32 s53, s52, 4096')
    for c in range(2):
        for m in range(4):
            k.I('buffer_load_dwordx4 %s, v8, %s, s%d offen offset:%d' % (vr(TW + 16 * c + 4 * m), SRD_TAB, 52 + c, 1024 * m))
    for q in range(24):
        if q % 4 == 0:
            k.I('s_mov_b32 s52, %d' % (table_off['F64'] + 1024 * q))
        k.I('buffer_load_dwordx4 %s, v8, %s, s52 offen offset:%d' % (ar(aF64 + 4 * q), SRD_TAB, 1024 * (q % 4)))
    k.I('v_lshlrev_b32 v9, 6, v4')
    k.I('s_lshl_b32 s52, s48, 13')
    k.I('s_lshl_b32 s53, s44, 12')
    k.I('s_add_u32 s52, s52, s53')
    k.I('s_add_u32 s52, s52, %d' % G.WS_WC)
    for mt in range(4):
        k.I('buffer_load_dwordx4 %s, v9, %s, s52 offen offset:%d' % (vr(WW + 4 * mt), SRD_WS, 16 * mt))
    for q in range(6):
        if q % 4 == 0:
            k.I('s_mov_b32 s52, %d' % (table_off['F32'] + 1024 * q))
        k.I('buffer_load_dwordx4 %s, v8, %s, s52 offen offset:%d' % (ar(aF32 + 4 * q), SRD_TAB, 1024 * (q % 4)))
    k.I('v_lshrrev_b32 v10, 2, v2')
    for m in range(4):
        k.I('v_cmp_eq_u32 vcc, %d, v10' % m)
        k.I('v_cndmask_b32 v%d, 0, v%d, vcc' % (AZ + m, TZ))
        k.I('v_cndmask_b32 v%d, 0, v%d, vcc' % (AZ + 4 + m, TZ + 1))
    for e in range(8):
        k.I('%s %s, %s, %s, 0' % (MF, vr(DZ + 4 * e), vr(AZ), ar(aP + 8 * e)))
        k.I('%s %s, %s, %s, %s' % (MF, vr(DZ + 4 * e), vr(AZ + 4), ar(aP + 8 * e + 4), vr(DZ + 4 * e)))
    k.I('s_or_b32 s53, s40, s42')
    k.I('s_cmp_eq_u32 s53, 0')
    k.I('s_cselect_b32 s53, 0x%x, 0' % f32bits(-640.0))
    for e in range(8):
        b = ST + 16 * e
        acc, t1, t2 = 10, 12, 13
        k.I('v_pk_add_f32 v[10:11], %s, %s' % (vr(b, 2), vr(b + 2, 2)))
        for q in range(2, 8):
            k.I('v_pk_add_f32 v[10:11], v[10:11], %s' % vr(b + 2 * q, 2))
        k.I('v_mul_f32 v10, 0.125, v10')
        for q in range(8):
            k.I('v_sub_f32 v%d, v%d, v10' % (b + 2 * q, b + 2 * q))
        k.I('v_mul_f32 v12, v%d, v%d' % (b, b))
        for q in range(1, 8):
            k.I('v_fmac_f32 v12, v%d, v%d' % (b + 2 * q, b + 2 * q))
        k.I('v_fmac_f32 v11, 0x%x, v12' % f32bits(80.0))
        k.I('v_mul_f32 v11, 0x%x, v11' % f32bits(1.0 / 640))
        bf16_round2(k, 10, 11, 13)
        k.I('v_mov_b32 v%d, v10' % (MB + e))
        k.I('v_add_f32 v11, 0x%x, v11' % f32bits(1e-5))
        bf16_round2(k, 12, 11, 13)
        k.I('v_sqrt_f32 v11, v11')
        bf16_round2(k, 12, 11, 13)
        k.I('v_rcp_f32 v11, v11')
        k.I('v_mul_f32 v%d, 0x%x, v11' % (RS + e, f32bits(1.0 / (S * D))))
    for e in range(8):
        k.I('v_fmac_f32 v%d, s53, v%d' % (DZ + 4 * e, MB + e))
        rs = RS + e
        if rs % 2 == 0:
            src, sel = vr(rs, 2), 'op_sel:[0,0] op_sel_hi:[1,0]'
        else:
            src, sel = vr(rs - 1, 2), 'op_sel:[0,1] op_sel_hi:[1,1]'
        k.I('v_pk_mul_f32 %s, %s, %s %s' % (vr(DZ + 4 * e, 2), vr(DZ + 4 * e, 2), src, sel))
        k.I('v_pk_mul_f32 %s, %s, %s %s' % (vr(DZ + 4 * e + 2, 2), vr(DZ + 4 * e + 2, 2), src, sel))
    ZF = 16
    for arr in range(4):
        for h in range(4):
            k.I('v_cvt_pk_bf16_f32 v%d, v%d, v%d' % (ZF + 4 * arr + h, DZ + 8 * h + arr, DZ + 8 * h + 4 + arr))
    k.I('v_lshlrev_b32 v10, 10, v3')
    k.I('v_lshl_add_u32 v10, v2, 4, v10')
    k.I('s_lshl_b32 s45, s44, 8')
    k.I('v_add_u32 v10, s45, v10')
    for arr in range(4):
        k.I('ds_write_b128 v10, %s offset:%d' % (vr(ZF + 4 * arr), 4096 * arr))
    k.barrier()
    AF, D1, TMP, B3, D3 = 32, 64, 96, 128, 218
    k.I('s_lshr_b32 s45, s44, 1')
    k.I('s_lshl_b32 s45, s45, 13')
    k.I('v_add_u32 v10, s45, v8')
    for c in range(2):
        for m in range(4):
            k.I('ds_read_b128 %s, v10 offset:%d' % (vr(AF + 16 * c + 4 * m), 4096 * c + 1024 * m))
    Fr, Fi, Fn = ar(aF32o), ar(aF32o + 4), ar(aF32o + 8)
    for m in range(4):
        k.I('%s %s, %s, %s, 0' % (MF, vr(D1 + 4 * m), vr(AF + 4 * m), Fr))
        k.I('%s %s, %s, %s, 0' % (MF, vr(D1 + 16 + 4 * m), vr(AF + 4 * m), Fi))
    for m in range(4):
        k.I('%s %s, %s, %s, %s' % (MF, vr(D1 + 4 * m), vr(AF + 16 + 4 * m), Fn, vr(D1 + 4 * m)))
        k.I('%s %s, %s, %s, %s' % (MF, vr(D1 + 16 + 4 * m), vr(AF + 16 + 4 * m), Fr, vr(D1 + 16 + 4 * m)))

    def f64(var, mt, t):
        return ar(aF64 + 4 * ((var * 4 + mt) * 2 + t))

    def twiddle_pack(src, dstB, conj):
        for m in range(4):
            for h in range(2):
                o = 2 * h
                cmul_pk(k, src + 4 * m + o, src + 16 + 4 * m + o, TW + 4 * m + o, TW + 16 + 4 * m + o,
                        TMP + 4 * m + o, TMP + 16 + 4 * m + o, conj)

    twiddle_pack(D1, B3, False)
    for c in range(2):
        for m in range(4):
            for h in range(2):
                k.I('v_cvt_pk_bf16_f32 v%d, v%d, v%d' % (B3 + 8 * c + 2 * m + h, TMP + 16 * c + 4 * m + 2 * h,
                                                         TMP + 16 * c + 4 * m + 2 * h + 1))

    def dft64(Dd, Bb, conj):
        vi, vn = (1, 2) if not conj else (2, 1)
        for mt in range(4):
            for t in range(2):
                cr = '0' if t == 0 else vr(Dd + 4 * mt)
                ci = '0' if t == 0 else vr(Dd + 16 + 4 * mt)
                k.I('%s %s, %s, %s, %s' % (MF, vr(Dd + 4 * mt), f64(0, mt, t), vr(Bb + 4 * t), cr))
                k.I('%s %s, %s, %s, %s' % (MF, vr(Dd + 16 + 4 * mt), f64(0, mt, t), vr(Bb + 8 + 4 * t), ci))
                k.I('%s %s, %s, %s, %s' % (MF, vr(Dd + 4 * mt), f64(vn, mt, t), vr(Bb + 8 + 4 * t), vr(Dd + 4 * mt)))
                k.I('%s %s, %s, %s, %s' % (MF, vr(Dd + 16 + 4 * mt), f64(vi, mt, t), vr(Bb + 4 * t), vr(Dd + 16 + 4 * mt)))

    dft64(D3, B3, False)
    for q in range(16):
        k.I('v_lshlrev_b32 v%d, 16, v%d' % (AF + q, WW + q))
        k.I('v_and_b32 v%d, 0xffff0000, v%d' % (AF + 16 + q, WW + q))
    for mt in range(4):
        for h in range(2):
            o = 4 * mt + 2 * h
            cmul_pk(k, D3 + o, D3 + 16 + o, AF + o, AF + 16 + o, TMP + o, TMP + 16 + o, False)
    B5 = 64
    for c in range(2):
        for m in range(4):
            for h in range(2):
                k.I('v_cvt_pk_bf16_f32 v%d, v%d, v%d' % (B5 + 8 * c + 2 * m + h, TMP + 16 * c + 4 * m + 2 * h,
                                                         TMP + 16 * c + 4 * m + 2 * h + 1))
    D5 = 218
    dft64(D5, B5, True)
    twiddle_pack(D5, None, True)
    L2 = 128
    for c in range(2):
        for r in range(4):
            for mp in range(2):
                k.I('v_cvt_pk_bf16_f32 v%d, v%d, v%d' % (L2 + 8 * c + 2 * r + mp, TMP + 16 * c + 4 * (2 * mp) + r,
                                                         TMP + 16 * c + 4 * (2 * mp + 1) + r))
    LB2, ARR2 = 16384, 4608
    k.I('s_lshr_b32 s45, s44, 1')
    k.I('s_mul_i32 s45, s45, %d' % (2 * ARR2))
    k.I('s_mul_i32 s46, s51, %d' % (16 * 144))
    k.I('s_add_u32 s45, s45, s46')
    k.I('s_add_u32 s45, s45, %d' % LB2)
    k.I('v_mul_u32_u24 v10, 144, v2')
    k.I('v_lshl_add_u32 v10, v3, 5, v10')
    k.I('v_add_u32 v10, s45, v10')
    for c in range(2):
        for h in range(2):
            k.I('ds_write_b128 v10, %s offset:%d' % (vr(L2 + 8 * c + 4 * h), ARR2 * c + 16 * h))
    k.barrier()
    k.I('v_lshrrev_b32 v10, 2, v2')
    k.I('v_lshl_add_u32 v10, v3, 3, v10')
    k.I('v_mul_u32_u24 v10, 144, v10')
    k.I('v_and_b32 v11, 3, v2')
    k.I('v_lshl_add_u32 v10, v11, 3, v10')
    k.I('s_lshl_b32 s45, s44, 5')
    k.I('s_add_u32 s45, s45, %d' % LB2)
    k.I('v_add_u32 v10, s45, v10')
    B7 = 32
    for arr in range(4):
        for h in range(2):
            k.I('ds_read_b64_tr_b16 %s, v10 offset:%d' % (vr(B7 + 4 * arr + 2 * h, 2), ARR2 * arr + 576 * h))
    D7 = 64

    def f32(tile, var):
        return ar(aF32 + 4 * (3 * tile + var))
    for col in range(2):
        for mt in range(2):
            dr, di = D7 + 16 * col + 4 * mt, D7 + 16 * col + 8 + 4 * mt
            br, bi = B7 + 8 * col, B7 + 8 * col + 4
            k.I('%s %s, %s, %s, 0' % (MF, vr(dr), f32(mt, 0), vr(br)))
            k.I('%s %s, %s, %s, 0' % (MF, vr(di), f32(mt, 0), vr(bi)))
            k.I('%s %s, %s, %s, %s' % (MF, vr(dr), f32(mt, 1), vr(bi), vr(dr)))
            k.I('%s %s, %s, %s, %s' % (MF, vr(di), f32(mt, 2), vr(br), vr(di)))
    k.I('v_lshl_add_u32 v10, v3, 8, v2')
    k.I('s_lshl_b32 s45, s44, 4')
    k.I('v_add_u32 v10, s45, v10')
    k.I('v_lshlrev_b32 v10, 3, v10')
    k.I('s_lshl_b32 s45, s40, 2')
    k.I('s_add_u32 s45, s45, s42')
    k.I('s_lshl_b32 s45, s45, 14')
    k.I('s_add_u32 s45, s45, %d' % G.WS_ZP)
    k.I('s_add_u32 s46, s45, 8192')
    O = 96
    for mt in range(2):
        for r in range(4):
            o = O + 2 * (4 * mt + r)
            for col in range(2):
                k.I('v_cvt_pk_bf16_f32 v%d, v%d, v%d' % (o + col, D7 + 16 * col + 4 * mt + r, D7 + 16 * col + 8 + 4 * mt + r))
            k.I('buffer_store_dwordx2 %s, v10, %s, s%d offen offset:%d' % (vr(o, 2), SRD_WS, 45 + mt, 512 * r))
    k.label('L_c_end')
    k.I('s_endpgm')
    return k, 192, 16384 + 4 * 4608


def more_kernels(ks, launches):
    kc, gc, lc = gen_c()
    ks.append(kc)
    launches.append((kc.name, gc, lc))
    try:
        from gen3 import gemm_kernels
        gemm_kernels(ks, launches, (kc.name, gc, lc))
    except ImportError:
        pass
```

```python
import copy
import numpy as np
from asmlib import Kernel, f32bits
import gen as G
from gen import (prologue, lane_ids, xsum_g, fwd_epilogue, table_off, SRD_WS, SRD_TAB, SRD_A, SRD_B, SRD_C,
                 SRD_OUT, S, D, F)
from gen2 import vr, ar, bf16_round2, MF, MF16


def wg_map(k):
    k.I('s_cmp_ge_u32 s2, 256')
    k.I('s_cbranch_scc1 L_%s_end' % k.name)
    k.I('s_and_b32 s40, s2, 7')
    k.I('s_lshl_b32 s40, s40, 2')
    k.I('s_lshr_b32 s41, s2, 6')
    k.I('s_add_u32 s40, s40, s41')
    k.I('s_lshr_b32 s41, s2, 3')
    k.I('s_and_b32 s41, s41, 7')


def bcast(reg):
    if reg % 2 == 0:
        return vr(reg, 2), 0
    return vr(reg - 1, 2), 1


def gen_g1():
    k = Kernel('g1_kernel')
    wg_map(k)
    prologue(k, {})
    lane_ids(k, 2, 3, 44)
    k.I('v_and_b32 v4, 63, v0')
    k.I('v_lshlrev_b32 v8, 4, v4')
    k.I('s_lshl_b32 s45, s40, 6')
    k.I('s_lshl_b32 s46, s44, 4')
    k.I('s_add_u32 s45, s45, s46')
    k.I('v_add_u32 v5, s45, v2')
    XF, ACC = 16, 96
    aZP, aTA, aG80 = 0, 84, 168
    k.I('v_lshlrev_b32 v6, 5, v5')
    k.I('v_lshl_add_u32 v6, v3, 3, v6')
    for q in range(40):
        k.I('s_mov_b32 s47, %d' % (G.WS_XP + q * 65536))
        k.I('buffer_load_dwordx2 %s, v6, %s, s47 offen' % (vr(XF + 2 * q, 2), SRD_WS))
    k.I('v_lshlrev_b32 v7, 3, v5')
    k.I('v_lshl_add_u32 v7, v3, 14, v7')
    for k1 in range(41):
        k.I('s_mov_b32 s47, %d' % (G.WS_ZP + k1 * 65536))
        k.I('buffer_load_dwordx2 %s, v7, %s, s47 offen' % (ar(aZP + 2 * k1, 2), SRD_WS))
        if k1 % 2 == 0:
            q = k1 // 2
            if q % 4 == 0:
                k.I('s_mov_b32 s48, %d' % (table_off['TA'] + q * 1024))
            k.I('buffer_load_dwordx4 %s, v8, %s, s48 offen offset:%d' % (ar(aTA + 4 * q), SRD_TAB, 1024 * (q % 4)))
    for q in range(15):
        if q % 4 == 0:
            k.I('s_mov_b32 s48, %d' % (table_off['G80I'] + q * 1024))
        k.I('buffer_load_dwordx4 %s, v8, %s, s48 offen offset:%d' % (ar(aG80 + 4 * q), SRD_TAB, 1024 * (q % 4)))
    slots = [228 + 4 * i for i in range(7)] + [4 * i for i in range(42)] + [168 + 4 * i for i in range(11)]
    w1reg = {}
    n = 0
    for t in range(20):
        for mt in range(3):
            w1reg[(t, mt)] = slots[n]
            n += 1
    k.I('s_mul_i32 s49, s41, 12')
    k.I('s_mul_i32 s50, s44, 3')
    k.I('s_add_u32 s49, s49, s50')
    k.I('s_and_b32 s53, s44, 1')
    k.I('s_add_u32 s50, s49, s53')
    k.I('s_add_u32 s51, s50, 1')
    k.I('s_lshl_b32 s54, s53, 1')
    k.I('s_sub_u32 s52, 2, s54')
    k.I('s_add_u32 s52, s52, s49')
    k.I('s_mov_b32 s56, s50')
    k.I('s_mov_b32 s57, s52')
    for mt in range(3):
        k.I('s_mul_i32 s%d, s%d, 20480' % (50 + mt, 50 + mt))
        k.I('s_add_u32 s%d, s%d, %d' % (50 + mt, 50 + mt, G.WS_W1F))
    w1_issued = [0]

    def issue_w1(upto):
        while w1_issued[0] < upto:
            n = w1_issued[0]
            t, mt = n // 3, n % 3
            k.I('s_add_u32 s55, s%d, %d' % (50 + mt, (t // 4) * 4096))
            k.I('buffer_load_dwordx4 %s, v8, %s, s55 offen offset:%d' % (ar(w1reg[(t, mt)]), SRD_WS, (t % 4) * 1024))
            w1_issued[0] += 1
    issue_w1(7)
    k.I('v_lshlrev_b32 v9, 2, v3')
    k.I('v_sub_u32 v9, v2, v9')
    k.I('v_mov_b32 v12, 0x3f80')
    k.I('v_mov_b32 v13, 0x3f800000')
    k.I('v_cmp_eq_u32 vcc, 0, v9')
    k.I('v_cndmask_b32 v10, 0, v12, vcc')
    k.I('v_cmp_eq_u32 vcc, 1, v9')
    k.I('v_cndmask_b32 v10, v10, v13, vcc')
    k.I('v_cmp_eq_u32 vcc, 2, v9')
    k.I('v_cndmask_b32 v11, 0, v12, vcc')
    k.I('v_cmp_eq_u32 vcc, 3, v9')
    k.I('v_cndmask_b32 v11, v11, v13, vcc')
    for q in range(40):
        k.I('%s %s, v[10:11], %s, 0' % (MF16, vr(ACC + 4 * q), vr(XF + 2 * q, 2)))
    REG = 26624
    k.I('s_mul_i32 s47, s44, %d' % REG)
    k.I('v_lshl_add_u32 v9, v3, 5, v2')
    k.I('v_mul_u32_u24 v9, 208, v9')
    k.I('v_add_u32 v9, s47, v9')
    DT, QP = 16, 48
    for ch in range(12):
        qp = QP + 8 * (ch % 2)
        for u in range(4):
            k1 = 4 * ch + u
            if k1 <= 40:
                dt = DT + 4 * (k1 % 8)
                k.I('%s %s, %s, %s, 0' % (MF16, vr(dt), ar(aTA + 2 * k1, 2), ar(aZP + 2 * k1, 2)))
        for u in range(4):
            k1 = 4 * ch + u
            if k1 <= 40:
                dt = DT + 4 * (k1 % 8)
                k.I('v_cvt_pk_bf16_f32 v%d, v%d, v%d' % (qp + u, dt, dt + 1))
                k.I('v_cvt_pk_bf16_f32 v%d, v%d, v%d' % (qp + 4 + u, dt + 2, dt + 3))
            else:
                k.I('v_mov_b32 v%d, 0' % (qp + u))
                k.I('v_mov_b32 v%d, 0' % (qp + 4 + u))
        k.I('ds_write_b128 v9, %s offset:%d' % (vr(qp), 16 * ch))
        k.I('ds_write_b128 v9, %s offset:%d' % (vr(qp + 4), 3328 + 16 * ch))
    issue_w1(49)
    k.I('v_mul_u32_u24 v9, 208, v2')
    k.I('v_lshl_add_u32 v9, v3, 4, v9')
    k.I('v_add_u32 v9, s47, v9')
    BF = 64
    for d2 in range(8):
        bf = BF + 12 * (d2 % 2)
        for t in range(3):
            k.I('ds_read_b128 %s, v9 offset:%d' % (vr(bf + 4 * t), 3328 * d2 + 64 * t))
        for t in range(3):
            for mt in range(5):
                a = ACC + 4 * (5 * d2 + mt)
                k.I('%s %s, %s, %s, %s' % (MF, vr(a), ar(aG80 + 4 * (3 * mt + t)), vr(bf + 4 * t), vr(a)))
    issue_w1(60)
    k.I('s_mov_b32 s48, 1280')
    k.I('v_mul_lo_u32 v7, v5, s48')
    k.I('v_lshl_add_u32 v7, v3, 6, v7')
    k.flush_hazards()
    lab = [k.newlabel('Lc') for _ in range(8)]
    done = k.newlabel('Ld')
    for c in range(1, 8):
        k.I('s_cmp_eq_u32 s41, %d' % c)
        k.I('s_cbranch_scc1 %s' % lab[c])
    st = (list(k.vm), list(k.lg))
    for c in range(8):
        k.vm, k.lg = list(st[0]), list(st[1])
        if c:
            k.label(lab[c])
        PK = 16
        for mt in range(5):
            a = ACC + 4 * (5 * c + mt)
            k.I('v_cvt_pk_bf16_f32 v%d, v%d, v%d' % (PK + 2 * mt, a, a + 1))
            k.I('v_cvt_pk_bf16_f32 v%d, v%d, v%d' % (PK + 2 * mt + 1, a + 2, a + 3))
            k.I('s_mov_b32 s48, %d' % (G.WS_X1P + (5 * c + mt) * 65536))
            k.I('buffer_store_dwordx2 %s, v6, %s, s48 offen' % (vr(PK + 2 * mt, 2), SRD_WS))
        k.I('s_mov_b32 s48, %d' % G.WS_X1N)
        for i, n in enumerate((c, c + 8, (c + 16) % 20)):
            mt, q = n // 4, n % 4
            pk = 32 + 4 * i
            for h in range(4):
                k.I('v_cvt_pk_bf16_f32 v%d, v%d, v%d' % (pk + h, ACC + 4 * (5 * (2 * h) + mt) + q,
                                                         ACC + 4 * (5 * (2 * h + 1) + mt) + q))
            k.I('buffer_store_dwordx4 %s, v7, %s, s48 offen offset:%d' % (vr(pk), SRD_WS, 256 * mt + 16 * q))
        if c < 7:
            k.I('s_branch %s' % done)
    k.label(done)
    SM, T1, MB_, RS_ = 10, 12, 14, 15
    k.I('v_pk_add_f32 v[10:11], %s, %s' % (vr(ACC, 2), vr(ACC + 2, 2)))
    k.I('v_pk_add_f32 v[12:13], %s, %s' % (vr(ACC + 4, 2), vr(ACC + 6, 2)))
    for q in range(4, 80, 2):
        k.I('v_pk_add_f32 v[10:11], v[10:11], %s' % vr(ACC + 2 * q, 2))
        k.I('v_pk_add_f32 v[12:13], v[12:13], %s' % vr(ACC + 2 * q + 2, 2))
    k.I('v_pk_add_f32 v[10:11], v[10:11], v[12:13]')
    k.I('v_add_f32 v10, v10, v11')
    xsum_g(k, 10, 11)
    k.I('v_mul_f32 v10, 0x%x, v10' % f32bits(1.0 / 640))
    k.I('v_mov_b32 v14, v10')
    bf16_round2(k, 14, 11, 12)
    for q in range(80):
        k.I('v_pk_add_f32 %s, %s, v[14:15] op_sel_hi:[1,0] neg_lo:[0,1] neg_hi:[0,1]' % (vr(ACC + 2 * q, 2), vr(ACC + 2 * q, 2)))
    k.I('v_pk_mul_f32 v[48:49], %s, %s' % (vr(ACC, 2), vr(ACC, 2)))
    k.I('v_pk_mul_f32 v[12:13], %s, %s' % (vr(ACC + 2, 2), vr(ACC + 2, 2)))
    for q in range(2, 80, 2):
        k.I('v_pk_fma_f32 v[48:49], %s, %s, v[48:49]' % (vr(ACC + 2 * q, 2), vr(ACC + 2 * q, 2)))
        k.I('v_pk_fma_f32 v[12:13], %s, %s, v[12:13]' % (vr(ACC + 2 * q + 2, 2), vr(ACC + 2 * q + 2, 2)))
    k.I('v_pk_add_f32 v[12:13], v[12:13], v[48:49]')
    k.I('v_add_f32 v12, v12, v13')
    xsum_g(k, 12, 13)
    k.I('v_sub_f32 v10, v10, v14')
    k.I('v_mul_f32 v12, 0x%x, v12' % f32bits(1.0 / 640))
    k.I('v_fma_f32 v12, -v10, v10, v12')
    bf16_round2(k, 11, 12, 13)
    k.I('v_add_f32 v12, 0x%x, v12' % f32bits(1e-5))
    bf16_round2(k, 11, 12, 13)
    k.I('v_sqrt_f32 v12, v12')
    bf16_round2(k, 11, 12, 13)
    k.I('v_rcp_f32 v14, v12')
    k.I('v_add_u32 v9, s47, v8')
    for t in range(20):
        pk = 48 + 4 * (t % 4)
        for h in range(4):
            a = ACC + 8 * t + 2 * h
            k.I('v_pk_mul_f32 %s, %s, v[14:15] op_sel_hi:[1,0]' % (vr(a, 2), vr(a, 2)))
            k.I('v_cvt_pk_bf16_f32 v%d, v%d, v%d' % (pk + h, a, a + 1))
        k.I('ds_write_b128 v9, %s offset:%d' % (vr(pk), 1024 * t))
    k.barrier()
    A2, BB = 96, 160
    k.I('v_add_u32 v9, %d, v8' % (2 * REG))

    def rdB(t):
        for nt in range(4):
            k.I('ds_read_b128 %s, v%d offset:%d' % (vr(BB + 16 * (t % 2) + 4 * nt), 8 if nt < 2 else 9,
                                                    (nt % 2) * REG + 1024 * t))
    rdB(0)
    for t in range(20):
        if t + 1 < 20:
            rdB(t + 1)
        for mt in range(3):
            for nt in range(4):
                a = A2 + 4 * (4 * mt + nt)
                k.I('%s %s, %s, %s, %s' % (MF, vr(a), ar(w1reg[(t, mt)]), vr(BB + 16 * (t % 2) + 4 * nt),
                                           '0' if t == 0 else vr(a)))
    k.I('s_mov_b32 s58, 0x%x' % f32bits(-1.4426950408889634))
    k.I('s_mov_b32 s59, s58')
    k.I('v_mov_b32 v12, 1.0')
    k.I('v_mov_b32 v13, 1.0')
    k.I('s_lshl_b32 s45, s40, 2')
    k.I('s_mul_i32 s45, s45, 49152')
    k.I('s_add_u32 s45, s45, %d' % G.WS_H)
    k.I('s_lshr_b32 s46, s56, 1')
    k.I('s_lshl_b32 s46, s46, 10')
    k.I('s_add_u32 s46, s46, s45')
    k.I('s_lshr_b32 s48, s57, 1')
    k.I('s_lshl_b32 s48, s48, 10')
    k.I('s_add_u32 s48, s48, s45')
    k.I('s_lshl_b32 s49, s53, 3')
    k.I('s_add_u32 s48, s48, s49')
    HO = 16
    for nt in range(4):
        for mt in range(3):
            for h in range(2):
                a = A2 + 4 * (4 * mt + nt) + 2 * h
                t0 = 48 + 4 * ((2 * mt + h) % 4)
                bf16_round2(k, a, a + 1, t0)
                k.I('v_pk_mul_f32 %s, %s, s[58:59]' % (vr(t0, 2), vr(a, 2)))
                k.I('v_exp_f32 v%d, v%d' % (t0, t0))
                k.I('v_exp_f32 v%d, v%d' % (t0 + 1, t0 + 1))
                k.I('v_pk_add_f32 %s, %s, v[12:13]' % (vr(t0, 2), vr(t0, 2)))
                k.I('v_rcp_f32 v%d, v%d' % (t0, t0))
                k.I('v_rcp_f32 v%d, v%d' % (t0 + 1, t0 + 1))
                k.I('v_pk_mul_f32 %s, %s, %s' % (vr(t0, 2), vr(t0, 2), vr(a, 2)))
                k.I('v_cvt_pk_bf16_f32 v%d, v%d, v%d' % (HO + 8 * nt + 2 * mt + h, t0, t0 + 1))
        k.I('s_add_u32 s55, s46, %d' % (nt * 49152))
        k.I('buffer_store_dwordx4 %s, v8, %s, s55 offen' % (vr(HO + 8 * nt), SRD_WS))
        k.I('s_add_u32 s55, s48, %d' % (nt * 49152))
        k.I('buffer_store_dwordx2 %s, v8, %s, s55 offen' % (vr(HO + 8 * nt + 4, 2), SRD_WS))
    k.label('L_%s_end' % k.name)
    k.I('s_endpgm')
    return k, 256, 4 * REG


def gen_g2(final):
    k = Kernel('g2b_kernel' if final else 'g2a_kernel')
    wg_map(k)
    prologue(k, {SRD_OUT: (48, S * D * 2)} if final else {})
    lane_ids(k, 2, 3, 44)
    k.I('v_and_b32 v4, 63, v0')
    k.I('v_lshlrev_b32 v8, 4, v4')
    ACC = 16
    k.I('s_mul_i32 s45, s41, %d' % (5 * 49152))
    k.I('s_mul_i32 s46, s44, %d' % (12 * 1024))
    k.I('s_add_u32 s45, s45, s46')
    k.I('s_add_u32 s45, s45, %d' % (G.WS_W2FB if final else G.WS_W2FA))
    k.I('s_mul_i32 s47, s40, %d' % (4 * 49152))
    k.I('s_add_u32 s47, s47, s46')
    k.I('s_add_u32 s47, s47, %d' % G.WS_H)
    NS = 7

    def issue(ks):
        sl = 36 * (ks % NS)
        for mt in range(5):
            k.I('s_add_u32 s55, s45, %d' % (mt * 49152 + (ks // 4) * 4096))
            k.I('buffer_load_dwordx4 %s, v8, %s, s55 offen offset:%d' % (ar(sl + 4 * mt), SRD_WS, (ks % 4) * 1024))
        for nt in range(4):
            k.I('s_add_u32 s55, s47, %d' % (nt * 49152 + (ks // 4) * 4096))
            k.I('buffer_load_dwordx4 %s, v8, %s, s55 offen offset:%d' % (ar(sl + 20 + 4 * nt), SRD_WS, (ks % 4) * 1024))
    for ks in range(NS - 1):
        issue(ks)
    k.I('s_lshl_b32 s48, s40, 6')
    k.I('s_lshl_b32 s46, s44, 4')
    k.I('s_add_u32 s48, s48, s46')
    k.I('v_add_u32 v5, s48, v2')
    X1 = 96
    G80 = 112
    if final:
        k.I('s_mov_b32 s48, 1280')
        k.I('v_mul_lo_u32 v6, v5, s48')
        k.I('v_lshl_add_u32 v6, v3, 3, v6')
        k.I('s_mul_i32 s49, s41, 160')
        k.I('v_add_u32 v6, s49, v6')
        k.I('s_mov_b32 s50, %d' % G.WS_X1N)
        for mt in range(5):
            k.I('buffer_load_dwordx2 %s, v6, %s, s50 offen offset:%d' % (vr(X1 + 2 * mt, 2), SRD_WS, 32 * mt))
    else:
        k.I('v_lshlrev_b32 v6, 5, v5')
        k.I('v_lshl_add_u32 v6, v3, 3, v6')
        k.I('s_mul_i32 s49, s41, %d' % (5 * 65536))
        for mt in range(5):
            k.I('s_add_u32 s50, s49, %d' % (G.WS_X1P + mt * 65536))
            k.I('buffer_load_dwordx2 %s, v6, %s, s50 offen' % (vr(X1 + 2 * mt, 2), SRD_WS))
    issue(NS - 1)
    for ks in range(12):
        sl = 36 * (ks % NS)
        for nt in range(4):
            for mt in range(5):
                a = ACC + 4 * (5 * nt + mt)
                k.I('%s %s, %s, %s, %s' % (MF, vr(a), ar(sl + 4 * mt), ar(sl + 20 + 4 * nt), '0' if ks == 0 else vr(a)))
        if ks + NS < 12:
            issue(ks + NS)
        if ks == 5 and not final:
            for q in range(15):
                if q % 4 == 0:
                    k.I('s_mov_b32 s50, %d' % (table_off['G80F'] + q * 1024))
                k.I('buffer_load_dwordx4 %s, v8, %s, s50 offen offset:%d' % (vr(G80 + 4 * q), SRD_TAB, 1024 * (q % 4)))
    k.I('s_mul_i32 s46, s44, 20480')
    k.I('v_add_u32 v9, s46, v8')
    for q in range(20):
        k.I('ds_write_b128 v9, %s offset:%d' % (vr(ACC + 4 * q), 1024 * q))
    k.barrier()
    k.I('s_mul_i32 s46, s44, 5120')
    k.I('v_add_u32 v9, s46, v8')
    k.I('v_add_u32 v10, 40960, v9')
    for src in range(4):
        for mt in range(5):
            k.I('ds_read_b128 %s, v%d offset:%d' % (vr(ACC + 20 * src + 4 * mt), 9 if src < 2 else 10,
                                                    (src % 2) * 20480 + 1024 * mt))
    for q in range(10):
        k.I('v_pk_add_f32 %s, %s, %s' % (vr(ACC + 2 * q, 2), vr(ACC + 2 * q, 2), vr(ACC + 20 + 2 * q, 2)))
        k.I('v_pk_add_f32 %s, %s, %s' % (vr(ACC + 40 + 2 * q, 2), vr(ACC + 40 + 2 * q, 2), vr(ACC + 60 + 2 * q, 2)))
    for q in range(10):
        k.I('v_pk_add_f32 %s, %s, %s' % (vr(ACC + 2 * q, 2), vr(ACC + 2 * q, 2), vr(ACC + 40 + 2 * q, 2)))
    U = ACC + 20
    PK = ACC + 40
    for q in range(10):
        bf16_round2(k, ACC + 2 * q, ACC + 2 * q + 1, 10)
        k.I('v_lshlrev_b32 v%d, 16, v%d' % (U + 2 * q, X1 + q))
        k.I('v_and_b32 v%d, 0xffff0000, v%d' % (U + 2 * q + 1, X1 + q))
        k.I('v_pk_add_f32 %s, %s, %s' % (vr(ACC + 2 * q, 2), vr(ACC + 2 * q, 2), vr(U + 2 * q, 2)))
        k.I('v_cvt_pk_bf16_f32 v%d, v%d, v%d' % (PK + q, ACC + 2 * q, ACC + 2 * q + 1))
    if final:
        for mt in range(5):
            k.I('buffer_store_dwordx2 %s, v6, %s, 0 offen offset:%d' % (vr(PK + 2 * mt, 2), SRD_OUT, 32 * mt))
    else:
        for mt in range(5):
            k.I('s_add_u32 s50, s49, %d' % (G.WS_XP + mt * 65536))
            k.I('buffer_store_dwordx2 %s, v6, %s, s50 offen' % (vr(PK + 2 * mt, 2), SRD_WS))
        for q in range(10):
            k.I('v_lshlrev_b32 v%d, 16, v%d' % (ACC + 2 * q, PK + q))
            k.I('v_and_b32 v%d, 0xffff0000, v%d' % (ACC + 2 * q + 1, PK + q))
        k.I('v_lshlrev_b32 v7, 2, v5')
        k.I('v_lshl_add_u32 v7, v3, 17, v7')
        k.I('v_cmp_eq_u32 vcc, 0, v3')
        k.I('v_add_u32 v9, %d, v7' % (40 * 65536))
        k.I('v_cndmask_b32 v11, v7, v9, vcc')
        k.I('v_lshlrev_b32 v9, 6, v5')
        k.I('s_lshl_b32 s52, s41, 13')
        k.I('s_add_u32 s52, s52, %d' % G.WS_P)
        k.I('s_lshl_b32 s53, s41, 3')
        k.I('s_add_u32 s53, s53, %d' % G.WS_ST)
        fwd_epilogue(k, ACC, 176, lambda mo, t: vr(G80 + 4 * (3 * mo + t)), 7, 11, 9, 55, 52)
    k.label('L_%s_end' % k.name)
    k.I('s_endpgm')
    return k, 256, 81920


def gemm_kernels(ks, launches, cl):
    g1 = gen_g1()
    g2a = gen_g2(False)
    g2b = gen_g2(True)
    for g in (g1, g2a, g2b):
        ks.append(g[0])
    L = lambda g: (g[0].name, g[1], g[2])
    launches += [L(g1), L(g2a), cl, L(g1), L(g2b)]
```

```python
import sys
import numpy as np
from asmlib import Kernel, pack_bf16, f32bits, emit_table

S, D, F = 2048, 640, 1536
PI = np.pi

WS_W1F = 0x0
WS_W2FA = 0x200000
WS_W2FB = 0x400000
WS_WC = 0x600000
WS_P = 0x900000
WS_ST = 0xC00000
WS_ZP = 0xD00000
WS_XP = 0x1000000
WS_X1P = 0x1300000
WS_X1N = 0x1600000
WS_H = 0x1900000
WS_SIZE = 0x2000000

SRD_WS = 's[8:11]'
SRD_TAB = 's[12:15]'
SRD_A = 's[16:19]'
SRD_B = 's[20:23]'
SRD_C = 's[24:27]'
SRD_OUT = 's[28:31]'

tables = {}
table_off = {}


def add_table(name, words):
    tables[name] = np.asarray(words, dtype=np.uint32).reshape(-1)


def layout_tables():
    off = 0
    for n, w in tables.items():
        table_off[n] = off
        off += (len(w) * 4 + 255) // 256 * 256
    return off


def make_tables():
    T = np.zeros((5, 3, 64, 8))
    for mo in range(5):
        for t in range(3):
            for l in range(64):
                i, g = l % 16, l // 16
                n = 16 * mo + i
                k1, c = n // 2, n % 2
                for e in range(8):
                    mt, r = 2 * t + e // 4, e % 4
                    if mt >= 5:
                        continue
                    d1 = 16 * mt + 4 * g + r
                    if k1 == 0:
                        v = np.cos(PI * d1) if c == 0 else 0.0
                    else:
                        v = np.cos(2 * PI * k1 * d1 / 80) if c == 0 else -np.sin(2 * PI * k1 * d1 / 80)
                    T[mo, t, l, e] = v
    add_table('G80F', pack_bf16(T))
    T = np.zeros((41 * 8, 2, 8, 2))
    for k1 in range(41):
        for k2 in range(8):
            k = k1 + 80 * k2
            for d2 in range(8):
                th = 2 * PI * ((k * d2) % 640) / 640
                cr, ci = np.cos(th), -np.sin(th)
                if k1 == 0:
                    T[k1 * 8 + k2, 0, d2] = (cr, cr)
                    T[k1 * 8 + k2, 1, d2] = (ci, ci)
                else:
                    T[k1 * 8 + k2, 0, d2] = (cr, -ci)
                    T[k1 * 8 + k2, 1, d2] = (ci, cr)
    add_table('TZ', pack_bf16(T))
    T = np.zeros((2, 3, 64, 8))
    for tile in range(2):
        for l in range(64):
            i, g = l % 16, l // 16
            for e in range(8):
                a, b = 16 * tile + i, 8 * g + e
                th = 2 * PI * ((a * b) % 32) / 32
                T[tile, 0, l, e] = np.cos(th)
                T[tile, 1, l, e] = -np.sin(th)
                T[tile, 2, l, e] = np.sin(th)
    add_table('F32', pack_bf16(T))
    T = np.zeros((3, 4, 2, 64, 8))
    for mt in range(4):
        for t in range(2):
            for l in range(64):
                i, g = l % 16, l // 16
                for e in range(8):
                    a, b = 4 * i + mt, 16 * g + 4 * (e % 4) + 2 * t + e // 4
                    th = 2 * PI * ((a * b) % 64) / 64
                    T[0, mt, t, l, e] = np.cos(th)
                    T[1, mt, t, l, e] = -np.sin(th)
                    T[2, mt, t, l, e] = np.sin(th)
    add_table('F64', pack_bf16(T))
    T = np.zeros((2, 2, 4, 64, 4))
    for nt in range(2):
        for m in range(4):
            for l in range(64):
                j, g = l % 16, l // 16
                for r in range(4):
                    s2, k1p = 16 * g + 4 * r + m, 16 * nt + j
                    th = 2 * PI * (s2 * k1p) / 2048
                    T[nt, 0, m, l, r] = np.cos(th)
                    T[nt, 1, m, l, r] = -np.sin(th)
    add_table('TW', f32bits(T))
    T = np.zeros((22, 64, 2, 4))
    for k1 in range(41):
        for l in range(64):
            i, g = l % 16, l // 16
            d2, cp = i // 2, i % 2
            for e in range(4):
                k2, c = 2 * g + e // 2, e % 2
                ph = 2 * PI * (((k1 + 80 * k2) * d2) % 640) / 640
                if cp == 0:
                    v = np.cos(ph) if c == 0 else -np.sin(ph)
                else:
                    v = np.sin(ph) if c == 0 else np.cos(ph)
                T[k1 // 2, l, k1 % 2, e] = v
    add_table('TA', pack_bf16(T))
    T = np.zeros((5, 3, 64, 8))
    for mt in range(5):
        for t in range(3):
            for l in range(64):
                i, g = l % 16, l // 16
                d1 = 16 * mt + i
                for e in range(8):
                    k1, cp = 16 * t + 4 * g + e // 2, e % 2
                    if k1 > 40:
                        continue
                    th = 2 * PI * ((k1 * d1) % 80) / 80
                    if k1 in (0, 40):
                        v = np.cos(th) if cp == 0 else 0.0
                    else:
                        v = 2 * np.cos(th) if cp == 0 else -2 * np.sin(th)
                    T[mt, t, l, e] = v
    add_table('G80I', pack_bf16(T))


def prologue(k, need):
    k.I('s_load_dwordx2 s[4:5], s[0:1], 64')
    tmp = 32
    items = list(need.items())
    for n, (srd, (ko, nb)) in enumerate(items):
        k.I('s_load_dwordx2 s[%d:%d], s[0:1], %d' % (tmp + 2 * n, tmp + 2 * n + 1, ko))
    k.I('s_getpc_b64 s[6:7]')
    k.raw('    s_add_u32 s6, s6, tab_base@rel32@lo+4')
    k.raw('    s_addc_u32 s7, s7, tab_base@rel32@hi+12')
    k.I('s_mov_b32 s12, s6')
    k.I('s_and_b32 s13, s7, 0xffff')
    k.I('s_mov_b32 s14, %d' % TAB_BYTES)
    k.I('s_mov_b32 s15, 0x20000')
    k.wait_lgkm0()
    k.I('s_mov_b32 s8, s4')
    k.I('s_and_b32 s9, s5, 0xffff')
    k.I('s_mov_b32 s10, 0x%x' % WS_SIZE)
    k.I('s_mov_b32 s11, 0x20000')
    for n, (srd, (ko, nb)) in enumerate(items):
        b = int(srd[2:srd.index(':')])
        k.I('s_mov_b32 s%d, s%d' % (b, tmp + 2 * n))
        k.I('s_and_b32 s%d, s%d, 0xffff' % (b + 1, tmp + 2 * n + 1))
        k.I('s_mov_b32 s%d, %d' % (b + 2, nb))
        k.I('s_mov_b32 s%d, 0x20000' % (b + 3))


def xsum_g(k, reg, tmp):
    k.I('v_mov_b32 v%d, v%d' % (tmp, reg))
    k.I('v_permlane32_swap_b32 v%d, v%d' % (reg, tmp))
    k.I('v_add_f32 v%d, v%d, v%d' % (reg, reg, tmp))
    k.I('v_mov_b32 v%d, v%d' % (tmp, reg))
    k.I('v_permlane16_swap_b32 v%d, v%d' % (reg, tmp))
    k.I('v_add_f32 v%d, v%d, v%d' % (reg, reg, tmp))


def fwd_epilogue(k, X, T, G80, vP, vP0, vST, sbase, d2_soff_sgpr):
    sm, t1, mean, m2 = T, T + 1, T + 2, T + 3
    acc = T + 4
    B = T + 8
    Dm = T + 20
    k.I('v_pk_add_f32 v[%d:%d], v[%d:%d], v[%d:%d]' % (acc, acc + 1, X, X + 1, X + 2, X + 3))
    for q in range(2, 10):
        k.I('v_pk_add_f32 v[%d:%d], v[%d:%d], v[%d:%d]' % (acc, acc + 1, acc, acc + 1, X + 2 * q, X + 2 * q + 1))
    k.I('v_add_f32 v%d, v%d, v%d' % (sm, acc, acc + 1))
    xsum_g(k, sm, t1)
    k.I('v_mul_f32 v%d, 0x%x, v%d' % (mean, f32bits(1.0 / 80), sm))
    for q in range(10):
        k.I('v_pk_add_f32 v[%d:%d], v[%d:%d], v[%d:%d] op_sel_hi:[1,0] neg_lo:[0,1] neg_hi:[0,1]'
            % (X + 2 * q, X + 2 * q + 1, X + 2 * q, X + 2 * q + 1, mean, mean + 1))
    k.I('v_pk_mul_f32 v[%d:%d], v[%d:%d], v[%d:%d]' % (acc, acc + 1, X, X + 1, X, X + 1))
    for q in range(1, 10):
        k.I('v_pk_fma_f32 v[%d:%d], v[%d:%d], v[%d:%d], v[%d:%d]'
            % (acc, acc + 1, X + 2 * q, X + 2 * q + 1, X + 2 * q, X + 2 * q + 1, acc, acc + 1))
    k.I('v_add_f32 v%d, v%d, v%d' % (m2, acc, acc + 1))
    for q in range(10):
        k.I('v_cvt_pk_bf16_f32 v%d, v%d, v%d' % (B + q, X + 2 * q, X + 2 * q + 1))
    k.I('v_mov_b32 v%d, 0' % (B + 10))
    k.I('v_mov_b32 v%d, 0' % (B + 11))
    xsum_g(k, m2, t1)
    for mo in range(5):
        for t in range(3):
            c = '0' if t == 0 else 'v[%d:%d]' % (Dm + 4 * mo, Dm + 4 * mo + 3)
            k.I('v_mfma_f32_16x16x32_bf16 v[%d:%d], %s, v[%d:%d], %s'
                % (Dm + 4 * mo, Dm + 4 * mo + 3, G80(mo, t), B + 4 * t, B + 4 * t + 3, c))
    hi, lo = acc, acc + 1
    k.I('v_cvt_pk_bf16_f32 v%d, v%d, v%d' % (hi, sm, sm))
    k.I('v_and_b32 v%d, 0xffff0000, v%d' % (hi, hi))
    k.I('v_sub_f32 v%d, v%d, v%d' % (lo, sm, hi))
    k.I('v_cvt_pk_bf16_f32 v%d, v%d, v%d' % (hi, hi, lo))
    k.I('s_mov_b64 exec, 0xffff')
    k.I('buffer_store_dword v%d, v%d, %s, s%d offen' % (hi, vP, SRD_WS, d2_soff_sgpr))
    k.I('buffer_store_dwordx2 v[%d:%d], v%d, %s, s%d offen' % (mean, m2, vST, SRD_WS, d2_soff_sgpr + 1))
    k.I('s_mov_b64 exec, -1')
    for mo in range(5):
        for h in range(2):
            o = B + 2 * mo + h
            o = X + 2 * mo + h
            k.I('v_cvt_pk_bf16_f32 v%d, v%d, v%d' % (o, Dm + 4 * mo + 2 * h, Dm + 4 * mo + 2 * h + 1))
            k.I('s_add_u32 s%d, s%d, %d' % (sbase, d2_soff_sgpr, (8 * mo + h) * 65536))
            k.I('buffer_store_dword v%d, v%d, %s, s%d offen'
                % (o, vP0 if (mo == 0 and h == 0) else vP, SRD_WS, sbase))


def lane_ids(k, vj, vg, vw_s):
    k.I('v_and_b32 v%d, 15, v0' % vj)
    k.I('v_bfe_u32 v%d, v0, 4, 2' % vg)
    k.I('v_lshrrev_b32 v1, 6, v0')
    k.I('v_readfirstlane_b32 s%d, v1' % vw_s)


def gen_k1():
    k = Kernel('k1_kernel')
    NX, NW, N1, N2 = 128, 256, 80, 96
    k.I('s_cmp_ge_u32 s2, %d' % (NX + NW + N1 + N2))
    k.I('s_cbranch_scc1 L_k1_end')
    prologue(k, {SRD_A: (0, S * D * 2), SRD_B: (8, S * 321 * 2), SRD_C: (16, S * 321 * 2),
                 SRD_OUT: (32, D * F * 2), 's[40:43]': (40, F * D * 2)})
    SRD_W1, SRD_W2 = SRD_OUT, 's[40:43]'
    lane_ids(k, 2, 3, 44)
    k.I('s_mov_b32 s46, 0x05040100')
    k.I('s_mov_b32 s47, 0x07060302')
    k.I('s_cmp_ge_u32 s2, %d' % NX)
    k.I('s_cbranch_scc1 L_k1_w')
    k.I('s_lshl_b32 s45, s2, 4')
    k.I('v_add_u32 v4, s45, v2')
    k.I('s_mov_b32 s48, 1280')
    k.I('v_mul_lo_u32 v5, v4, s48')
    k.I('v_lshl_add_u32 v5, v3, 6, v5')
    k.I('s_lshl_b32 s49, s44, 2')
    k.I('v_add_u32 v5, s49, v5')
    R = 16
    for mt in range(5):
        for r in range(4):
            k.I('buffer_load_dword v%d, v5, %s, 0 offen offset:%d' % (R + 4 * mt + r, SRD_A, 256 * mt + 16 * r))
    k.I('v_and_b32 v6, 63, v0')
    k.I('v_lshlrev_b32 v6, 4, v6')
    for q in range(15):
        k.I('s_mov_b32 s50, %d' % (table_off['G80F'] + q * 1024))
        k.I('buffer_load_dwordx4 a[%d:%d], v6, %s, s50 offen' % (4 * q, 4 * q + 3, SRD_TAB))
    k.I('v_lshlrev_b32 v7, 2, v4')
    k.I('v_lshl_add_u32 v7, v3, 17, v7')
    k.I('v_mov_b32 v8, v7')
    k.I('v_cmp_eq_u32 vcc, 0, v3')
    k.I('v_add_u32 v9, %d, v7' % (40 * 65536))
    k.I('v_cndmask_b32 v8, v7, v9, vcc')
    k.I('v_lshlrev_b32 v9, 6, v4')
    k.I('v_lshlrev_b32 v10, 5, v4')
    k.I('v_lshl_add_u32 v10, v3, 3, v10')
    X, T, PK = 40, 64, 60
    for e in range(2):
        k.I('s_lshl_b32 s51, s44, 1')
        k.I('s_add_u32 s51, s51, %d' % e)
        k.I('s_lshl_b32 s52, s51, 13')
        k.I('s_add_u32 s52, s52, %d' % WS_P)
        k.I('s_lshl_b32 s53, s51, 3')
        k.I('s_add_u32 s53, s53, %d' % WS_ST)
        k.I('s_mul_i32 s54, s51, %d' % (5 * 65536))
        k.I('s_add_u32 s54, s54, %d' % WS_XP)
        for mt in range(5):
            sel = 's46' if e == 0 else 's47'
            k.I('v_perm_b32 v%d, v%d, v%d, %s' % (PK, R + 4 * mt + 1, R + 4 * mt, sel))
            k.I('v_perm_b32 v%d, v%d, v%d, %s' % (PK + 1, R + 4 * mt + 3, R + 4 * mt + 2, sel))
            k.I('s_add_u32 s55, s54, %d' % (mt * 65536))
            k.I('buffer_store_dwordx2 v[%d:%d], v10, %s, s55 offen' % (PK, PK + 1, SRD_WS))
        for q in range(20):
            if e == 0:
                k.I('v_lshlrev_b32 v%d, 16, v%d' % (X + q, R + q))
            else:
                k.I('v_and_b32 v%d, 0xffff0000, v%d' % (X + q, R + q))
        fwd_epilogue(k, X, T, lambda mo, t: 'a[%d:%d]' % (4 * (3 * mo + t), 4 * (3 * mo + t) + 3),
                     7, 8, 9, 55, 52)
    k.I('s_endpgm')
    k.label('L_k1_w')
    k.I('s_cmp_ge_u32 s2, %d' % (NX + NW))
    k.I('s_cbranch_scc1 L_k1_w1')
    k.I('s_sub_u32 s45, s2, %d' % NX)
    k.I('s_lshr_b32 s48, s45, 5')
    k.I('s_and_b32 s49, s45, 31')
    k.I('s_lshl_b32 s49, s49, 2')
    k.I('s_add_u32 s49, s49, s44')
    k.I('s_lshr_b32 s50, s49, 6')
    k.I('s_and_b32 s51, s49, 63')
    k.I('s_and_b32 s52, s51, 15')
    k.I('s_lshr_b32 s53, s51, 4')
    k.I('s_lshl_b32 s54, s50, 4')
    k.I('s_add_u32 s54, s54, s52')
    k.I('s_lshl_b32 s55, s53, 9')
    k.I('s_add_u32 s54, s54, s55')
    k.I('v_and_b32 v4, 63, v0')
    k.I('s_mul_i32 s55, s48, 80')
    k.I('v_add_u32 v5, s55, v4')
    k.I('v_sub_u32 v6, 640, v5')
    k.I('s_cmp_lt_u32 s48, 4')
    k.I('s_cselect_b32 s56, 0, -1')
    k.I('s_cselect_b32 s57, 0, 0x80000000')
    k.I('v_mov_b32 v7, s56')
    k.I('v_cmp_eq_u32 vcc, 0, v7')
    k.I('v_cndmask_b32 v5, v6, v5, vcc')
    k.I('v_lshlrev_b32 v5, 1, v5')
    RE, IM, RE2, IM2 = 16, 32, 48, 64
    for mt in range(4):
        for r in range(4):
            q = 4 * mt + r
            k.I('s_add_u32 s58, s54, %d' % (32 * (4 * r + mt)))
            k.I('s_sub_u32 s59, 0, s58')
            k.I('s_and_b32 s59, s59, 2047')
            k.I('s_cmp_lt_u32 s48, 4')
            k.I('s_cselect_b32 s60, s58, s59')
            k.I('s_mul_i32 s60, s60, 642')
            k.I('buffer_load_ushort v%d, v5, %s, s60 offen' % (RE + q, SRD_B))
            k.I('buffer_load_ushort v%d, v5, %s, s60 offen' % (IM + q, SRD_C))
    k.I('s_and_b32 s61, s48, 3')
    k.I('s_cmp_eq_u32 s61, 0')
    k.I('s_cbranch_scc0 L_k1_w_nosym')
    for mt in range(4):
        for r in range(4):
            q = 4 * mt + r
            k.I('s_add_u32 s58, s54, %d' % (32 * (4 * r + mt)))
            k.I('s_sub_u32 s59, 0, s58')
            k.I('s_and_b32 s59, s59, 2047')
            k.I('s_cmp_lt_u32 s48, 4')
            k.I('s_cselect_b32 s60, s59, s58')
            k.I('s_mul_i32 s60, s60, 642')
            k.I('buffer_load_ushort v%d, v5, %s, s60 offen' % (RE2 + q, SRD_B))
            k.I('buffer_load_ushort v%d, v5, %s, s60 offen' % (IM2 + q, SRD_C))
    k.wait_vm0()
    k.I('s_mov_b64 exec, 1')
    for q in range(16):
        k.I('v_lshlrev_b32 v8, 16, v%d' % (RE + q))
        k.I('v_lshlrev_b32 v9, 16, v%d' % (RE2 + q))
        k.I('v_add_f32 v8, v8, v9')
        k.I('v_mul_f32 v8, 0.5, v8')
        k.I('v_lshlrev_b32 v10, 16, v%d' % (IM + q))
        k.I('v_lshlrev_b32 v9, 16, v%d' % (IM2 + q))
        k.I('v_sub_f32 v10, v10, v9')
        k.I('v_mul_f32 v10, 0.5, v10')
        k.I('v_cvt_pk_bf16_f32 v8, v8, v10')
        k.I('v_and_b32 v%d, 0xffff, v8' % (RE + q))
        k.I('v_lshrrev_b32 v%d, 16, v8' % (IM + q))
    k.I('s_mov_b64 exec, -1')
    k.label('L_k1_w_nosym')
    k.wait_vm0()
    for q in range(16):
        k.I('v_lshl_or_b32 v%d, v%d, 16, v%d' % (RE + q, IM + q, RE + q))
        k.I('v_xor_b32 v%d, s57, v%d' % (RE + q, RE + q))
    k.I('v_lshlrev_b32 v6, 16, v4')
    k.I('s_lshl_b32 s58, s48, 13')
    k.I('s_lshl_b32 s59, s49, 6')
    k.I('s_add_u32 s58, s58, s59')
    k.I('s_add_u32 s58, s58, %d' % WS_WC)
    k.I('v_cmp_gt_u32 vcc, 41, v4')
    k.I('s_and_saveexec_b64 s[62:63], vcc')
    for mt in range(4):
        k.I('buffer_store_dwordx4 v[%d:%d], v6, %s, s58 offen offset:%d' % (RE + 4 * mt, RE + 4 * mt + 3, SRD_WS, 16 * mt))
    k.I('s_endpgm')

    def transpose8(R, O):
        for c in range(8):
            for kk in range(4):
                k.I('v_perm_b32 v%d, v%d, v%d, %s' % (O + 4 * c + kk, R + 4 * (2 * kk + 1) + c // 2,
                                                      R + 4 * (2 * kk) + c // 2, 's47' if c % 2 else 's46'))
    k.label('L_k1_w1')
    k.I('s_cmp_ge_u32 s2, %d' % (NX + NW + N1))
    k.I('s_cbranch_scc1 L_k1_w2')
    k.I('s_cmp_ge_u32 s44, 3')
    k.I('s_cbranch_scc1 L_k1_end')
    k.I('s_sub_u32 s45, s2, %d' % (NX + NW))
    k.I('s_lshr_b32 s48, s45, 2')
    k.I('s_and_b32 s49, s45, 3')
    k.I('v_lshlrev_b32 v5, 4, v0')
    R, O = 16, 48
    for e in range(8):
        k.I('s_lshl_b32 s50, s48, 1')
        k.I('s_add_u32 s50, s50, %d' % (e // 4))
        k.I('s_mul_i32 s51, s50, 13')
        k.I('s_lshr_b32 s51, s51, 6')
        k.I('s_mul_i32 s52, s51, 5')
        k.I('s_sub_u32 s52, s50, s52')
        k.I('s_lshl_b32 s52, s52, 7')
        k.I('s_lshl_b32 s53, s49, 5')
        k.I('s_add_u32 s52, s52, s53')
        k.I('s_add_u32 s52, s52, s51')
        k.I('s_add_u32 s52, s52, %d' % (8 * (e % 4)))
        k.I('s_mul_i32 s52, s52, 3072')
        k.I('buffer_load_dwordx4 v[%d:%d], v5, %s, s52 offen' % (R + 4 * e, R + 4 * e + 3, SRD_W1))
    transpose8(R, O)
    k.I('v_lshrrev_b32 v6, 1, v0')
    k.I('s_mov_b32 s50, 20480')
    k.I('v_mul_lo_u32 v6, v6, s50')
    k.I('v_and_b32 v7, 1, v0')
    k.I('v_lshl_add_u32 v6, v7, 7, v6')
    k.I('s_lshl_b32 s50, s48, 10')
    k.I('s_lshl_b32 s51, s49, 8')
    k.I('s_add_u32 s50, s50, s51')
    k.I('s_add_u32 s50, s50, %d' % WS_W1F)
    for c in range(8):
        k.I('buffer_store_dwordx4 v[%d:%d], v6, %s, s50 offen offset:%d' % (O + 4 * c, O + 4 * c + 3, SRD_WS, 16 * c))
    k.I('s_endpgm')
    k.label('L_k1_w2')
    k.I('s_cmp_ge_u32 s44, 3')
    k.I('s_cbranch_scc1 L_k1_end')
    k.I('s_sub_u32 s45, s2, %d' % (NX + NW + N1))
    k.I('s_lshr_b32 s48, s45, 1')
    k.I('s_and_b32 s49, s45, 1')
    k.I('v_cmp_le_u32 vcc, 80, v0')
    k.I('v_cndmask_b32 v4, 0, 1, vcc')
    k.I('v_mul_u32_u24 v5, 80, v4')
    k.I('v_sub_u32 v5, v0, v5')
    k.I('s_lshl_b32 s50, s49, 1')
    k.I('v_add_u32 v4, s50, v4')
    k.I('v_mul_u32_u24 v6, 5120, v4')
    k.I('v_lshl_add_u32 v6, v5, 4, v6')
    k.I('v_cmp_gt_u32 vcc, 160, v0')
    k.I('s_and_saveexec_b64 s[62:63], vcc')
    for e in range(8):
        k.I('s_lshl_b32 s50, s48, 5')
        k.I('s_add_u32 s50, s50, %d' % (16 * (e // 4) + e % 4))
        k.I('s_mul_i32 s50, s50, 1280')
        k.I('buffer_load_dwordx4 v[%d:%d], v6, %s, s50 offen' % (R + 4 * e, R + 4 * e + 3, SRD_W2))
    transpose8(R, O)
    k.I('v_lshrrev_b32 v7, 4, v5')
    k.I('v_mul_u32_u24 v7, 49152, v7')
    k.I('v_and_b32 v8, 15, v5')
    k.I('v_lshl_add_u32 v8, v4, 4, v8')
    k.I('v_lshl_add_u32 v7, v8, 4, v7')
    k.I('s_lshl_b32 s50, s48, 10')
    for c in range(8):
        k.I('s_add_u32 s51, s50, %d' % (WS_W2FA + c * 245760))
        k.I('buffer_store_dwordx4 v[%d:%d], v7, %s, s51 offen' % (O + 4 * c, O + 4 * c + 3, SRD_WS))
    k.I('v_lshrrev_b32 v7, 1, v5')
    k.I('v_mul_u32_u24 v7, 49152, v7')
    k.I('v_and_b32 v8, 1, v5')
    k.I('v_lshlrev_b32 v8, 3, v8')
    k.I('v_lshl_add_u32 v8, v4, 4, v8')
    k.I('v_lshl_add_u32 v7, v8, 4, v7')
    k.I('s_add_u32 s51, s50, %d' % WS_W2FB)
    for c in range(8):
        k.I('buffer_store_dwordx4 v[%d:%d], v7, %s, s51 offen offset:%d' % (O + 4 * c, O + 4 * c + 3, SRD_WS, 16 * c))
    k.label('L_k1_end')
    k.I('s_endpgm')
    return k, (NX + NW + N1 + N2), 0


HEADER = '''; Kernarg layout for this problem (72 bytes, ptrs only, base s[0:1]):
'''


def build(kernels, launches):
    out = [HEADER.rstrip('\n')]
    for name, grid, lds in launches:
        out.append('; @launch kernel=%s grid=(%d,1,1) block=(256,1,1) lds=%d' % (name, grid, lds))
    out.append('.amdgcn_target "amdgcn-amd-amdhsa--gfx950"')
    out.append('.text')
    for k in kernels:
        out.append('.globl %s' % k.name)
        out.append('.p2align 8')
        out.append('.type %s,@function' % k.name)
        out.append('%s:' % k.name)
        out += k.out
    out.append('.section .rodata,"a"')
    for k in kernels:
        nv = k.maxv + 1
        acc_off = (nv + 3) // 4 * 4
        nfv = acc_off + (k.maxa + 1) if k.maxa >= 0 else nv
        out.append('.p2align 6')
        out.append('.amdhsa_kernel %s' % k.name)
        out.append('  .amdhsa_next_free_vgpr %d' % nfv)
        out.append('  .amdhsa_next_free_sgpr %d' % max(k.maxs + 1, 16))
        out.append('  .amdhsa_accum_offset %d' % acc_off)
        out.append('  .amdhsa_group_segment_fixed_size 0')
        out.append('  .amdhsa_kernarg_size 72')
        out.append('  .amdhsa_user_sgpr_count 2')
        out.append('  .amdhsa_user_sgpr_kernarg_segment_ptr 1')
        out.append('  .amdhsa_system_sgpr_workgroup_id_x 1')
        out.append('  .amdhsa_float_denorm_mode_32 3')
        out.append('  .amdhsa_float_denorm_mode_16_64 3')
        out.append('.end_amdhsa_kernel')
    out.append('.p2align 8')
    out.append('tab_base:')
    for n, w in tables.items():
        out += emit_table('tab_' + n, w)
    return '\n'.join(out) + '\n'


make_tables()
TAB_BYTES = layout_tables()

if __name__ == '__main__':
    ks, launches = [], []
    k, g, l = gen_k1()
    ks.append(k)
    launches.append((k.name, g, l))
    try:
        from gen2 import more_kernels
        more_kernels(ks, launches)
    except ImportError:
        pass
    path = sys.argv[1] if len(sys.argv) > 1 else 'interleave_layers__spectral_gfnet__dense_activation_silu__prompt.s'
    open(path, 'w').write(build(ks, launches))
    print('wrote', path)
```

```python
import re
import numpy as np

NV = 512
A0 = 512
S0 = 1024
VCC = S0 + 106
EXEC = S0 + 126
SCC = 2000

_reg_re = re.compile(r'^(-|\|)?(abs\()?([vas])(\d+|\[(\d+):(\d+)\])\)?\|?$')


def regs_of(tok):
    tok = tok.strip()
    if tok == 'vcc':
        return [VCC, VCC + 1]
    if tok == 'exec':
        return [EXEC, EXEC + 1]
    if tok == 'm0':
        return [S0 + 124]
    m = _reg_re.match(tok)
    if not m:
        return []
    f = m.group(3)
    base = {'v': 0, 'a': A0, 's': S0}[f]
    if m.group(5) is not None:
        lo, hi = int(m.group(5)), int(m.group(6))
    else:
        lo = hi = int(m.group(4))
    return list(range(base + lo, base + hi + 1))


def split_ops(s):
    out, depth, cur = [], 0, ''
    for ch in s:
        if ch in '[(':
            depth += 1
        if ch in '])':
            depth -= 1
        if ch == ',' and depth == 0:
            out.append(cur.strip())
            cur = ''
        else:
            cur += ch
    if cur.strip():
        out.append(cur.strip())
    return out


TRANS = ('v_exp_f32', 'v_log_f32', 'v_rcp_f32', 'v_rsq_f32', 'v_sqrt_f32', 'v_sin_f32', 'v_cos_f32',
         'v_rcp_iflag_f32')


class Ins:
    __slots__ = ('text', 'mn', 'cls', 'rd', 'wr', 'mfma_a', 'mfma_b', 'mfma_c', 'passes', 'store_data',
                 'ws', 'is_trans', 'dpp', 'wide_store')


def parse(text):
    t = text.split(';')[0].strip()
    parts = t.split(None, 1)
    mn = parts[0]
    rest = parts[1] if len(parts) > 1 else ''
    ops = split_ops(rest)
    if ops:
        last = ops[-1].split()
        ops[-1] = last[0]
        mods = ' '.join(last[1:])
    else:
        mods = ''
    I = Ins()
    I.text = text
    I.mn = mn
    I.rd, I.wr = [], []
    I.mfma_a = I.mfma_b = I.mfma_c = ()
    I.passes = 0
    I.store_data = ()
    I.ws = 1
    I.is_trans = False
    I.dpp = False
    I.wide_store = False
    base = mn.replace('_e32', '').replace('_e64', '')
    if mn.startswith('v_mfma'):
        I.cls = 'mfma'
        I.wr = regs_of(ops[0])
        I.mfma_a, I.mfma_b, I.mfma_c = regs_of(ops[1]), regs_of(ops[2]), regs_of(ops[3])
        I.rd = list(I.mfma_a) + list(I.mfma_b) + list(I.mfma_c)
        I.passes = 8 if '32x32' in mn else 4
    elif mn.startswith('v_'):
        I.cls = 'valu'
        I.is_trans = base in TRANS
        if base.startswith('v_cmp'):
            I.wr = regs_of(ops[0])
            I.rd = [r for o in ops[1:] for r in regs_of(o)]
        elif base in ('v_readfirstlane_b32', 'v_readlane_b32'):
            I.wr = regs_of(ops[0])
            I.rd = [r for o in ops[1:] for r in regs_of(o)]
        elif base.startswith('v_permlane') and 'swap' in base:
            I.wr = regs_of(ops[0]) + regs_of(ops[1])
            I.rd = regs_of(ops[0]) + regs_of(ops[1])
        elif base in ('v_add_co_u32', 'v_sub_co_u32', 'v_addc_co_u32', 'v_subb_co_u32'):
            I.wr = regs_of(ops[0]) + regs_of(ops[1])
            I.rd = [r for o in ops[2:] for r in regs_of(o)]
        else:
            I.wr = regs_of(ops[0])
            I.rd = [r for o in ops[1:] for r in regs_of(o)]
            if base == 'v_movrels_b32':
                I.rd += list(range(96, 256)) + [S0 + 124]
            if base in ('v_fmac_f32', 'v_pk_fmac_f32', 'v_dot2c_f32_bf16', 'v_writelane_b32'):
                I.rd += I.wr
            if base == 'v_cndmask_b32' and len(ops) == 3:
                I.rd += [VCC, VCC + 1]
        if 'row_' in mods or 'quad_perm' in mods or 'wave_' in mods or 'dpp' in mn:
            I.dpp = True
    elif mn.startswith('buffer_load') and ' lds' in (' ' + mods + ' '):
        I.cls = 'vmem_store'
        I.rd = [r for o in ops for r in regs_of(o)] + [S0 + 124]
    elif mn.startswith('buffer_load') or mn.startswith('global_load'):
        I.cls = 'vmem_load'
        I.wr = regs_of(ops[0])
        I.rd = [r for o in ops[1:] for r in regs_of(o)]
    elif mn.startswith('buffer_store'):
        I.cls = 'vmem_store'
        I.store_data = regs_of(ops[0])
        I.rd = [r for o in ops for r in regs_of(o)]
        I.wide_store = mn.endswith('x3') or mn.endswith('x4')
    elif mn.startswith('global_store'):
        I.cls = 'vmem_store'
        I.store_data = regs_of(ops[1])
        I.rd = [r for o in ops for r in regs_of(o)]
        I.wide_store = mn.endswith('x3') or mn.endswith('x4')
    elif mn.startswith('buffer_atomic') or mn.startswith('global_atomic'):
        I.cls = 'vmem_store'
        I.rd = [r for o in ops for r in regs_of(o)]
    elif mn.startswith('ds_read') or mn.startswith('ds_bpermute') or mn.startswith('ds_swizzle') \
            or mn.startswith('ds_permute'):
        I.cls = 'ds_load'
        I.wr = regs_of(ops[0])
        I.rd = [r for o in ops[1:] for r in regs_of(o)]
    elif mn.startswith('ds_write'):
        I.cls = 'ds_store'
        I.rd = [r for o in ops for r in regs_of(o)]
    elif mn.startswith('s_load') or mn.startswith('s_buffer_load') or mn in ('s_memtime', 's_memrealtime'):
        I.cls = 'smem'
        I.wr = regs_of(ops[0])
        I.rd = [r for o in ops[1:] for r in regs_of(o)]
    elif mn == 's_nop':
        I.cls = 'nop'
        I.ws = int(ops[0], 0) + 1
    elif mn.startswith('s_'):
        I.cls = 'salu'
        if mn == 's_set_gpr_idx_on':
            I.rd = regs_of(ops[0])
            I.wr = [S0 + 124]
        elif mn in ('s_set_gpr_idx_off', 's_waitcnt', 's_barrier', 's_endpgm', 's_branch', 's_setprio', 's_sleep') or \
                mn.startswith('s_cbranch'):
            pass
        elif mn.startswith('s_cmp') or mn.startswith('s_bitcmp'):
            I.rd = [r for o in ops for r in regs_of(o)]
        else:
            I.wr = regs_of(ops[0])
            I.rd = [r for o in ops[1:] for r in regs_of(o)]
            if 'saveexec' in mn:
                I.wr += [EXEC, EXEC + 1]
    else:
        raise ValueError('unknown instruction ' + text)
    return I


class Kernel:
    def __init__(self, name):
        self.name = name
        self.out = []
        self.hist = []
        self.vm = []
        self.lg = []
        self.maxv = 0
        self.maxa = -1
        self.maxs = 0
        self.nlabel = 0
        self.vmtotal = 0

    def raw(self, text):
        self.out.append(text)

    def comment(self, text):
        self.out.append('    ; ' + text)

    def _emit(self, I):
        self.out.append('    ' + I.text)
        self.hist.append(I)
        if len(self.hist) > 24:
            self.hist.pop(0)

    def _need(self, I):
        need = 0
        dist = 0
        rd = set(I.rd)
        wr = set(I.wr)
        for P in reversed(self.hist):
            pw = set(P.wr)
            req = 0
            if P.cls == 'valu':
                vw = {r for r in pw if r < S0}
                sw = {r for r in pw if r >= S0}
                if I.cls == 'mfma' and vw & rd:
                    req = max(req, 2)
                if I.cls == 'valu':
                    if sw & rd:
                        req = max(req, 4 if I.mn.startswith(('v_readlane', 'v_writelane')) else 2)
                    if vw & rd:
                        if I.mn.startswith(('v_readfirstlane', 'v_readlane')):
                            req = max(req, 1)
                        if I.dpp or I.mn.startswith('v_permlane'):
                            req = max(req, 2)
                        if P.is_trans and not I.is_trans:
                            req = max(req, 1)
                        if P.is_trans:
                            req = max(req, 1)
                if I.cls in ('vmem_load', 'vmem_store') and sw & rd:
                    req = max(req, 5)
                if I.cls in ('salu', 'smem') and sw & rd:
                    req = max(req, 1)
            elif P.cls == 'mfma':
                p8 = P.passes == 8
                if I.cls == 'mfma':
                    if pw & (set(I.mfma_a) | set(I.mfma_b)):
                        req = max(req, 12 if p8 else 8)
                    c = set(I.mfma_c)
                    if pw & c:
                        if list(I.mfma_c) == list(P.wr) and I.passes == P.passes and I.mn == P.mn:
                            pass
                        else:
                            req = max(req, 10 if p8 else 6)
                    if pw & wr and not (pw & c):
                        req = max(req, 12 if p8 else 8)
                else:
                    if pw & (rd | wr):
                        req = max(req, 12 if p8 else 8)
                    if I.cls == 'valu' and set(P.mfma_c) & wr:
                        req = max(req, 7 if p8 else 3)
                    if I.cls in ('vmem_load', 'ds_load') and set(P.mfma_c) & wr:
                        req = max(req, 7 if p8 else 3)
            elif P.cls == 'salu':
                if (S0 + 124) in pw and (S0 + 124) in rd and I.cls in ('vmem_store', 'valu'):
                    req = max(req, 1)
            elif P.cls == 'vmem_store' and P.wide_store:
                if set(P.store_data) & wr:
                    req = max(req, 2)
            if req > dist:
                need = max(need, req - dist)
            dist += P.ws
            if dist > 20:
                break
        return need

    def _waits(self, I):
        touched = set(I.rd) | set(I.wr)
        vm_n = None
        for idx, dst in enumerate(self.vm):
            if dst & touched:
                vm_n = len(self.vm) - 1 - idx
        lg_n = None
        for idx, dst in enumerate(self.lg):
            if dst & touched:
                lg_n = len(self.lg) - 1 - idx
        if vm_n is not None or lg_n is not None:
            s = 's_waitcnt'
            if vm_n is not None:
                vm_n = min(vm_n, 63)
                s += ' vmcnt(%d)' % vm_n
                self.vm = self.vm[len(self.vm) - vm_n:] if vm_n else []
            if lg_n is not None:
                lg_n = min(lg_n, 15)
                s += ' lgkmcnt(%d)' % lg_n
                self.lg = self.lg[len(self.lg) - lg_n:] if lg_n else []
            self._emit(parse(s))

    def I(self, text):
        self._I(text)
        hook = getattr(self, 'pace_hook', None)
        if hook is not None and not getattr(self, '_in_hook', False):
            self._pc = getattr(self, '_pc', 0) + (2 if text.lstrip().startswith('v_mfma') else 1)
            if self._pc >= self.pace_every:
                self._pc = 0
                self._in_hook = True
                hook()
                self._in_hook = False

    def F(self, op):
        if isinstance(op, str):
            self.I(op)
        else:
            for t in op:
                self._I(t)

    def _I(self, text):
        I = parse(text)
        for r in I.rd + I.wr:
            if r < 256:
                self.maxv = max(self.maxv, r)
            elif A0 <= r < A0 + 256:
                self.maxa = max(self.maxa, r - A0)
            elif S0 <= r < S0 + 102:
                self.maxs = max(self.maxs, r - S0)
            elif r < A0:
                raise ValueError('vgpr out of range: ' + text)
        self._waits(I)
        n = self._need(I)
        while n > 0:
            k = min(n, 16)
            self._emit(parse('s_nop %d' % (k - 1)))
            n -= k
        self._emit(I)
        if I.cls == 'vmem_load':
            self.vm.append(set(I.wr))
            self.vmtotal += 1
        elif I.cls == 'vmem_store':
            self.vm.append(set())
            self.vmtotal += 1
        elif I.cls == 'ds_load':
            self.lg.append(set(I.wr))
        elif I.cls == 'ds_store':
            self.lg.append(set())
        elif I.cls == 'smem':
            self.lg.append(set(I.wr))
        if I.mn == 's_waitcnt':
            m = re.search(r'vmcnt\((\d+)\)', text)
            if m:
                n = int(m.group(1))
                self.vm = self.vm[len(self.vm) - n:] if n else []
            m = re.search(r'lgkmcnt\((\d+)\)', text)
            if m:
                n = int(m.group(1))
                self.lg = self.lg[len(self.lg) - n:] if n else []

    def mark(self):
        return self.vmtotal

    def wait_mark(self, mark):
        n = self.vmtotal - mark
        self.I('s_waitcnt vmcnt(%d)' % min(n, 63))

    def wait_lgkm0(self):
        self.I('s_waitcnt lgkmcnt(0)')

    def wait_vm0(self):
        self.I('s_waitcnt vmcnt(0)')

    def barrier(self):
        self.I('s_waitcnt lgkmcnt(0)')
        self.I('s_barrier')

    def label(self, name):
        self.I('s_nop 15')
        self.out.append(name + ':')

    def flush_hazards(self):
        self.I('s_nop 15')

    DIAG = False
    REAL = False
    DIAG_WS = 0x8000000

    def stamp(self):
        if not Kernel.DIAG:
            return
        n = getattr(self, 'nstamp', 0)
        self.nstamp = n + 1
        self.I('%s s[%d:%d]' % ('s_memrealtime' if Kernel.REAL else 's_memtime', 72 + 2 * n, 73 + 2 * n))
        self.I('s_waitcnt lgkmcnt(0)')

    def stamp_flush(self, kidx, wave_sgpr, srd):
        if not Kernel.DIAG:
            return
        self.stamp()
        n = self.nstamp
        self.I('s_lshl_b32 s70, s2, 2')
        self.I('s_add_u32 s70, s70, s%d' % wave_sgpr)
        self.I('s_lshl_b32 s70, s70, 7')
        self.I('s_add_u32 s70, s70, 0x%x' % (Kernel.DIAG_WS + kidx * 0x80000))
        self.I('s_mov_b64 exec, 1')
        self.I('v_mov_b32 v1, 0')
        for i in range(n):
            self.I('v_mov_b32 v0, s%d' % (72 + 2 * i))
            self.I('buffer_store_dword v0, v1, %s, s70 offen offset:%d' % (srd, 4 * i))
        self.I('s_mov_b64 exec, -1')

    def newlabel(self, p='L'):
        self.nlabel += 1
        return '%s_%s_%d' % (p, self.name, self.nlabel)


def f2bf(x):
    x = np.asarray(x, dtype=np.float32)
    u = x.view(np.uint32).astype(np.uint64)
    r = ((u + 0x7FFF + ((u >> 16) & 1)) >> 16)
    return r.astype(np.uint16)


def pack_bf16(vals):
    h = f2bf(vals).astype(np.uint32)
    return h[..., 0::2] | (h[..., 1::2] << 16)


def f32bits(x):
    return np.asarray(x, dtype=np.float32).view(np.uint32)


def emit_table(name, words):
    words = np.asarray(words, dtype=np.uint32).reshape(-1)
    lines = ['.p2align 8', name + ':']
    for i in range(0, len(words), 8):
        lines.append('.long ' + ','.join('0x%x' % w for w in words[i:i + 8]))
    return lines
```

```python
import numpy as np
from asmlib import Kernel, f32bits
import gen as G
from gen import (prologue, lane_ids, xsum_g, fwd_epilogue, table_off, SRD_WS, SRD_TAB, SRD_A, SRD_B, SRD_C,
                 SRD_OUT, S, D, F)


def vr(b, n=4):
    return 'v[%d:%d]' % (b, b + n - 1)


def ar(b, n=4):
    return 'a[%d:%d]' % (b, b + n - 1)


def bf16_round2(k, a, b, tmp):
    k.I('v_cvt_pk_bf16_f32 v%d, v%d, v%d' % (tmp, a, b))
    k.I('v_lshlrev_b32 v%d, 16, v%d' % (a, tmp))
    k.I('v_and_b32 v%d, 0xffff0000, v%d' % (b, tmp))


def cmul_pk(k, xr, xi, tr, ti, o_r, o_i, conj=False):
    k.I('v_pk_mul_f32 %s, %s, %s' % (vr(o_r, 2), vr(xr, 2), vr(tr, 2)))
    if not conj:
        k.I('v_pk_mul_f32 %s, %s, %s' % (vr(o_i, 2), vr(xr, 2), vr(ti, 2)))
        k.I('v_pk_fma_f32 %s, %s, %s, %s neg_lo:[1,0,0] neg_hi:[1,0,0]' % (vr(o_r, 2), vr(xi, 2), vr(ti, 2), vr(o_r, 2)))
        k.I('v_pk_fma_f32 %s, %s, %s, %s' % (vr(o_i, 2), vr(xi, 2), vr(tr, 2), vr(o_i, 2)))
    else:
        k.I('v_pk_mul_f32 %s, %s, %s' % (vr(o_i, 2), vr(xi, 2), vr(tr, 2)))
        k.I('v_pk_fma_f32 %s, %s, %s, %s' % (vr(o_r, 2), vr(xi, 2), vr(ti, 2), vr(o_r, 2)))
        k.I('v_pk_fma_f32 %s, %s, %s, %s neg_lo:[1,0,0] neg_hi:[1,0,0]' % (vr(o_i, 2), vr(xr, 2), vr(ti, 2), vr(o_i, 2)))


MF = 'v_mfma_f32_16x16x32_bf16'
MF16 = 'v_mfma_f32_16x16x16_bf16'


def gen_c():
    k = Kernel('c1_kernel')
    k.I('s_cmp_ge_u32 s2, 192')
    k.I('s_cbranch_scc1 L_c_prep')
    k.I('s_mov_b32 s60, %d' % G.WS_ST)
    k.out.append('L_c_body:')
    k.I('s_and_b32 s40, s2, 7')
    k.I('s_lshr_b32 s41, s2, 3')
    k.I('s_and_b32 s42, s41, 3')
    k.I('s_lshr_b32 s43, s41, 3')
    k.I('s_lshl_b32 s43, s43, 3')
    k.I('s_add_u32 s40, s40, s43')
    k.I('s_lshl_b32 s40, s40, 1')
    k.I('s_bfe_u32 s43, s41, 0x10002')
    k.I('s_add_u32 s40, s40, s43')
    k.I('s_cmp_ge_u32 s40, 41')
    k.I('s_cbranch_scc1 L_c_end')
    k.stamp()
    prologue(k, {})
    lane_ids(k, 2, 3, 44)
    k.I('v_and_b32 v4, 63, v0')
    ST, TW, WW, AZ, TZ, RS, MB, DZ = 16, 144, 176, 192, 200, 202, 210, 218
    aP, aF32, aF64, aF32o = 0, 64, 88, 184
    TABL = 34816
    k.I('s_or_b32 s53, s40, s42')
    k.I('s_or_b32 s53, s53, s44')
    k.I('s_cmp_eq_u32 s53, 0')
    k.I('s_cselect_b32 s54, -1, 0')
    k.I('s_mov_b32 s55, 0')
    k.I('v_lshlrev_b32 v6, 8, v4')
    k.I('v_mov_b32 v7, 0')
    k.I('s_mov_b32 s53, %d' % G.WS_CNT)
    k.I('s_mov_b64 exec, s[54:55]')
    k.I('buffer_store_dword v7, v6, %s, s53 offen' % SRD_WS)
    k.I('s_mov_b64 exec, -1')
    k.I('v_and_b32 v6, 3, v2')
    k.I('v_lshl_add_u32 v6, v6, 3, v3')
    k.I('v_lshlrev_b32 v6, 2, v6')
    k.I('s_lshl_b32 s48, s40, 3')
    k.I('s_lshl_b32 s49, s42, 1')
    k.I('s_add_u32 s48, s48, s49')
    k.I('s_lshl_b32 s49, s48, 6')
    k.I('s_add_u32 s49, s49, %d' % table_off['TZ'])
    k.I('buffer_load_dword v%d, v6, %s, s49 offen' % (TZ, SRD_TAB))
    k.I('buffer_load_dword v%d, v6, %s, s49 offen offset:16' % (TZ + 1, SRD_TAB))
    k.I('v_lshlrev_b32 v5, 13, v3')
    k.I('v_lshl_add_u32 v5, v2, 4, v5')
    k.I('s_lshl_b32 s45, s44, 11')
    k.I('v_add_u32 v5, s45, v5')
    k.I('s_lshl_b32 s46, s40, 16')
    k.I('s_add_u32 s46, s46, %d' % G.WS_P)
    k.I('s_add_u32 s47, s46, 32768')
    for e in range(8):
        for h2 in range(2):
            k.I('buffer_load_dwordx4 %s, v5, %s, s%d offen offset:%d' % (ar(aP + 8 * e + 4 * h2), SRD_WS, 46 + h2, 256 * e))
    k.I('v_lshl_add_u32 v7, v2, 2, v3')
    k.I('v_lshlrev_b32 v7, 3, v7')
    k.I('s_lshl_b32 s45, s44, 12')
    k.I('v_add_u32 v7, s45, v7')
    for e in range(8):
        k.I('buffer_load_dwordx2 %s, v7, %s, s60 offen offset:%d' % (vr(ST + 2 * e, 2), SRD_WS, 512 * e))
    k.I('v_lshlrev_b32 v8, 4, v4')
    k.I('s_and_b32 s51, s44, 1')
    assert table_off['F64'] == table_off['F32'] + 6144 and table_off['TW'] == table_off['F64'] + 24576
    G.dma_table(k, table_off['F32'], 46, TABL, 44, 8, 52)
    dma_mark = k.mark()
    k.I('v_lshlrev_b32 v9, 6, v4')
    k.I('s_lshl_b32 s52, s48, 13')
    k.I('s_lshl_b32 s53, s44, 12')
    k.I('s_add_u32 s52, s52, s53')
    k.I('s_add_u32 s52, s52, %d' % G.WS_WC)
    for mt in range(4):
        k.I('buffer_load_dwordx4 %s, v9, %s, s52 offen offset:%d' % (vr(WW + 4 * mt), SRD_WS, 16 * mt))
    k.stamp()
    k.I('v_lshrrev_b32 v10, 2, v2')
    for m in range(4):
        k.I('v_cmp_eq_u32 vcc, %d, v10' % m)
        k.I('v_cndmask_b32 v%d, 0, v%d, vcc' % (AZ + m, TZ))
        k.I('v_cndmask_b32 v%d, 0, v%d, vcc' % (AZ + 4 + m, TZ + 1))
    for e in range(8):
        k.I('%s %s, %s, %s, 0' % (MF, vr(DZ + 4 * e), vr(AZ), ar(aP + 8 * e)))
        k.I('%s %s, %s, %s, %s' % (MF, vr(DZ + 4 * e), vr(AZ + 4), ar(aP + 8 * e + 4), vr(DZ + 4 * e)))
    k.stamp()
    k.I('s_or_b32 s53, s40, s42')
    k.I('s_cmp_eq_u32 s53, 0')
    k.I('s_cselect_b32 s53, 0x%x, 0' % f32bits(-640.0))
    k.I('s_mov_b32 s54, 0x%x' % f32bits(1.0 / 640))
    k.I('s_mov_b32 s55, s54')
    for e in range(8):
        b = ST + 2 * e
        k.I('v_pk_mul_f32 %s, %s, s[54:55]' % (vr(b, 2), vr(b, 2)))
        k.I('v_fma_f32 v%d, -v%d, v%d, v%d' % (b + 1, b, b, b + 1))
        bf16_round2(k, b, b + 1, 13)
        k.I('v_mov_b32 v%d, v%d' % (MB + e, b))
        k.I('v_add_f32 v%d, 0x%x, v%d' % (b + 1, f32bits(1e-5), b + 1))
    for e in range(0, 8, 2):
        b = ST + 2 * e
        bf16_round2(k, b + 1, b + 3, 13)
        k.I('v_sqrt_f32 v%d, v%d' % (b + 1, b + 1))
        k.I('v_sqrt_f32 v%d, v%d' % (b + 3, b + 3))
        bf16_round2(k, b + 1, b + 3, 13)
        k.I('v_rcp_f32 v%d, v%d' % (b + 1, b + 1))
        k.I('v_rcp_f32 v%d, v%d' % (b + 3, b + 3))
        k.I('v_mul_f32 v%d, 0x%x, v%d' % (RS + e, f32bits(1.0 / (S * D)), b + 1))
        k.I('v_mul_f32 v%d, 0x%x, v%d' % (RS + e + 1, f32bits(1.0 / (S * D)), b + 3))
    k.stamp()
    for e in range(8):
        k.I('v_fmac_f32 v%d, s53, v%d' % (DZ + 4 * e, MB + e))
        rs = RS + e
        if rs % 2 == 0:
            src, sel = vr(rs, 2), 'op_sel:[0,0] op_sel_hi:[1,0]'
        else:
            src, sel = vr(rs - 1, 2), 'op_sel:[0,1] op_sel_hi:[1,1]'
        k.I('v_pk_mul_f32 %s, %s, %s %s' % (vr(DZ + 4 * e, 2), vr(DZ + 4 * e, 2), src, sel))
        k.I('v_pk_mul_f32 %s, %s, %s %s' % (vr(DZ + 4 * e + 2, 2), vr(DZ + 4 * e + 2, 2), src, sel))
    ZF = 16
    for arr in range(4):
        for h in range(4):
            k.I('v_cvt_pk_bf16_f32 v%d, v%d, v%d' % (ZF + 4 * arr + h, DZ + 8 * h + arr, DZ + 8 * h + 4 + arr))
    k.I('v_lshlrev_b32 v10, 10, v3')
    k.I('v_lshl_add_u32 v10, v2, 4, v10')
    k.I('s_lshl_b32 s45, s44, 8')
    k.I('v_add_u32 v10, s45, v10')
    for arr in range(4):
        k.I('ds_write_b128 v10, %s offset:%d' % (vr(ZF + 4 * arr), 4096 * arr))
    k.wait_mark(dma_mark)
    k.barrier()
    k.stamp()
    k.I('s_mul_i32 s52, s51, 3072')
    k.I('v_add_u32 v11, s52, v8')
    for var in range(3):
        k.I('ds_read_b128 %s, v11 offset:%d' % (ar(aF32o + 4 * var), TABL + 1024 * var))
    AF, D1, TMP, B3, D3 = 32, 64, 96, 128, 218
    k.I('s_lshr_b32 s45, s44, 1')
    k.I('s_lshl_b32 s45, s45, 13')
    k.I('v_add_u32 v10, s45, v8')
    for c in range(2):
        for m in range(4):
            k.I('ds_read_b128 %s, v10 offset:%d' % (vr(AF + 16 * c + 4 * m), 4096 * c + 1024 * m))
    k.I('s_lshl_b32 s52, s51, 13')
    k.I('s_add_u32 s52, s52, %d' % (TABL + 30720))
    k.I('v_add_u32 v11, s52, v8')
    for c in range(2):
        for m in range(4):
            k.I('ds_read_b128 %s, v11 offset:%d' % (vr(TW + 16 * c + 4 * m), 4096 * c + 1024 * m))
    Fr, Fi, Fn = ar(aF32o), ar(aF32o + 4), ar(aF32o + 8)
    for m in range(4):
        k.I('%s %s, %s, %s, 0' % (MF, vr(D1 + 4 * m), vr(AF + 4 * m), Fr))
        k.I('%s %s, %s, %s, 0' % (MF, vr(D1 + 16 + 4 * m), vr(AF + 4 * m), Fi))
    for m in range(4):
        k.I('%s %s, %s, %s, %s' % (MF, vr(D1 + 4 * m), vr(AF + 16 + 4 * m), Fn, vr(D1 + 4 * m)))
        k.I('%s %s, %s, %s, %s' % (MF, vr(D1 + 16 + 4 * m), vr(AF + 16 + 4 * m), Fr, vr(D1 + 16 + 4 * m)))

    for q in range(24):
        k.I('ds_read_b128 %s, v8 offset:%d' % (ar(aF64 + 4 * q), TABL + 6144 + 1024 * q))
    for q in range(6):
        k.I('ds_read_b128 %s, v8 offset:%d' % (ar(aF32 + 4 * q), TABL + 1024 * q))

    def f64(var, mt, t):
        return ar(aF64 + 4 * ((var * 4 + mt) * 2 + t))

    def twiddle_pack(src, dstB, conj):
        for m in range(4):
            for h in range(2):
                o = 2 * h
                cmul_pk(k, src + 4 * m + o, src + 16 + 4 * m + o, TW + 4 * m + o, TW + 16 + 4 * m + o,
                        TMP + 4 * m + o, TMP + 16 + 4 * m + o, conj)

    twiddle_pack(D1, B3, False)
    for c in range(2):
        for m in range(4):
            for h in range(2):
                k.I('v_cvt_pk_bf16_f32 v%d, v%d, v%d' % (B3 + 8 * c + 2 * m + h, TMP + 16 * c + 4 * m + 2 * h,
                                                         TMP + 16 * c + 4 * m + 2 * h + 1))

    def dft64(Dd, Bb, conj):
        vi, vn = (1, 2) if not conj else (2, 1)
        for mt in range(4):
            for t in range(2):
                cr = '0' if t == 0 else vr(Dd + 4 * mt)
                ci = '0' if t == 0 else vr(Dd + 16 + 4 * mt)
                k.I('%s %s, %s, %s, %s' % (MF, vr(Dd + 4 * mt), f64(0, mt, t), vr(Bb + 4 * t), cr))
                k.I('%s %s, %s, %s, %s' % (MF, vr(Dd + 16 + 4 * mt), f64(0, mt, t), vr(Bb + 8 + 4 * t), ci))
                k.I('%s %s, %s, %s, %s' % (MF, vr(Dd + 4 * mt), f64(vn, mt, t), vr(Bb + 8 + 4 * t), vr(Dd + 4 * mt)))
                k.I('%s %s, %s, %s, %s' % (MF, vr(Dd + 16 + 4 * mt), f64(vi, mt, t), vr(Bb + 4 * t), vr(Dd + 16 + 4 * mt)))

    k.stamp()
    dft64(D3, B3, False)
    for q in range(16):
        k.I('v_lshlrev_b32 v%d, 16, v%d' % (AF + q, WW + q))
        k.I('v_and_b32 v%d, 0xffff0000, v%d' % (AF + 16 + q, WW + q))
    for mt in range(4):
        for h in range(2):
            o = 4 * mt + 2 * h
            cmul_pk(k, D3 + o, D3 + 16 + o, AF + o, AF + 16 + o, TMP + o, TMP + 16 + o, False)
    B5 = 64
    for c in range(2):
        for m in range(4):
            for h in range(2):
                k.I('v_cvt_pk_bf16_f32 v%d, v%d, v%d' % (B5 + 8 * c + 2 * m + h, TMP + 16 * c + 4 * m + 2 * h,
                                                         TMP + 16 * c + 4 * m + 2 * h + 1))
    D5 = 218
    k.stamp()
    dft64(D5, B5, True)
    twiddle_pack(D5, None, True)
    L2 = 128
    for c in range(2):
        for r in range(4):
            for mp in range(2):
                k.I('v_cvt_pk_bf16_f32 v%d, v%d, v%d' % (L2 + 8 * c + 2 * r + mp, TMP + 16 * c + 4 * (2 * mp) + r,
                                                         TMP + 16 * c + 4 * (2 * mp + 1) + r))
    LB2, ARR2 = 16384, 4608
    k.I('s_lshr_b32 s45, s44, 1')
    k.I('s_mul_i32 s45, s45, %d' % (2 * ARR2))
    k.I('s_mul_i32 s46, s51, %d' % (16 * 144))
    k.I('s_add_u32 s45, s45, s46')
    k.I('s_add_u32 s45, s45, %d' % LB2)
    k.I('v_mul_u32_u24 v10, 144, v2')
    k.I('v_lshl_add_u32 v10, v3, 5, v10')
    k.I('v_add_u32 v10, s45, v10')
    for c in range(2):
        for h in range(2):
            k.I('ds_write_b128 v10, %s offset:%d' % (vr(L2 + 8 * c + 4 * h), ARR2 * c + 16 * h))
    k.barrier()
    k.stamp()
    k.I('v_lshrrev_b32 v10, 2, v2')
    k.I('v_lshl_add_u32 v10, v3, 3, v10')
    k.I('v_mul_u32_u24 v10, 144, v10')
    k.I('v_and_b32 v11, 3, v2')
    k.I('v_lshl_add_u32 v10, v11, 3, v10')
    k.I('s_lshl_b32 s45, s44, 5')
    k.I('s_add_u32 s45, s45, %d' % LB2)
    k.I('v_add_u32 v10, s45, v10')
    B7 = 32
    for arr in range(4):
        for h in range(2):
            k.I('ds_read_b64_tr_b16 %s, v10 offset:%d' % (vr(B7 + 4 * arr + 2 * h, 2), ARR2 * arr + 576 * h))
    D7 = 64

    def f32(tile, var):
        return ar(aF32 + 4 * (3 * tile + var))
    for col in range(2):
        for mt in range(2):
            dr, di = D7 + 16 * col + 4 * mt, D7 + 16 * col + 8 + 4 * mt
            br, bi = B7 + 8 * col, B7 + 8 * col + 4
            k.I('%s %s, %s, %s, 0' % (MF, vr(dr), f32(mt, 0), vr(br)))
            k.I('%s %s, %s, %s, 0' % (MF, vr(di), f32(mt, 0), vr(bi)))
            k.I('%s %s, %s, %s, %s' % (MF, vr(dr), f32(mt, 1), vr(bi), vr(dr)))
            k.I('%s %s, %s, %s, %s' % (MF, vr(di), f32(mt, 2), vr(br), vr(di)))
    k.I('v_lshl_add_u32 v10, v3, 8, v2')
    k.I('s_lshl_b32 s45, s44, 4')
    k.I('v_add_u32 v10, s45, v10')
    k.I('v_lshlrev_b32 v10, 4, v10')
    k.I('s_lshr_b32 s45, s40, 1')
    k.I('s_lshl_b32 s45, s45, 2')
    k.I('s_add_u32 s45, s45, s42')
    k.I('s_lshl_b32 s45, s45, 15')
    k.I('s_and_b32 s46, s40, 1')
    k.I('s_lshl_b32 s46, s46, 3')
    k.I('s_add_u32 s45, s45, s46')
    k.I('s_add_u32 s45, s45, %d' % G.WS_ZP)
    k.I('s_add_u32 s46, s45, 16384')
    O = 96
    for mt in range(2):
        for r in range(4):
            o = O + 2 * (4 * mt + r)
            for col in range(2):
                k.I('v_cvt_pk_bf16_f32 v%d, v%d, v%d' % (o + col, D7 + 16 * col + 4 * mt + r, D7 + 16 * col + 8 + 4 * mt + r))
            k.I('buffer_store_dwordx2 %s, v10, %s, s%d offen offset:%d' % (vr(o, 2), SRD_WS, 45 + mt, 1024 * r))
    k.stamp()
    k.wait_vm0()
    k.stamp_flush(1, 44, SRD_WS)
    k.label('L_c_end')
    k.I('s_endpgm')
    k.label('L_c_prep')
    k.vm, k.lg = [], []
    nprep = G.gen_wprep(k, 192)
    return k, 192, TABL + 48 * 1024, nprep


def more_kernels(ks, launches):
    kc, gc, lc, nprep = gen_c()
    ks.append(kc)
    kc2 = G.stub_kernel('c2_kernel', kc, 60, G.WS_STB, 'L_c_body')
    ks.append(kc2)
    launches.append((kc.name, gc + nprep, lc))
    try:
        from gen3 import gemm_kernels
        gemm_kernels(ks, launches, (kc2.name, gc, lc))
    except ImportError:
        pass
```

```python
import copy
import numpy as np
from asmlib import Kernel, f32bits
import gen as G
from gen import (prologue, lane_ids, xsum_g, fwd_epilogue, table_off, SRD_WS, SRD_TAB, SRD_A, SRD_B, SRD_C,
                 SRD_OUT, S, D, F)
from gen2 import vr, ar, bf16_round2, MF, MF16


def wg_map(k):
    k.I('s_cmp_ge_u32 s2, 256')
    k.I('s_cbranch_scc1 L_%s_end' % k.name)
    k.I('s_and_b32 s40, s2, 7')
    k.I('s_lshl_b32 s40, s40, 2')
    k.I('s_lshr_b32 s41, s2, 6')
    k.I('s_add_u32 s40, s40, s41')
    k.I('s_lshr_b32 s41, s2, 3')
    k.I('s_and_b32 s41, s41, 7')


def bcast(reg):
    if reg % 2 == 0:
        return vr(reg, 2), 0
    return vr(reg - 1, 2), 1


import os
PACE = int(os.environ.get('PACE', '12'))
PACE2 = int(os.environ.get('PACE2', '6'))
PACE3 = int(os.environ.get('PACE3', '10'))
SLEEP = int(os.environ.get('SLEEP', '2'))


def gen_g1(final):
    k = Kernel('g12b_kernel' if final else 'g12a_kernel')
    k.I('s_mov_b32 s60, %d' % (G.WS_STB if final else G.WS_ST))
    k.I('s_mov_b32 s65, %d' % (G.WS_W2FB if final else G.WS_W2FA))
    k.I('s_mov_b32 s66, %d' % (G.WS_HB if final else G.WS_H))
    V = 'b' if final else 'a'
    wg_map(k)
    k.stamp()
    prologue(k, {SRD_OUT: (48, S * D * 2)})

    lane_ids(k, 2, 3, 44)
    k.I('v_and_b32 v4, 63, v0')
    k.I('v_lshlrev_b32 v8, 4, v4')
    REG = 26624
    TABL = 4 * REG
    RSL = TABL + 40 * 1024 + 3840
    assert (RSL + 256) % 4096 == 0
    assert table_off['G80I'] == table_off['TA'] + 22528
    G.dma_table(k, table_off['TA'], 37, TABL, 44, 8, 52)
    dma_mark = k.mark()
    k.I('s_lshl_b32 s45, s40, 6')
    k.I('s_lshl_b32 s46, s44, 4')
    k.I('s_add_u32 s45, s45, s46')
    k.I('v_add_u32 v5, s45, v2')
    XF, ACC = 16, 96
    aZP, aTA, aG80 = 0, 84, 100
    k.I('v_lshlrev_b32 v7, 3, v5')
    k.I('s_mov_b32 s47, %d' % G.WS_ZP)
    k.I('buffer_load_dword v12, v7, %s, s60 offen' % SRD_WS)
    k.I('v_lshlrev_b32 v7, 4, v5')
    k.I('buffer_load_ushort v13, v7, %s, s47 offen' % SRD_WS)
    k.I('v_lshl_add_u32 v7, v3, 15, v7')
    for q in range(21):
        k.I('s_mov_b32 s47, %d' % (G.WS_ZP + q * 131072))
        k.I('buffer_load_dwordx4 %s, v7, %s, s47 offen' % (ar(aZP + 4 * q), SRD_WS))
    k.I('v_lshlrev_b32 v6, 6, v5')
    k.I('v_lshl_add_u32 v6, v3, 4, v6')
    x_issued = [0]

    def issue_x(upto):
        while x_issued[0] < min(upto, 20):
            q = x_issued[0]
            k.I('s_mov_b32 s47, %d' % (G.WS_XP + q * 131072))
            k.I('buffer_load_dwordx4 %s, v6, %s, s47 offen' % (vr(XF + 4 * q), SRD_WS))
            x_issued[0] += 1
    slots = [160 + 4 * i for i in range(24)] + [aZP + 4 * q for q in range(21)] + \
            [aTA + 4 * i for i in range(4)] + [aG80 + 4 * i for i in range(11)]
    w1reg = {}
    n = 0
    for t in range(20):
        for mt in range(3):
            w1reg[(t, mt)] = slots[n]
            n += 1
    k.I('s_mul_i32 s49, s41, 12')
    k.I('s_mul_i32 s50, s44, 3')
    k.I('s_add_u32 s49, s49, s50')
    k.I('s_and_b32 s53, s44, 1')
    k.I('s_add_u32 s50, s49, s53')
    k.I('s_add_u32 s51, s50, 1')
    k.I('s_lshl_b32 s54, s53, 1')
    k.I('s_sub_u32 s52, 2, s54')
    k.I('s_add_u32 s52, s52, s49')
    k.I('s_mov_b32 s56, s50')
    k.I('s_mov_b32 s57, s52')
    for mt in range(3):
        k.I('s_mul_i32 s%d, s%d, 20480' % (50 + mt, 50 + mt))
        k.I('s_add_u32 s%d, s%d, %d' % (50 + mt, 50 + mt, G.WS_W1F))
    w1_issued = [0]

    def issue_w1(upto):
        while w1_issued[0] < min(upto, 60):
            n = w1_issued[0]
            t, mt = n // 3, n % 3
            k.I('s_add_u32 s55, s%d, %d' % (50 + mt, (t // 4) * 4096))
            k.I('buffer_load_dwordx4 %s, v8, %s, s55 offen offset:%d' % (ar(w1reg[(t, mt)]), SRD_WS, (t % 4) * 1024))
            w1_issued[0] += 1
    k.stamp()
    k.I('v_lshlrev_b32 v9, 2, v3')
    k.I('v_sub_u32 v9, v2, v9')
    k.I('v_mov_b32 v14, 0x3f80')
    k.I('v_mov_b32 v15, 0x3f800000')
    k.I('v_cmp_eq_u32 vcc, 0, v9')
    k.I('v_cndmask_b32 v10, 0, v14, vcc')
    k.I('v_cmp_eq_u32 vcc, 1, v9')
    k.I('v_cndmask_b32 v10, v10, v15, vcc')
    k.I('v_cmp_eq_u32 vcc, 2, v9')
    k.I('v_cndmask_b32 v11, 0, v14, vcc')
    k.I('v_cmp_eq_u32 vcc, 3, v9')
    k.I('v_cndmask_b32 v11, v11, v15, vcc')
    k.I('s_mul_i32 s59, s44, %d' % REG)
    k.I('v_lshl_add_u32 v9, v3, 5, v2')
    k.I('v_mul_u32_u24 v9, 208, v9')
    k.I('v_add_u32 v9, s59, v9')
    k.I('v_add_u32 v4, %d, v8' % TABL)
    k.wait_mark(dma_mark)
    k.barrier()

    def rdTA(ch):
        for u in range(2):
            q = 2 * ch + u
            if q < 21:
                k.I('ds_read_b128 %s, v4 offset:%d' % (ar(aTA + 4 * (q % 4)), 1024 * q))
    rdTA(0)
    rdTA(1)
    k.I('v_lshlrev_b32 v13, 16, v13')
    k.I('v_fmac_f32 v13, 0x%x, v12' % f32bits(1.0 / 640))
    k.I('v_mov_b32 v14, v13')
    k.I('v_mov_b32 v15, v13')
    bf16_round2(k, 15, 13, 12)
    w1_cap = [24]

    def hook():
        if x_issued[0] < 20:
            issue_x(x_issued[0] + 1)
        elif w1_issued[0] < w1_cap[0]:
            issue_w1(w1_issued[0] + 1)
    k.pace_hook, k.pace_every = hook, PACE
    k.stamp()
    DT, QP = 96, 128

    def i1_mfma(ch):
        for u in range(4):
            k1 = 4 * ch + u
            if k1 <= 40:
                dt = DT + 4 * (k1 % 8)
                k.I('%s %s, %s, %s, 0' % (MF16, vr(dt), ar(aTA + 2 * (k1 % 8), 2), ar(aZP + 2 * k1, 2)))
    i1_mfma(0)
    for ch in range(12):
        qp = QP + 8 * (ch % 2)
        if ch + 1 < 11:
            i1_mfma(ch + 1)
        if ch + 2 < 11:
            rdTA(ch + 2)
        for u in range(4):
            k1 = 4 * ch + u
            if k1 <= 40:
                dt = DT + 4 * (k1 % 8)
                k.I('v_cvt_pk_bf16_f32 v%d, v%d, v%d' % (qp + u, dt, dt + 1))
                k.I('v_cvt_pk_bf16_f32 v%d, v%d, v%d' % (qp + 4 + u, dt + 2, dt + 3))
            else:
                k.I('v_mov_b32 v%d, 0' % (qp + u))
                k.I('v_mov_b32 v%d, 0' % (qp + 4 + u))
        k.I('ds_write_b128 v9, %s offset:%d' % (vr(qp), 16 * ch))
        k.I('ds_write_b128 v9, %s offset:%d' % (vr(qp + 4), 3328 + 16 * ch))
        if ch == 8:
            for q in range(15):
                k.I('ds_read_b128 %s, v4 offset:%d' % (ar(aG80 + 4 * q), 22528 + 1024 * q))
    k.stamp()
    k.wait_lgkm0()
    w1_cap[0] = 45
    CI = ACC + 4 * 39
    for r in range(4):
        k.I('v_sub_f32 v%d, 0, v15' % (CI + r))
    k.I('v_mul_u32_u24 v9, 208, v2')
    k.I('v_lshl_add_u32 v9, v3, 4, v9')
    k.I('v_add_u32 v9, s59, v9')
    k.I('v_add_u32 v12, s59, v8')
    GR = 4

    def bfrag(d2, t):
        if d2 % 2 == 0:
            return ar(84 + 4 * t)
        return [ar(96), vr(ACC + 4 * 37), vr(ACC + 4 * 38)][t] if d2 < 7 else [ar(96), vr(16), vr(20)][t]

    def rdQ(d2):
        for t in range(3):
            k.I('ds_read_b128 %s, v9 offset:%d' % (bfrag(d2, t), 3328 * d2 + 64 * t))
    xn_done = [0]

    def xn_upto(nq):
        while 2 * xn_done[0] + 1 < nq:
            t = xn_done[0]
            pk = PKX[t]
            for h in range(4):
                a = ACC + 8 * t + 2 * h
                k.I('v_cvt_pk_bf16_f32 v%d, v%d, v%d' % (pk + h, a, a + 1))
            k.I('ds_write_b128 v12, %s offset:%d' % (vr(pk), 1024 * t))
            k.I('%s %s, %s, %s, %s' % (MF, vr(GR), vr(pk), vr(pk), '0' if t == 0 else vr(GR)))
            xn_done[0] += 1
    PKX = {}
    for t in range(20):
        dnow = (2 * t + 1) // 5 + 1
        PKX[t] = ACC + 4 * (35 + t % 2) if dnow <= 6 else 24 + 4 * (t % 4)
    k.I('v_mov_b32 v13, v5')
    rdQ(0)
    for d2 in range(8):
        if d2 + 1 < 8:
            rdQ(d2 + 1)
        for t in range(3):
            for mt in range(5):
                a = ACC + 4 * (5 * d2 + mt)
                k.I('%s %s, %s, %s, %s' % (MF, vr(a), ar(aG80 + 4 * (3 * mt + t)), bfrag(d2, t), vr(CI) if t == 0 else vr(a)))
            if t == 0:
                xn_upto(5 * d2)
        issue_x(5 * (d2 // 2) + 5)
        for mt in range(5):
            a = ACC + 4 * (5 * d2 + mt)
            k.I('%s %s, v[10:11], %s, %s' % (MF16, vr(a), vr(XF + 4 * (5 * (d2 // 2) + mt) + 2 * (d2 % 2), 2), vr(a)))
    w1_cap[0] = 60
    k.pace_every = PACE2
    xn_upto(40)
    k.stamp()
    x1ops = ['s_mul_i32 s63, s41, 20']
    aX1 = 144

    def idx_add(r0, r1):
        return ('s_set_gpr_idx_on s63, 0x1', 'v_add_f32 v84, v%d, v15' % r0, 'v_add_f32 v85, v%d, v15' % r1,
                's_set_gpr_idx_off')
    for mt in range(5 if not final else 0):
        for h in range(2):
            x1ops += [idx_add(ACC + 4 * mt + 2 * h, ACC + 4 * mt + 2 * h + 1),
                      'v_cvt_pk_bf16_f32 v86, v84, v85', 'v_accvgpr_write_b32 a%d, v86' % (aX1 + 2 * mt + h)]
    if final:
        x1ops += ['s_mul_i32 s61, s41, 10', 's_lshr_b32 s62, s61, 4', 's_min_u32 s62, s62, 3',
                  's_lshl_b32 s63, s62, 2',
                  's_lshl_b32 s62, s62, 4', 's_sub_u32 s62, s62, s61',
                  'v_lshl_add_u32 v0, v3, 2, s62',
                  's_add_u32 s61, s59, 20480', 'v_mul_u32_u24 v1, 176, v2', 'v_add_u32 v1, s61, v1']
        for i in range(8):
            du = 16 * (i // 4) + i % 4
            for h in range(4):
                x1ops += [idx_add(ACC + 40 * h + i, ACC + 40 * h + 20 + i), 'v_cvt_pk_bf16_f32 v%d, v84, v85' % (88 + h)]
            x1ops += ['v_add_u32 v84, %d, v0' % du, 'v_lshl_add_u32 v85, v84, 4, v1',
                      ('v_cmp_gt_u32 vcc, 10, v84', 's_nop 1', 's_and_saveexec_b64 s[68:69], vcc',
                       'ds_write_b128 v85, v[88:91]', 's_mov_b64 exec, -1')]
        x1ops += ['v_lshl_add_u32 v1, v3, 3, v1']
        x1ops += [tuple(
                        ['ds_read_b64 a[%d:%d], v1 offset:%d' % (aX1 + 2 * mt, aX1 + 2 * mt + 1, 32 * mt) for mt in range(5)])]
    k.I('v_and_b32 v9, 3, v2')
    k.I('v_cmp_eq_u32 vcc, 1, v9')
    k.I('v_cndmask_b32 v4, v4, v5, vcc')
    k.I('v_cmp_eq_u32 vcc, 2, v9')
    k.I('v_cndmask_b32 v4, v4, v6, vcc')
    k.I('v_cmp_eq_u32 vcc, 3, v9')
    k.I('v_cndmask_b32 v4, v4, v7, vcc')
    k.I('v_sub_f32 v10, v14, v15')
    k.I('v_mul_f32 v12, 0x%x, v4' % f32bits(1.0 / 640))
    k.I('v_fma_f32 v12, -v10, v10, v12')
    bf16_round2(k, 11, 12, 13)
    k.I('v_add_f32 v12, 0x%x, v12' % f32bits(1e-5))
    bf16_round2(k, 11, 12, 13)
    k.I('v_sqrt_f32 v12, v12')
    bf16_round2(k, 11, 12, 13)
    k.I('v_rcp_f32 v12, v12')
    k.I('s_lshl_b32 s49, s44, 6')
    k.I('s_add_u32 s49, s49, %d' % RSL)
    k.I('v_lshl_add_u32 v13, v2, 2, s49')
    k.I('v_lshrrev_b32 v9, 2, v2')
    k.I('v_cmp_eq_u32 vcc, v9, v3')
    k.I('s_and_saveexec_b64 s[62:63], vcc')
    k.I('ds_write_b32 v13, v12')
    k.I('s_mov_b64 exec, -1')
    k.barrier()
    k.stamp()
    if not final:
        G.dma_table(k, table_off['G80F'], 15, TABL, 44, 8, 49)
    w2reg = {}
    for n in range(60):
        w2reg[(n // 5, n % 5)] = slots[n]
    k.I('s_mul_i32 s67, s41, %d' % (5 * 49152))
    k.I('s_mul_i32 s49, s44, %d' % (12 * 1024))
    k.I('s_add_u32 s67, s67, s49')
    k.I('s_add_u32 s67, s67, s65')
    w2_issued, w2_cap = [0], [0]

    def issue_w2(upto):
        while w2_issued[0] < min(upto, 60):
            n = w2_issued[0]
            ks, mt = n // 5, n % 5
            k.I('s_add_u32 s55, s67, %d' % (mt * 49152 + (ks // 4) * 4096))
            k.I('buffer_load_dwordx4 %s, v8, %s, s55 offen offset:%d' % (ar(w2reg[(ks, mt)]), SRD_WS, (ks % 4) * 1024))
            w2_issued[0] += 1

    def hook2():
        if w1_issued[0] < 60:
            issue_w1(w1_issued[0] + 1)
        elif w2_issued[0] < w2_cap[0]:
            issue_w2(w2_issued[0] + 1)
    k.pace_hook = hook2
    RSV = 92
    k.I('v_lshlrev_b32 v13, 2, v2')
    k.I('v_add_u32 v13, %d, v13' % RSL)
    for n2 in range(4):
        k.I('ds_read_b32 v%d, v13 offset:%d' % (RSV + n2, 64 * n2))
    A2, BB = 16, 64
    k.I('v_add_u32 v9, %d, v8' % (2 * REG))
    k.I('s_mov_b32 s58, 0x%x' % f32bits(-1.4426950408889634))
    k.I('s_lshl_b32 s45, s40, 2')
    k.I('s_mul_i32 s45, s45, 49152')
    k.I('s_add_u32 s45, s45, s66')
    k.I('s_lshr_b32 s46, s56, 1')
    k.I('s_lshl_b32 s46, s46, 10')
    k.I('s_add_u32 s46, s46, s45')
    k.I('s_lshr_b32 s48, s57, 1')
    k.I('s_lshl_b32 s48, s48, 10')
    k.I('s_add_u32 s48, s48, s45')
    EXL = RSL + 256
    k.I('s_lshl_b32 s49, s44, 11')
    k.I('s_add_u32 s49, s49, %d' % EXL)
    k.I('v_lshrrev_b32 v7, 1, v8')
    k.I('v_add_u32 v7, s49, v7')

    HO = 192

    def silu_ops(nt):
        ops = []
        for mt in range(3):
            for h in range(2):
                a = A2 + 4 * (3 * nt + mt) + 2 * h
                t0 = 176 + 4 * ((2 * mt + h) % 4)
                ops += ['v_mul_f32 v%d, v%d, v%d' % (a, a, RSV + nt),
                        'v_mul_f32 v%d, v%d, v%d' % (a + 1, a + 1, RSV + nt),
                        'v_cvt_pk_bf16_f32 v%d, v%d, v%d' % (t0, a, a + 1),
                        'v_lshlrev_b32 v%d, 16, v%d' % (a, t0),
                        'v_and_b32 v%d, 0xffff0000, v%d' % (a + 1, t0),
                        'v_mul_f32 v%d, s58, v%d' % (t0, a),
                        'v_mul_f32 v%d, s58, v%d' % (t0 + 1, a + 1),
                        'v_exp_f32 v%d, v%d' % (t0, t0),
                        'v_exp_f32 v%d, v%d' % (t0 + 1, t0 + 1),
                        'v_add_f32 v%d, 1.0, v%d' % (t0, t0),
                        'v_add_f32 v%d, 1.0, v%d' % (t0 + 1, t0 + 1),
                        'v_rcp_f32 v%d, v%d' % (t0, t0),
                        'v_rcp_f32 v%d, v%d' % (t0 + 1, t0 + 1),
                        'v_mul_f32 v%d, v%d, v%d' % (t0, t0, a),
                        'v_mul_f32 v%d, v%d, v%d' % (t0 + 1, t0 + 1, a + 1),
                        'v_cvt_pk_bf16_f32 v%d, v%d, v%d' % (HO + 8 * nt + 2 * mt + h, t0, t0 + 1)]
        ops += [('s_add_u32 s55, s46, %d' % (nt * 49152),
                 'buffer_store_dwordx4 %s, v8, %s, s55 offen sc1' % (vr(HO + 8 * nt), SRD_WS)),
                'ds_write_b64 v7, %s offset:%d' % (vr(HO + 8 * nt + 4, 2), 512 * nt)]
        return ops

    T1 = int(os.environ.get('T1', '15'))
    order = [(nt, t) for t in range(T1) for nt in range(4)] + [(nt, t) for nt in range(4) for t in range(T1, 20)]

    def rdB(i):
        nt, t = order[i]
        k.I('ds_read_b128 %s, v%d offset:%d' % (vr(BB + 4 * (i % 5)), 8 if nt < 2 else 9, (nt % 2) * REG + 1024 * t))
    for i in range(4):
        rdB(i)
    fill, fi = x1ops, 0
    for i, (nt, t) in enumerate(order):
        if i + 4 < 80:
            rdB(i + 4)
        if t == T1:
            while fi < len(fill):
                k.F(fill[fi])
                fi += 1
            fill, fi = (silu_ops(nt - 1) if nt else []), 0
        issue_w1(3 * t + 3)
        if t <= T1 and nt == 0:
            w2_cap[0] = 3 * t
            if w1_issued[0] == 60:
                k.pace_every = PACE3
        if t > T1 and nt == 3:
            w2_cap[0] = 3 * t
        for mt in range(3):
            a = A2 + 4 * (3 * nt + mt)
            k.I('%s %s, %s, %s, %s' % (MF, vr(a), ar(w1reg[(t, mt)]), vr(BB + 4 * (i % 5)), '0' if t == 0 else vr(a)))
            if t < T1:
                tgt = len(fill) * (3 * i + mt + 1) // (3 * 4 * T1 - 12)
                while fi < min(tgt, len(fill)):
                    k.F(fill[fi])
                    fi += 1
            if t >= T1:
                nm = 3 * (20 - T1)
                m = 3 * (t - T1) + mt + 1
                tgt = 0 if m < 4 else (len(fill) * (m - 3) + (nm - 4)) // (nm - 3)
                while fi < min(tgt, len(fill)):
                    k.F(fill[fi])
                    fi += 1
    while fi < len(fill):
        k.F(fill[fi])
        fi += 1
    assert w1_issued[0] == 60
    k.stamp()
    for op in silu_ops(3):
        k.F(op)
    k.pace_hook = None
    k.barrier()
    k.I('v_xor_b32 v7, 2048, v7')
    for nt in range(4):
        k.I('ds_read_b64 %s, v7 offset:%d' % (vr(HO + 8 * nt + 6, 2), 512 * nt))
    k.I('s_cmp_eq_u32 s53, 0')
    k.I('s_cselect_b64 exec, -1, 0')
    for nt in range(4):
        k.I('s_add_u32 s55, s48, %d' % (nt * 49152))
        k.I('buffer_store_dwordx4 %s, v8, %s, s55 offen sc1' % (vr(HO + 8 * nt + 4), SRD_WS))
    k.I('s_mov_b64 exec, -1')
    st_mark = k.mark()
    issue_w2(60)
    k.stamp()
    k.wait_mark(st_mark)
    k.I('s_barrier')
    k.I('s_lshl_b32 s49, s40, 8')
    k.I('s_add_u32 s49, s49, %d' % G.WS_CNT)
    k.I('v_mov_b32 v5, s49')
    k.I('v_mov_b32 v4, 1')
    k.I('s_cmp_eq_u32 s44, 0')
    k.I('s_cbranch_scc0 L_g12%s_go' % V)
    k.I('s_mov_b64 exec, 1')
    k.raw('    buffer_atomic_add v4, v5, %s, 0 offen' % SRD_WS)
    k.I('s_mov_b32 s49, 0')
    k.out.append('L_g12%s_poll:' % V)
    k.I('s_sleep %d' % SLEEP)
    k.raw('    buffer_load_dword v4, v5, %s, 0 offen sc1' % SRD_WS)
    k.I('s_waitcnt vmcnt(0)')
    k.I('v_readfirstlane_b32 s50, v4')
    k.I('s_add_u32 s49, s49, 1')
    k.I('s_cmp_ge_u32 s50, 8')
    k.I('s_cbranch_scc1 L_g12%s_go0' % V)
    k.I('s_cmp_lt_u32 s49, 0x80000')
    k.I('s_cbranch_scc1 L_g12%s_poll' % V)
    k.out.append('L_g12%s_go0:' % V)
    k.I('s_mov_b64 exec, -1')
    k.label('L_g12%s_go' % V)
    k.I('s_barrier')
    k.stamp()
    AC2, HR = 16, 96
    k.I('s_mul_i32 s47, s40, %d' % (4 * 49152))
    k.I('s_mul_i32 s49, s44, %d' % (12 * 1024))
    k.I('s_add_u32 s47, s47, s49')
    k.I('s_add_u32 s47, s47, s66')

    def issue_h(ks):
        for nt in range(4):
            k.I('s_add_u32 s55, s47, %d' % (nt * 49152 + (ks // 4) * 4096))
            k.I('buffer_load_dwordx4 %s, v8, %s, s55 offen offset:%d sc1' % (vr(HR + 16 * (ks % 10) + 4 * nt), SRD_WS, (ks % 4) * 1024))
    for ks in range(10):
        issue_h(ks)
    k.I('s_lshl_b32 s48, s40, 6')
    k.I('s_lshl_b32 s46, s44, 4')
    k.I('s_add_u32 s48, s48, s46')
    k.I('v_add_u32 v5, s48, v2')
    k.I('s_mov_b32 s48, 1280')
    k.I('v_mul_lo_u32 v6, v5, s48')
    k.I('v_lshl_add_u32 v6, v3, 3, v6')
    k.I('s_mul_i32 s49, s41, 160')
    k.I('v_add_u32 v6, s49, v6')
    for ks in range(12):
        for nt in range(4):
            for mt in range(5):
                a = AC2 + 4 * (5 * nt + mt)
                k.I('%s %s, %s, %s, %s' % (MF, vr(a), ar(w2reg[(ks, mt)]), vr(HR + 16 * (ks % 10) + 4 * nt), '0' if ks == 0 else vr(a)))
        if ks + 10 < 12:
            issue_h(ks + 10)
    k.stamp()
    X1 = 96
    k.I('s_mul_i32 s46, s44, 20480')
    k.I('v_add_u32 v9, s46, v8')
    for q in range(20):
        k.I('ds_write_b128 v9, %s offset:%d' % (vr(AC2 + 4 * q), 1024 * q))
    k.barrier()
    k.I('s_mul_i32 s46, s44, 5120')
    k.I('v_add_u32 v9, s46, v8')
    k.I('v_add_u32 v10, 40960, v9')
    for src in range(4):
        for mt in range(5):
            k.I('ds_read_b128 %s, v%d offset:%d' % (vr(AC2 + 20 * src + 4 * mt), 9 if src < 2 else 10,
                                                    (src % 2) * 20480 + 1024 * mt))
    G80 = 112
    k.I('v_add_u32 v10, %d, v8' % TABL)
    for q in range(15 if not final else 0):
        k.I('ds_read_b128 %s, v10 offset:%d' % (vr(G80 + 4 * q), 1024 * q))
    for q in range(10):
        k.I('v_pk_add_f32 %s, %s, %s' % (vr(AC2 + 2 * q, 2), vr(AC2 + 2 * q, 2), vr(AC2 + 20 + 2 * q, 2)))
        k.I('v_pk_add_f32 %s, %s, %s' % (vr(AC2 + 40 + 2 * q, 2), vr(AC2 + 40 + 2 * q, 2), vr(AC2 + 60 + 2 * q, 2)))
    for q in range(10):
        k.I('v_pk_add_f32 %s, %s, %s' % (vr(AC2 + 2 * q, 2), vr(AC2 + 2 * q, 2), vr(AC2 + 40 + 2 * q, 2)))
    k.stamp()
    k.wait_vm0()
    k.wait_lgkm0()
    for q in range(10):
        k.I('v_accvgpr_read_b32 v%d, a%d' % (X1 + q, aX1 + q))
    U = AC2 + 20
    PK = AC2 + 40
    for q in range(10):
        bf16_round2(k, AC2 + 2 * q, AC2 + 2 * q + 1, 10)
        k.I('v_lshlrev_b32 v%d, 16, v%d' % (U + 2 * q, X1 + q))
        k.I('v_and_b32 v%d, 0xffff0000, v%d' % (U + 2 * q + 1, X1 + q))
        k.I('v_pk_add_f32 %s, %s, %s' % (vr(AC2 + 2 * q, 2), vr(AC2 + 2 * q, 2), vr(U + 2 * q, 2)))
        k.I('v_cvt_pk_bf16_f32 v%d, v%d, v%d' % (PK + q, AC2 + 2 * q, AC2 + 2 * q + 1))
    if final:
        for mt in range(5):
            k.I('buffer_store_dwordx2 %s, v6, %s, 0 offen offset:%d' % (vr(PK + 2 * mt, 2), SRD_OUT, 32 * mt))
    else:
        k.I('v_lshlrev_b32 v7, 6, v5')
        k.I('v_lshl_add_u32 v7, v3, 4, v7')
        k.I('s_lshr_b32 s51, s41, 1')
        k.I('s_mul_i32 s51, s51, %d' % (5 * 131072))
        k.I('s_and_b32 s50, s41, 1')
        k.I('s_lshl_b32 s50, s50, 3')
        k.I('s_add_u32 s51, s51, s50')
        for mt in range(5):
            k.I('s_add_u32 s50, s51, %d' % (G.WS_XP + mt * 131072))
            k.I('buffer_store_dwordx2 %s, v7, %s, s50 offen' % (vr(PK + 2 * mt, 2), SRD_WS))
        for q in range(10):
            k.I('v_lshlrev_b32 v%d, 16, v%d' % (AC2 + 2 * q, PK + q))
            k.I('v_and_b32 v%d, 0xffff0000, v%d' % (AC2 + 2 * q + 1, PK + q))
        k.I('v_lshlrev_b32 v7, 2, v5')
        k.I('v_lshl_add_u32 v7, v3, 17, v7')
        k.I('v_cmp_eq_u32 vcc, 0, v3')
        k.I('v_add_u32 v9, %d, v7' % (40 * 65536))
        k.I('v_cndmask_b32 v11, v7, v9, vcc')
        k.I('v_lshlrev_b32 v9, 3, v5')
        k.I('s_lshl_b32 s52, s41, 13')
        k.I('s_add_u32 s52, s52, %d' % G.WS_P)
        k.I('s_mov_b32 s53, %d' % G.WS_STB)
        fwd_epilogue(k, AC2, 176, lambda mo, t: vr(G80 + 4 * (3 * mo + t)), 7, 11, 9, 55, 52)
    k.stamp()
    k.wait_vm0()
    k.stamp_flush(3 if final else 2, 44, SRD_WS)
    k.label('L_%s_end' % k.name)
    k.I('s_endpgm')
    return k, 256, RSL + 256 + 8192


def gen_g2(final):
    k = Kernel('g2b_kernel' if final else 'g2a_kernel')
    wg_map(k)
    k.stamp()
    prologue(k, {SRD_OUT: (48, S * D * 2)} if final else {})
    lane_ids(k, 2, 3, 44)
    k.I('v_and_b32 v4, 63, v0')
    k.I('v_lshlrev_b32 v8, 4, v4')
    ACC = 16
    k.I('s_mul_i32 s45, s41, %d' % (5 * 49152))
    k.I('s_mul_i32 s46, s44, %d' % (12 * 1024))
    k.I('s_add_u32 s45, s45, s46')
    k.I('s_add_u32 s45, s45, %d' % (G.WS_W2FB if final else G.WS_W2FA))
    k.I('s_mul_i32 s47, s40, %d' % (4 * 49152))
    k.I('s_add_u32 s47, s47, s46')
    k.I('s_add_u32 s47, s47, %d' % G.WS_H)
    NS = 7

    def issue(ks):
        sl = 36 * (ks % NS)
        for mt in range(5):
            k.I('s_add_u32 s55, s45, %d' % (mt * 49152 + (ks // 4) * 4096))
            k.I('buffer_load_dwordx4 %s, v8, %s, s55 offen offset:%d' % (ar(sl + 4 * mt), SRD_WS, (ks % 4) * 1024))
        for nt in range(4):
            k.I('s_add_u32 s55, s47, %d' % (nt * 49152 + (ks // 4) * 4096))
            k.I('buffer_load_dwordx4 %s, v8, %s, s55 offen offset:%d' % (ar(sl + 20 + 4 * nt), SRD_WS, (ks % 4) * 1024))
    for ks in range(NS - 1):
        issue(ks)
    k.I('s_lshl_b32 s48, s40, 6')
    k.I('s_lshl_b32 s46, s44, 4')
    k.I('s_add_u32 s48, s48, s46')
    k.I('v_add_u32 v5, s48, v2')
    X1 = 96
    G80 = 112
    if final:
        k.I('s_mov_b32 s48, 1280')
        k.I('v_mul_lo_u32 v6, v5, s48')
        k.I('v_lshl_add_u32 v6, v3, 3, v6')
        k.I('s_mul_i32 s49, s41, 160')
        k.I('v_add_u32 v6, s49, v6')
        k.I('s_mov_b32 s50, %d' % G.WS_X1N)
        for mt in range(5):
            k.I('buffer_load_dwordx2 %s, v6, %s, s50 offen offset:%d' % (vr(X1 + 2 * mt, 2), SRD_WS, 32 * mt))
    else:
        k.I('v_lshlrev_b32 v6, 5, v5')
        k.I('v_lshl_add_u32 v6, v3, 3, v6')
        k.I('s_mul_i32 s49, s41, %d' % (5 * 65536))
        for mt in range(5):
            k.I('s_add_u32 s50, s49, %d' % (G.WS_X1P + mt * 65536))
            k.I('buffer_load_dwordx2 %s, v6, %s, s50 offen' % (vr(X1 + 2 * mt, 2), SRD_WS))
    issue(NS - 1)
    k.stamp()
    for ks in range(12):
        sl = 36 * (ks % NS)
        for nt in range(4):
            for mt in range(5):
                a = ACC + 4 * (5 * nt + mt)
                k.I('%s %s, %s, %s, %s' % (MF, vr(a), ar(sl + 4 * mt), ar(sl + 20 + 4 * nt), '0' if ks == 0 else vr(a)))
        if ks in (0, 5):
            k.stamp()
        if ks + NS < 12:
            issue(ks + NS)
        if ks == 5 and not final:
            for q in range(15):
                if q % 4 == 0:
                    k.I('s_mov_b32 s50, %d' % (table_off['G80F'] + q * 1024))
                k.I('buffer_load_dwordx4 %s, v8, %s, s50 offen offset:%d' % (vr(G80 + 4 * q), SRD_TAB, 1024 * (q % 4)))
    k.stamp()
    k.I('s_mul_i32 s46, s44, 20480')
    k.I('v_add_u32 v9, s46, v8')
    for q in range(20):
        k.I('ds_write_b128 v9, %s offset:%d' % (vr(ACC + 4 * q), 1024 * q))
    k.barrier()
    k.I('s_mul_i32 s46, s44, 5120')
    k.I('v_add_u32 v9, s46, v8')
    k.I('v_add_u32 v10, 40960, v9')
    for src in range(4):
        for mt in range(5):
            k.I('ds_read_b128 %s, v%d offset:%d' % (vr(ACC + 20 * src + 4 * mt), 9 if src < 2 else 10,
                                                    (src % 2) * 20480 + 1024 * mt))
    for q in range(10):
        k.I('v_pk_add_f32 %s, %s, %s' % (vr(ACC + 2 * q, 2), vr(ACC + 2 * q, 2), vr(ACC + 20 + 2 * q, 2)))
        k.I('v_pk_add_f32 %s, %s, %s' % (vr(ACC + 40 + 2 * q, 2), vr(ACC + 40 + 2 * q, 2), vr(ACC + 60 + 2 * q, 2)))
    for q in range(10):
        k.I('v_pk_add_f32 %s, %s, %s' % (vr(ACC + 2 * q, 2), vr(ACC + 2 * q, 2), vr(ACC + 40 + 2 * q, 2)))
    k.stamp()
    U = ACC + 20
    PK = ACC + 40
    for q in range(10):
        bf16_round2(k, ACC + 2 * q, ACC + 2 * q + 1, 10)
        k.I('v_lshlrev_b32 v%d, 16, v%d' % (U + 2 * q, X1 + q))
        k.I('v_and_b32 v%d, 0xffff0000, v%d' % (U + 2 * q + 1, X1 + q))
        k.I('v_pk_add_f32 %s, %s, %s' % (vr(ACC + 2 * q, 2), vr(ACC + 2 * q, 2), vr(U + 2 * q, 2)))
        k.I('v_cvt_pk_bf16_f32 v%d, v%d, v%d' % (PK + q, ACC + 2 * q, ACC + 2 * q + 1))
    if final:
        for mt in range(5):
            k.I('buffer_store_dwordx2 %s, v6, %s, 0 offen offset:%d' % (vr(PK + 2 * mt, 2), SRD_OUT, 32 * mt))
    else:
        k.I('v_lshlrev_b32 v7, 1, v6')
        k.I('s_lshr_b32 s51, s41, 1')
        k.I('s_mul_i32 s51, s51, %d' % (5 * 131072))
        k.I('s_and_b32 s50, s41, 1')
        k.I('s_lshl_b32 s50, s50, 3')
        k.I('s_add_u32 s51, s51, s50')
        for mt in range(5):
            k.I('s_add_u32 s50, s51, %d' % (G.WS_XP + mt * 131072))
            k.I('buffer_store_dwordx2 %s, v7, %s, s50 offen' % (vr(PK + 2 * mt, 2), SRD_WS))
        for q in range(10):
            k.I('v_lshlrev_b32 v%d, 16, v%d' % (ACC + 2 * q, PK + q))
            k.I('v_and_b32 v%d, 0xffff0000, v%d' % (ACC + 2 * q + 1, PK + q))
        k.I('v_lshlrev_b32 v7, 2, v5')
        k.I('v_lshl_add_u32 v7, v3, 17, v7')
        k.I('v_cmp_eq_u32 vcc, 0, v3')
        k.I('v_add_u32 v9, %d, v7' % (40 * 65536))
        k.I('v_cndmask_b32 v11, v7, v9, vcc')
        k.I('v_lshlrev_b32 v9, 3, v5')
        k.I('s_lshl_b32 s52, s41, 13')
        k.I('s_add_u32 s52, s52, %d' % G.WS_P)
        k.I('s_mov_b32 s53, %d' % G.WS_STB)
        fwd_epilogue(k, ACC, 176, lambda mo, t: vr(G80 + 4 * (3 * mo + t)), 7, 11, 9, 55, 52)
    k.stamp()
    k.wait_vm0()
    k.stamp_flush(4 if final else 3, 44, SRD_WS)
    k.label('L_%s_end' % k.name)
    k.I('s_endpgm')
    return k, 256, 81920


def gemm_kernels(ks, launches, cl):
    g1 = gen_g1(False)
    g1b = gen_g1(True)
    ks.append(g1[0])
    ks.append(g1b[0])
    launches += [(g1[0].name, g1[1], g1[2]), cl, (g1b[0].name, g1b[1], g1b[2])]
```

```python
import sys
import numpy as np
from asmlib import Kernel, pack_bf16, f32bits, emit_table

S, D, F = 2048, 640, 1536
PI = np.pi

WS_W1F = 0x0
WS_W2FA = 0x200000
WS_W2FB = 0x400000
WS_WC = 0x600000
WS_P = 0x900000
WS_ST = 0xC00000
WS_STB = 0xC10000
WS_CNT = 0xC20000
WS_ZP = 0xD00000
WS_XP = 0x1000000
WS_X1P = 0x1300000
WS_X1N = 0x1600000
WS_H = 0x1900000
WS_HB = 0x2000000
WS_SIZE = 0x10000000

SRD_WS = 's[8:11]'
SRD_TAB = 's[12:15]'
SRD_A = 's[16:19]'
SRD_B = 's[20:23]'
SRD_C = 's[24:27]'
SRD_OUT = 's[28:31]'

tables = {}
table_off = {}


def add_table(name, words):
    tables[name] = np.asarray(words, dtype=np.uint32).reshape(-1)


def layout_tables():
    off = 0
    for n, w in tables.items():
        table_off[n] = off
        off += (len(w) * 4 + 255) // 256 * 256
    return off


def make_tables():
    T = np.zeros((5, 3, 64, 8))
    for mo in range(5):
        for t in range(3):
            for l in range(64):
                i, g = l % 16, l // 16
                n = 16 * mo + i
                k1, c = n // 2, n % 2
                for e in range(8):
                    mt, r = 2 * t + e // 4, e % 4
                    if mt >= 5:
                        continue
                    d1 = 16 * mt + 4 * g + r
                    if k1 == 0:
                        v = np.cos(PI * d1) if c == 0 else 0.0
                    else:
                        v = np.cos(2 * PI * k1 * d1 / 80) if c == 0 else -np.sin(2 * PI * k1 * d1 / 80)
                    T[mo, t, l, e] = v
    add_table('G80F', pack_bf16(T))
    T = np.zeros((41 * 8, 2, 8, 2))
    for k1 in range(41):
        for k2 in range(8):
            k = k1 + 80 * k2
            for d2 in range(8):
                th = 2 * PI * ((k * d2) % 640) / 640
                cr, ci = np.cos(th), -np.sin(th)
                if k1 == 0:
                    T[k1 * 8 + k2, 0, d2] = (cr, cr)
                    T[k1 * 8 + k2, 1, d2] = (ci, ci)
                else:
                    T[k1 * 8 + k2, 0, d2] = (cr, -ci)
                    T[k1 * 8 + k2, 1, d2] = (ci, cr)
    add_table('TZ', pack_bf16(T))
    T = np.zeros((2, 3, 64, 8))
    for tile in range(2):
        for l in range(64):
            i, g = l % 16, l // 16
            for e in range(8):
                a, b = 16 * tile + i, 8 * g + e
                th = 2 * PI * ((a * b) % 32) / 32
                T[tile, 0, l, e] = np.cos(th)
                T[tile, 1, l, e] = -np.sin(th)
                T[tile, 2, l, e] = np.sin(th)
    add_table('F32', pack_bf16(T))
    T = np.zeros((3, 4, 2, 64, 8))
    for mt in range(4):
        for t in range(2):
            for l in range(64):
                i, g = l % 16, l // 16
                for e in range(8):
                    a, b = 4 * i + mt, 16 * g + 4 * (e % 4) + 2 * t + e // 4
                    th = 2 * PI * ((a * b) % 64) / 64
                    T[0, mt, t, l, e] = np.cos(th)
                    T[1, mt, t, l, e] = -np.sin(th)
                    T[2, mt, t, l, e] = np.sin(th)
    add_table('F64', pack_bf16(T))
    T = np.zeros((2, 2, 4, 64, 4))
    for nt in range(2):
        for m in range(4):
            for l in range(64):
                j, g = l % 16, l // 16
                for r in range(4):
                    s2, k1p = 16 * g + 4 * r + m, 16 * nt + j
                    th = 2 * PI * (s2 * k1p) / 2048
                    T[nt, 0, m, l, r] = np.cos(th)
                    T[nt, 1, m, l, r] = -np.sin(th)
    add_table('TW', f32bits(T))
    T = np.zeros((22, 64, 2, 4))
    for k1 in range(41):
        for l in range(64):
            i, g = l % 16, l // 16
            d2, cp = i // 2, i % 2
            for e in range(4):
                k2, c = 2 * g + e // 2, e % 2
                ph = 2 * PI * (((k1 + 80 * k2) * d2) % 640) / 640
                if cp == 0:
                    v = np.cos(ph) if c == 0 else -np.sin(ph)
                else:
                    v = np.sin(ph) if c == 0 else np.cos(ph)
                T[k1 // 2, l, k1 % 2, e] = v
    add_table('TA', pack_bf16(T))
    T = np.zeros((5, 3, 64, 8))
    for mt in range(5):
        for t in range(3):
            for l in range(64):
                i, g = l % 16, l // 16
                d1 = 16 * mt + i
                for e in range(8):
                    k1, cp = 16 * t + 4 * g + e // 2, e % 2
                    if k1 > 40:
                        continue
                    th = 2 * PI * ((k1 * d1) % 80) / 80
                    if k1 in (0, 40):
                        v = np.cos(th) if cp == 0 else 0.0
                    else:
                        v = 2 * np.cos(th) if cp == 0 else -2 * np.sin(th)
                    T[mt, t, l, e] = v
    add_table('G80I', pack_bf16(T))


def prologue(k, need):
    k.I('s_load_dwordx2 s[4:5], s[0:1], 64')
    tmp = 32
    items = list(need.items())
    for n, (srd, (ko, nb)) in enumerate(items):
        k.I('s_load_dwordx2 s[%d:%d], s[0:1], %d' % (tmp + 2 * n, tmp + 2 * n + 1, ko))
    k.I('s_getpc_b64 s[6:7]')
    k.raw('    s_add_u32 s6, s6, tab_base@rel32@lo+4')
    k.raw('    s_addc_u32 s7, s7, tab_base@rel32@hi+12')
    k.I('s_mov_b32 s12, s6')
    k.I('s_and_b32 s13, s7, 0xffff')
    k.I('s_mov_b32 s14, %d' % TAB_BYTES)
    k.I('s_mov_b32 s15, 0x20000')
    k.wait_lgkm0()
    k.I('s_mov_b32 s8, s4')
    k.I('s_and_b32 s9, s5, 0xffff')
    k.I('s_mov_b32 s10, 0x%x' % WS_SIZE)
    k.I('s_mov_b32 s11, 0x20000')
    for n, (srd, (ko, nb)) in enumerate(items):
        b = int(srd[2:srd.index(':')])
        k.I('s_mov_b32 s%d, s%d' % (b, tmp + 2 * n))
        k.I('s_and_b32 s%d, s%d, 0xffff' % (b + 1, tmp + 2 * n + 1))
        k.I('s_mov_b32 s%d, %d' % (b + 2, nb))
        k.I('s_mov_b32 s%d, 0x20000' % (b + 3))


def xsum_g(k, reg, tmp):
    k.I('v_mov_b32 v%d, v%d' % (tmp, reg))
    k.I('v_permlane32_swap_b32 v%d, v%d' % (reg, tmp))
    k.I('v_add_f32 v%d, v%d, v%d' % (reg, reg, tmp))
    k.I('v_mov_b32 v%d, v%d' % (tmp, reg))
    k.I('v_permlane16_swap_b32 v%d, v%d' % (reg, tmp))
    k.I('v_add_f32 v%d, v%d, v%d' % (reg, reg, tmp))


def fwd_epilogue(k, X, T, G80, vP, vP0, vST, sbase, d2_soff_sgpr, statacc=None):
    sm, t1, mean, m2 = T, T + 1, T + 2, T + 3
    acc = T + 4
    B = T + 8
    Dm = T + 20
    k.I('v_pk_add_f32 v[%d:%d], v[%d:%d], v[%d:%d]' % (acc, acc + 1, X, X + 1, X + 2, X + 3))
    for q in range(2, 10):
        k.I('v_pk_add_f32 v[%d:%d], v[%d:%d], v[%d:%d]' % (acc, acc + 1, acc, acc + 1, X + 2 * q, X + 2 * q + 1))
    k.I('v_add_f32 v%d, v%d, v%d' % (sm, acc, acc + 1))
    xsum_g(k, sm, t1)
    k.I('v_mul_f32 v%d, 0x%x, v%d' % (mean, f32bits(1.0 / 80), sm))
    for q in range(10):
        k.I('v_pk_add_f32 v[%d:%d], v[%d:%d], v[%d:%d] op_sel_hi:[1,0] neg_lo:[0,1] neg_hi:[0,1]'
            % (X + 2 * q, X + 2 * q + 1, X + 2 * q, X + 2 * q + 1, mean, mean + 1))
    k.I('v_pk_mul_f32 v[%d:%d], v[%d:%d], v[%d:%d]' % (acc, acc + 1, X, X + 1, X, X + 1))
    for q in range(1, 10):
        k.I('v_pk_fma_f32 v[%d:%d], v[%d:%d], v[%d:%d], v[%d:%d]'
            % (acc, acc + 1, X + 2 * q, X + 2 * q + 1, X + 2 * q, X + 2 * q + 1, acc, acc + 1))
    k.I('v_add_f32 v%d, v%d, v%d' % (m2, acc, acc + 1))
    for q in range(10):
        k.I('v_cvt_pk_bf16_f32 v%d, v%d, v%d' % (B + q, X + 2 * q, X + 2 * q + 1))
    k.I('v_mov_b32 v%d, 0' % (B + 10))
    k.I('v_mov_b32 v%d, 0' % (B + 11))
    xsum_g(k, m2, t1)
    for mo in range(5):
        for t in range(3):
            c = '0' if t == 0 else 'v[%d:%d]' % (Dm + 4 * mo, Dm + 4 * mo + 3)
            k.I('v_mfma_f32_16x16x32_bf16 v[%d:%d], %s, v[%d:%d], %s'
                % (Dm + 4 * mo, Dm + 4 * mo + 3, G80(mo, t), B + 4 * t, B + 4 * t + 3, c))
    hi, lo = acc, acc + 1
    k.I('v_cvt_pk_bf16_f32 v%d, v%d, v%d' % (hi, sm, sm))
    k.I('v_and_b32 v%d, 0xffff0000, v%d' % (hi, hi))
    k.I('v_sub_f32 v%d, v%d, v%d' % (lo, sm, hi))
    k.I('v_cvt_pk_bf16_f32 v%d, v%d, v%d' % (hi, hi, lo))
    k.I('v_fmac_f32 v%d, v%d, v%d' % (m2, sm, mean))
    k.I('s_mov_b64 exec, 0xffff')
    k.I('buffer_store_dword v%d, v%d, %s, s%d offen' % (hi, vP, SRD_WS, d2_soff_sgpr))
    if statacc is None:
        k.I('buffer_atomic_add_f32 v%d, v%d, %s, s%d offen' % (sm, vST, SRD_WS, d2_soff_sgpr + 1))
        k.I('buffer_atomic_add_f32 v%d, v%d, %s, s%d offen offset:4' % (m2, vST, SRD_WS, d2_soff_sgpr + 1))
    k.I('s_mov_b64 exec, -1')
    if statacc is not None:
        k.I('v_add_f32 v%d, v%d, v%d' % (statacc, statacc, sm))
        k.I('v_add_f32 v%d, v%d, v%d' % (statacc + 1, statacc + 1, m2))
    for mo in range(5):
        for h in range(2):
            o = B + 2 * mo + h
            o = X + 2 * mo + h
            k.I('v_cvt_pk_bf16_f32 v%d, v%d, v%d' % (o, Dm + 4 * mo + 2 * h, Dm + 4 * mo + 2 * h + 1))
            k.I('s_add_u32 s%d, s%d, %d' % (sbase, d2_soff_sgpr, (8 * mo + h) * 65536))
            k.I('buffer_store_dword v%d, v%d, %s, s%d offen'
                % (o, vP0 if (mo == 0 and h == 0) else vP, SRD_WS, sbase))


def dma_table(k, tab_off, nchunks, lds_base, wave_s, vlane16, st):
    k.I('s_lshl_b32 s%d, s%d, 10' % (st, wave_s))
    k.I('s_add_u32 m0, s%d, %d' % (st, lds_base))
    k.I('s_add_u32 s%d, s%d, %d' % (st, st, tab_off))
    for i in range((nchunks + 3) // 4):
        if i:
            k.I('s_add_u32 m0, m0, 4096')
            k.I('s_add_u32 s%d, s%d, 4096' % (st, st))
        k.I('buffer_load_dwordx4 v%d, %s, s%d offen lds' % (vlane16, SRD_TAB, st))


def stub_kernel(name, main, sreg, value, target):
    k = Kernel(name)
    k.I('s_mov_b32 s%d, %d' % (sreg, value))
    k.I('s_branch %s' % target)
    k.main = main
    return k


def lane_ids(k, vj, vg, vw_s):
    k.I('v_and_b32 v%d, 15, v0' % vj)
    k.I('v_bfe_u32 v%d, v0, 4, 2' % vg)
    k.I('v_lshrrev_b32 v1, 6, v0')
    k.I('v_readfirstlane_b32 s%d, v1' % vw_s)


def gen_wprep(k, base):
    N1, N2 = 80, 96
    k.I('s_cmp_ge_u32 s2, %d' % (base + N1 + N2))
    k.I('s_cbranch_scc1 L_prep_end')
    prologue(k, {SRD_OUT: (32, D * F * 2), 's[40:43]': (40, F * D * 2)})
    SRD_W1, SRD_W2 = SRD_OUT, 's[40:43]'
    lane_ids(k, 2, 3, 44)
    k.I('s_mov_b32 s46, 0x05040100')
    k.I('s_mov_b32 s47, 0x07060302')
    def transpose8(R, O):
        for c in range(8):
            for kk in range(4):
                k.I('v_perm_b32 v%d, v%d, v%d, %s' % (O + 4 * c + kk, R + 4 * (2 * kk + 1) + c // 2,
                                                      R + 4 * (2 * kk) + c // 2, 's47' if c % 2 else 's46'))
    k.I('s_cmp_ge_u32 s2, %d' % (base + N1))
    k.I('s_cbranch_scc1 L_prep_w2')
    k.I('s_cmp_ge_u32 s44, 3')
    k.I('s_cbranch_scc1 L_prep_end')
    k.I('s_sub_u32 s45, s2, %d' % base)
    k.I('s_lshr_b32 s48, s45, 2')
    k.I('s_and_b32 s49, s45, 3')
    k.I('v_lshlrev_b32 v5, 4, v0')
    R, O = 16, 48
    for e in range(8):
        k.I('s_lshl_b32 s50, s48, 1')
        k.I('s_add_u32 s50, s50, %d' % (e // 4))
        k.I('s_mul_i32 s51, s50, 13')
        k.I('s_lshr_b32 s51, s51, 6')
        k.I('s_mul_i32 s52, s51, 5')
        k.I('s_sub_u32 s52, s50, s52')
        k.I('s_lshl_b32 s52, s52, 7')
        k.I('s_lshl_b32 s53, s49, 5')
        k.I('s_add_u32 s52, s52, s53')
        k.I('s_add_u32 s52, s52, s51')
        k.I('s_add_u32 s52, s52, %d' % (8 * (e % 4)))
        k.I('s_mul_i32 s52, s52, 3072')
        k.I('buffer_load_dwordx4 v[%d:%d], v5, %s, s52 offen' % (R + 4 * e, R + 4 * e + 3, SRD_W1))
    transpose8(R, O)
    k.I('v_lshrrev_b32 v6, 1, v0')
    k.I('s_mov_b32 s50, 20480')
    k.I('v_mul_lo_u32 v6, v6, s50')
    k.I('v_and_b32 v7, 1, v0')
    k.I('v_lshl_add_u32 v6, v7, 7, v6')
    k.I('s_lshl_b32 s50, s48, 10')
    k.I('s_lshl_b32 s51, s49, 8')
    k.I('s_add_u32 s50, s50, s51')
    k.I('s_add_u32 s50, s50, %d' % WS_W1F)
    for c in range(8):
        k.I('buffer_store_dwordx4 v[%d:%d], v6, %s, s50 offen offset:%d' % (O + 4 * c, O + 4 * c + 3, SRD_WS, 16 * c))
    k.I('s_endpgm')
    k.label('L_prep_w2')
    k.I('s_cmp_ge_u32 s44, 3')
    k.I('s_cbranch_scc1 L_prep_end')
    k.I('s_sub_u32 s45, s2, %d' % (base + N1))
    k.I('s_lshr_b32 s48, s45, 1')
    k.I('s_and_b32 s49, s45, 1')
    k.I('v_cmp_le_u32 vcc, 80, v0')
    k.I('v_cndmask_b32 v4, 0, 1, vcc')
    k.I('v_mul_u32_u24 v5, 80, v4')
    k.I('v_sub_u32 v5, v0, v5')
    k.I('s_lshl_b32 s50, s49, 1')
    k.I('v_add_u32 v4, s50, v4')
    k.I('v_mul_u32_u24 v6, 5120, v4')
    k.I('v_lshl_add_u32 v6, v5, 4, v6')
    k.I('v_cmp_gt_u32 vcc, 160, v0')
    k.I('s_and_saveexec_b64 s[62:63], vcc')
    for e in range(8):
        k.I('s_lshl_b32 s50, s48, 5')
        k.I('s_add_u32 s50, s50, %d' % (16 * (e // 4) + e % 4))
        k.I('s_mul_i32 s50, s50, 1280')
        k.I('buffer_load_dwordx4 v[%d:%d], v6, %s, s50 offen' % (R + 4 * e, R + 4 * e + 3, SRD_W2))
    transpose8(R, O)
    k.I('v_lshrrev_b32 v7, 4, v5')
    k.I('v_mul_u32_u24 v7, 49152, v7')
    k.I('v_and_b32 v8, 15, v5')
    k.I('v_lshl_add_u32 v8, v4, 4, v8')
    k.I('v_lshl_add_u32 v7, v8, 4, v7')
    k.I('s_lshl_b32 s50, s48, 10')
    for c in range(8):
        k.I('s_add_u32 s51, s50, %d' % (WS_W2FA + c * 245760))
        k.I('buffer_store_dwordx4 v[%d:%d], v7, %s, s51 offen' % (O + 4 * c, O + 4 * c + 3, SRD_WS))
    k.I('v_lshrrev_b32 v7, 1, v5')
    k.I('v_mul_u32_u24 v7, 49152, v7')
    k.I('v_and_b32 v8, 1, v5')
    k.I('v_lshlrev_b32 v8, 3, v8')
    k.I('v_lshl_add_u32 v8, v4, 4, v8')
    k.I('v_lshl_add_u32 v7, v8, 4, v7')
    k.I('s_add_u32 s51, s50, %d' % WS_W2FB)
    for c in range(8):
        k.I('buffer_store_dwordx4 v[%d:%d], v7, %s, s51 offen offset:%d' % (O + 4 * c, O + 4 * c + 3, SRD_WS, 16 * c))
    k.label('L_prep_end')
    k.I('s_endpgm')
    return N1 + N2


def gen_k1():
    k = Kernel('k1_kernel')
    NX, NW = 128, 256
    k.I('s_cmp_ge_u32 s2, %d' % (NX + NW))
    k.I('s_cbranch_scc1 L_k1_end')
    k.stamp()
    prologue(k, {SRD_A: (0, S * D * 2), SRD_B: (8, S * 321 * 2), SRD_C: (16, S * 321 * 2)})
    lane_ids(k, 2, 3, 44)
    k.I('s_mov_b32 s46, 0x05040100')
    k.I('s_mov_b32 s47, 0x07060302')
    k.I('s_cmp_ge_u32 s2, %d' % NX)
    k.I('s_cbranch_scc1 L_k1_w')
    k.I('s_lshl_b32 s45, s2, 4')
    k.I('v_add_u32 v4, s45, v2')
    k.I('s_mov_b32 s48, 1280')
    k.I('v_mul_lo_u32 v5, v4, s48')
    k.I('v_lshl_add_u32 v5, v3, 6, v5')
    k.I('s_lshl_b32 s49, s44, 2')
    k.I('v_add_u32 v5, s49, v5')
    R = 16
    for mt in range(5):
        for r in range(4):
            k.I('buffer_load_dword v%d, v5, %s, 0 offen offset:%d' % (R + 4 * mt + r, SRD_A, 256 * mt + 16 * r))
    k.I('v_and_b32 v6, 63, v0')
    k.I('v_lshlrev_b32 v6, 4, v6')
    dma_table(k, table_off['G80F'], 15, 512, 44, 6, 50)
    k.wait_vm0()
    k.barrier()
    for q in range(15):
        k.I('ds_read_b128 a[%d:%d], v6 offset:%d' % (4 * q, 4 * q + 3, 512 + 1024 * q))
    k.I('v_lshlrev_b32 v7, 2, v4')
    k.I('v_lshl_add_u32 v7, v3, 17, v7')
    k.I('v_mov_b32 v8, v7')
    k.I('v_cmp_eq_u32 vcc, 0, v3')
    k.I('v_add_u32 v9, %d, v7' % (40 * 65536))
    k.I('v_cndmask_b32 v8, v7, v9, vcc')
    k.I('v_lshlrev_b32 v9, 3, v4')
    k.I('v_mov_b32 v12, 0')
    k.I('v_mov_b32 v13, 0')
    k.I('v_lshlrev_b32 v10, 6, v4')
    k.I('v_lshl_add_u32 v10, v3, 4, v10')
    X, T, PK = 40, 64, 104
    k.I('s_mul_i32 s54, s44, %d' % (5 * 131072))
    k.I('s_add_u32 s54, s54, %d' % WS_XP)
    for mt in range(5):
        pk = PK + 4 * mt
        k.I('v_perm_b32 v%d, v%d, v%d, s46' % (pk, R + 4 * mt + 1, R + 4 * mt))
        k.I('v_perm_b32 v%d, v%d, v%d, s46' % (pk + 1, R + 4 * mt + 3, R + 4 * mt + 2))
        k.I('v_perm_b32 v%d, v%d, v%d, s47' % (pk + 2, R + 4 * mt + 1, R + 4 * mt))
        k.I('v_perm_b32 v%d, v%d, v%d, s47' % (pk + 3, R + 4 * mt + 3, R + 4 * mt + 2))
        k.I('s_add_u32 s55, s54, %d' % (mt * 131072))
        k.I('buffer_store_dwordx4 v[%d:%d], v10, %s, s55 offen' % (pk, pk + 3, SRD_WS))
    for e in range(2):
        k.I('s_lshl_b32 s51, s44, 1')
        k.I('s_add_u32 s51, s51, %d' % e)
        k.I('s_lshl_b32 s52, s51, 13')
        k.I('s_add_u32 s52, s52, %d' % WS_P)
        for q in range(20):
            if e == 0:
                k.I('v_lshlrev_b32 v%d, 16, v%d' % (X + q, R + q))
            else:
                k.I('v_and_b32 v%d, 0xffff0000, v%d' % (X + q, R + q))
        fwd_epilogue(k, X, T, lambda mo, t: 'a[%d:%d]' % (4 * (3 * mo + t), 4 * (3 * mo + t) + 3),
                     7, 8, 9, 55, 52, statacc=12)
    k.I('s_lshl_b32 s51, s44, 7')
    k.I('v_lshl_add_u32 v14, v2, 3, s51')
    k.I('s_mov_b64 exec, 0xffff')
    k.I('ds_write_b64 v14, v[12:13]')
    k.I('s_mov_b64 exec, -1')
    k.barrier()
    k.I('s_cmp_eq_u32 s44, 0')
    k.I('s_cbranch_scc0 L_k1_xdone')
    k.I('v_lshlrev_b32 v14, 3, v2')
    for w in range(4):
        k.I('ds_read_b64 v[%d:%d], v14 offset:%d' % (16 + 2 * w, 17 + 2 * w, 128 * w))
    k.I('v_pk_add_f32 v[16:17], v[16:17], v[18:19]')
    k.I('v_pk_add_f32 v[20:21], v[20:21], v[22:23]')
    k.I('v_pk_add_f32 v[16:17], v[16:17], v[20:21]')
    k.I('v_mov_b32 v18, 0')
    k.I('v_mov_b32 v19, 0')
    k.I('s_mov_b32 s51, %d' % WS_ST)
    k.I('s_mov_b32 s52, %d' % WS_STB)
    k.I('s_mov_b64 exec, 0xffff')
    k.I('buffer_store_dwordx2 v[16:17], v9, %s, s51 offen' % SRD_WS)
    k.I('buffer_store_dwordx2 v[18:19], v9, %s, s52 offen' % SRD_WS)
    k.I('s_mov_b64 exec, -1')
    k.label('L_k1_xdone')
    k.stamp()
    k.wait_vm0()
    k.stamp_flush(0, 44, SRD_WS)
    k.nstamp = 1
    k.I('s_endpgm')
    k.label('L_k1_w')
    k.I('s_sub_u32 s45, s2, %d' % NX)
    k.I('s_lshr_b32 s48, s45, 5')
    k.I('s_and_b32 s49, s45, 31')
    k.I('s_lshl_b32 s49, s49, 2')
    k.I('s_add_u32 s49, s49, s44')
    k.I('s_lshr_b32 s50, s49, 6')
    k.I('s_and_b32 s51, s49, 63')
    k.I('s_and_b32 s52, s51, 15')
    k.I('s_lshr_b32 s53, s51, 4')
    k.I('s_lshl_b32 s54, s50, 4')
    k.I('s_add_u32 s54, s54, s52')
    k.I('s_lshl_b32 s55, s53, 9')
    k.I('s_add_u32 s54, s54, s55')
    k.I('v_and_b32 v4, 63, v0')
    k.I('s_mul_i32 s55, s48, 80')
    k.I('v_add_u32 v5, s55, v4')
    k.I('v_sub_u32 v6, 640, v5')
    k.I('s_cmp_lt_u32 s48, 4')
    k.I('s_cselect_b32 s56, 0, -1')
    k.I('s_cselect_b32 s57, 0, 0x80000000')
    k.I('v_mov_b32 v7, s56')
    k.I('v_cmp_eq_u32 vcc, 0, v7')
    k.I('v_cndmask_b32 v5, v6, v5, vcc')
    k.I('v_lshlrev_b32 v5, 1, v5')
    RE, IM, RE2, IM2 = 16, 32, 48, 64
    for mt in range(4):
        for r in range(4):
            q = 4 * mt + r
            k.I('s_add_u32 s58, s54, %d' % (32 * (4 * r + mt)))
            k.I('s_sub_u32 s59, 0, s58')
            k.I('s_and_b32 s59, s59, 2047')
            k.I('s_cmp_lt_u32 s48, 4')
            k.I('s_cselect_b32 s60, s58, s59')
            k.I('s_mul_i32 s60, s60, 642')
            k.I('buffer_load_ushort v%d, v5, %s, s60 offen' % (RE + q, SRD_B))
            k.I('buffer_load_ushort v%d, v5, %s, s60 offen' % (IM + q, SRD_C))
    k.I('s_and_b32 s61, s48, 3')
    k.I('s_cmp_eq_u32 s61, 0')
    k.I('s_cbranch_scc0 L_k1_w_nosym')
    for mt in range(4):
        for r in range(4):
            q = 4 * mt + r
            k.I('s_add_u32 s58, s54, %d' % (32 * (4 * r + mt)))
            k.I('s_sub_u32 s59, 0, s58')
            k.I('s_and_b32 s59, s59, 2047')
            k.I('s_cmp_lt_u32 s48, 4')
            k.I('s_cselect_b32 s60, s59, s58')
            k.I('s_mul_i32 s60, s60, 642')
            k.I('buffer_load_ushort v%d, v5, %s, s60 offen' % (RE2 + q, SRD_B))
            k.I('buffer_load_ushort v%d, v5, %s, s60 offen' % (IM2 + q, SRD_C))
    k.wait_vm0()
    k.I('s_mov_b64 exec, 1')
    for q in range(16):
        k.I('v_lshlrev_b32 v8, 16, v%d' % (RE + q))
        k.I('v_lshlrev_b32 v9, 16, v%d' % (RE2 + q))
        k.I('v_add_f32 v8, v8, v9')
        k.I('v_mul_f32 v8, 0.5, v8')
        k.I('v_lshlrev_b32 v10, 16, v%d' % (IM + q))
        k.I('v_lshlrev_b32 v9, 16, v%d' % (IM2 + q))
        k.I('v_sub_f32 v10, v10, v9')
        k.I('v_mul_f32 v10, 0.5, v10')
        k.I('v_cvt_pk_bf16_f32 v8, v8, v10')
        k.I('v_and_b32 v%d, 0xffff, v8' % (RE + q))
        k.I('v_lshrrev_b32 v%d, 16, v8' % (IM + q))
    k.I('s_mov_b64 exec, -1')
    k.label('L_k1_w_nosym')
    k.wait_vm0()
    for q in range(16):
        k.I('v_lshl_or_b32 v%d, v%d, 16, v%d' % (RE + q, IM + q, RE + q))
        k.I('v_xor_b32 v%d, s57, v%d' % (RE + q, RE + q))
    k.I('v_lshlrev_b32 v6, 16, v4')
    k.I('s_lshl_b32 s58, s48, 13')
    k.I('s_lshl_b32 s59, s49, 6')
    k.I('s_add_u32 s58, s58, s59')
    k.I('s_add_u32 s58, s58, %d' % WS_WC)
    k.I('v_cmp_gt_u32 vcc, 41, v4')
    k.I('s_and_saveexec_b64 s[62:63], vcc')
    for mt in range(4):
        k.I('buffer_store_dwordx4 v[%d:%d], v6, %s, s58 offen offset:%d' % (RE + 4 * mt, RE + 4 * mt + 3, SRD_WS, 16 * mt))
    k.stamp()
    k.wait_vm0()
    k.stamp_flush(0, 44, SRD_WS)
    k.nstamp = 1
    k.I('s_endpgm')

    k.label('L_k1_end')
    k.I('s_endpgm')
    return k, (NX + NW), 512 + 16 * 1024


HEADER = '''; Kernarg layout for this problem (72 bytes, ptrs only, base s[0:1]):
'''


def build(kernels, launches):
    out = [HEADER.rstrip('\n')]
    for name, grid, lds in launches:
        out.append('; @launch kernel=%s grid=(%d,1,1) block=(256,1,1) lds=%d' % (name, grid, lds))
    out.append('.amdgcn_target "amdgcn-amd-amdhsa--gfx950"')
    out.append('.text')
    for k in kernels:
        out.append('.globl %s' % k.name)
        out.append('.p2align 8')
        out.append('.type %s,@function' % k.name)
        out.append('%s:' % k.name)
        out += k.out
    out.append('.section .rodata,"a"')
    for k in kernels:
        if getattr(k, 'main', None) is not None:
            k.maxv, k.maxa, k.maxs = k.main.maxv, k.main.maxa, k.main.maxs
        nv = k.maxv + 1
        acc_off = (nv + 3) // 4 * 4
        nfv = acc_off + (k.maxa + 1) if k.maxa >= 0 else nv
        out.append('.p2align 6')
        out.append('.amdhsa_kernel %s' % k.name)
        out.append('  .amdhsa_next_free_vgpr %d' % nfv)
        out.append('  .amdhsa_next_free_sgpr %d' % max(k.maxs + 1, 16))
        out.append('  .amdhsa_accum_offset %d' % acc_off)
        out.append('  .amdhsa_group_segment_fixed_size 0')
        out.append('  .amdhsa_kernarg_size 72')
        out.append('  .amdhsa_user_sgpr_count 2')
        out.append('  .amdhsa_user_sgpr_kernarg_segment_ptr 1')
        out.append('  .amdhsa_system_sgpr_workgroup_id_x 1')
        out.append('  .amdhsa_float_denorm_mode_32 3')
        out.append('  .amdhsa_float_denorm_mode_16_64 3')
        out.append('.end_amdhsa_kernel')
    out.append('.p2align 8')
    out.append('tab_base:')
    for n, w in tables.items():
        out += emit_table('tab_' + n, w)
    return '\n'.join(out) + '\n'


make_tables()
TAB_BYTES = layout_tables()

if __name__ == '__main__':
    if len(sys.argv) > 2 and sys.argv[2] in ('diag', 'real'):
        Kernel.DIAG = True
        Kernel.REAL = sys.argv[2] == 'real'
    ks, launches = [], []
    k, g, l = gen_k1()
    ks.append(k)
    launches.append((k.name, g, l))
    try:
        from gen2 import more_kernels
        more_kernels(ks, launches)
    except ImportError:
        pass
    path = sys.argv[1] if len(sys.argv) > 1 else 'interleave_layers__spectral_gfnet__dense_activation_silu__prompt.s'
    open(path, 'w').write(build(ks, launches))
    print('wrote', path)
```

```python
import sys
import numpy as np
from asmlib import Kernel, pack_bf16, f32bits, emit_table

S, D, F = 2048, 640, 1536
PI = np.pi

WS_W1F = 0x0
WS_W2FA = 0x200000
WS_W2FB = 0x400000
WS_WC = 0x600000
WS_P = 0x900000
WS_ST = 0xC00000
WS_STB = 0xC10000
WS_CNT = 0xC20000
WS_ZP = 0xD00000
WS_XP = 0x1000000
WS_X1P = 0x1300000
WS_X1N = 0x1600000
WS_H = 0x1900000
WS_HB = 0x2000000
WS_SIZE = 0x10000000

SRD_WS = 's[8:11]'
SRD_TAB = 's[12:15]'
SRD_A = 's[16:19]'
SRD_B = 's[20:23]'
SRD_C = 's[24:27]'
SRD_OUT = 's[28:31]'

tables = {}
table_off = {}


def add_table(name, words):
    tables[name] = np.asarray(words, dtype=np.uint32).reshape(-1)


def layout_tables():
    off = 0
    for n, w in tables.items():
        table_off[n] = off
        off += (len(w) * 4 + 255) // 256 * 256
    return off


def make_tables():
    T = np.zeros((5, 3, 64, 8))
    for mo in range(5):
        for t in range(3):
            for l in range(64):
                i, g = l % 16, l // 16
                n = 16 * mo + i
                k1, c = n // 2, n % 2
                for e in range(8):
                    mt, r = 2 * t + e // 4, e % 4
                    if mt >= 5:
                        continue
                    d1 = 16 * mt + 4 * g + r
                    if k1 == 0:
                        v = np.cos(PI * d1) if c == 0 else 0.0
                    else:
                        v = np.cos(2 * PI * k1 * d1 / 80) if c == 0 else -np.sin(2 * PI * k1 * d1 / 80)
                    T[mo, t, l, e] = v
    add_table('G80F', pack_bf16(T))
    T = np.zeros((41 * 8, 2, 8, 2))
    for k1 in range(41):
        for k2 in range(8):
            k = k1 + 80 * k2
            for d2 in range(8):
                th = 2 * PI * ((k * d2) % 640) / 640
                cr, ci = np.cos(th), -np.sin(th)
                if k1 == 0:
                    T[k1 * 8 + k2, 0, d2] = (cr, cr)
                    T[k1 * 8 + k2, 1, d2] = (ci, ci)
                else:
                    T[k1 * 8 + k2, 0, d2] = (cr, -ci)
                    T[k1 * 8 + k2, 1, d2] = (ci, cr)
    add_table('TZ', pack_bf16(T))
    T = np.zeros((2, 3, 64, 8))
    for tile in range(2):
        for l in range(64):
            i, g = l % 16, l // 16
            for e in range(8):
                a, b = 16 * tile + i, 8 * g + e
                th = 2 * PI * ((a * b) % 32) / 32
                T[tile, 0, l, e] = np.cos(th)
                T[tile, 1, l, e] = -np.sin(th)
                T[tile, 2, l, e] = np.sin(th)
    add_table('F32', pack_bf16(T))
    T = np.zeros((3, 4, 2, 64, 8))
    for mt in range(4):
        for t in range(2):
            for l in range(64):
                i, g = l % 16, l // 16
                for e in range(8):
                    a, b = 4 * i + mt, 16 * g + 4 * (e % 4) + 2 * t + e // 4
                    th = 2 * PI * ((a * b) % 64) / 64
                    T[0, mt, t, l, e] = np.cos(th)
                    T[1, mt, t, l, e] = -np.sin(th)
                    T[2, mt, t, l, e] = np.sin(th)
    add_table('F64', pack_bf16(T))
    T = np.zeros((2, 2, 4, 64, 4))
    for nt in range(2):
        for m in range(4):
            for l in range(64):
                j, g = l % 16, l // 16
                for r in range(4):
                    s2, k1p = 16 * g + 4 * r + m, 16 * nt + j
                    th = 2 * PI * (s2 * k1p) / 2048
                    T[nt, 0, m, l, r] = np.cos(th)
                    T[nt, 1, m, l, r] = -np.sin(th)
    add_table('TW', f32bits(T))
    T = np.zeros((22, 64, 2, 4))
    for k1 in range(41):
        for l in range(64):
            i, g = l % 16, l // 16
            d2, cp = i // 2, i % 2
            for e in range(4):
                k2, c = 2 * g + e // 2, e % 2
                ph = 2 * PI * (((k1 + 80 * k2) * d2) % 640) / 640
                if cp == 0:
                    v = np.cos(ph) if c == 0 else -np.sin(ph)
                else:
                    v = np.sin(ph) if c == 0 else np.cos(ph)
                T[k1 // 2, l, k1 % 2, e] = v
    add_table('TA', pack_bf16(T))
    T = np.zeros((5, 3, 64, 8))
    for mt in range(5):
        for t in range(3):
            for l in range(64):
                i, g = l % 16, l // 16
                d1 = 16 * mt + i
                for e in range(8):
                    k1, cp = 16 * t + 4 * g + e // 2, e % 2
                    if k1 > 40:
                        continue
                    th = 2 * PI * ((k1 * d1) % 80) / 80
                    if k1 in (0, 40):
                        v = np.cos(th) if cp == 0 else 0.0
                    else:
                        v = 2 * np.cos(th) if cp == 0 else -2 * np.sin(th)
                    T[mt, t, l, e] = v
    add_table('G80I', pack_bf16(T))


def prologue(k, need):
    k.I('s_load_dwordx2 s[4:5], s[0:1], 64')
    tmp = 32
    items = list(need.items())
    for n, (srd, (ko, nb)) in enumerate(items):
        k.I('s_load_dwordx2 s[%d:%d], s[0:1], %d' % (tmp + 2 * n, tmp + 2 * n + 1, ko))
    k.I('s_getpc_b64 s[6:7]')
    k.raw('    s_add_u32 s6, s6, tab_base@rel32@lo+4')
    k.raw('    s_addc_u32 s7, s7, tab_base@rel32@hi+12')
    k.I('s_mov_b32 s12, s6')
    k.I('s_and_b32 s13, s7, 0xffff')
    k.I('s_mov_b32 s14, %d' % TAB_BYTES)
    k.I('s_mov_b32 s15, 0x20000')
    k.wait_lgkm0()
    k.I('s_mov_b32 s8, s4')
    k.I('s_and_b32 s9, s5, 0xffff')
    k.I('s_mov_b32 s10, 0x%x' % WS_SIZE)
    k.I('s_mov_b32 s11, 0x20000')
    for n, (srd, (ko, nb)) in enumerate(items):
        b = int(srd[2:srd.index(':')])
        k.I('s_mov_b32 s%d, s%d' % (b, tmp + 2 * n))
        k.I('s_and_b32 s%d, s%d, 0xffff' % (b + 1, tmp + 2 * n + 1))
        k.I('s_mov_b32 s%d, %d' % (b + 2, nb))
        k.I('s_mov_b32 s%d, 0x20000' % (b + 3))


def xsum_g(k, reg, tmp):
    k.I('v_mov_b32 v%d, v%d' % (tmp, reg))
    k.I('v_permlane32_swap_b32 v%d, v%d' % (reg, tmp))
    k.I('v_add_f32 v%d, v%d, v%d' % (reg, reg, tmp))
    k.I('v_mov_b32 v%d, v%d' % (tmp, reg))
    k.I('v_permlane16_swap_b32 v%d, v%d' % (reg, tmp))
    k.I('v_add_f32 v%d, v%d, v%d' % (reg, reg, tmp))


def fwd_epilogue(k, X, T, G80, vP, vP0, vST, sbase, d2_soff_sgpr, statacc=None):
    sm, t1, mean, m2 = T, T + 1, T + 2, T + 3
    acc = T + 4
    B = T + 8
    Dm = T + 20
    k.I('v_pk_add_f32 v[%d:%d], v[%d:%d], v[%d:%d]' % (acc, acc + 1, X, X + 1, X + 2, X + 3))
    for q in range(2, 10):
        k.I('v_pk_add_f32 v[%d:%d], v[%d:%d], v[%d:%d]' % (acc, acc + 1, acc, acc + 1, X + 2 * q, X + 2 * q + 1))
    k.I('v_add_f32 v%d, v%d, v%d' % (sm, acc, acc + 1))
    xsum_g(k, sm, t1)
    k.I('v_mul_f32 v%d, 0x%x, v%d' % (mean, f32bits(1.0 / 80), sm))
    for q in range(10):
        k.I('v_pk_add_f32 v[%d:%d], v[%d:%d], v[%d:%d] op_sel_hi:[1,0] neg_lo:[0,1] neg_hi:[0,1]'
            % (X + 2 * q, X + 2 * q + 1, X + 2 * q, X + 2 * q + 1, mean, mean + 1))
    k.I('v_pk_mul_f32 v[%d:%d], v[%d:%d], v[%d:%d]' % (acc, acc + 1, X, X + 1, X, X + 1))
    for q in range(1, 10):
        k.I('v_pk_fma_f32 v[%d:%d], v[%d:%d], v[%d:%d], v[%d:%d]'
            % (acc, acc + 1, X + 2 * q, X + 2 * q + 1, X + 2 * q, X + 2 * q + 1, acc, acc + 1))
    k.I('v_add_f32 v%d, v%d, v%d' % (m2, acc, acc + 1))
    for q in range(10):
        k.I('v_cvt_pk_bf16_f32 v%d, v%d, v%d' % (B + q, X + 2 * q, X + 2 * q + 1))
    k.I('v_mov_b32 v%d, 0' % (B + 10))
    k.I('v_mov_b32 v%d, 0' % (B + 11))
    xsum_g(k, m2, t1)
    for mo in range(5):
        for t in range(3):
            c = '0' if t == 0 else 'v[%d:%d]' % (Dm + 4 * mo, Dm + 4 * mo + 3)
            k.I('v_mfma_f32_16x16x32_bf16 v[%d:%d], %s, v[%d:%d], %s'
                % (Dm + 4 * mo, Dm + 4 * mo + 3, G80(mo, t), B + 4 * t, B + 4 * t + 3, c))
    hi, lo = acc, acc + 1
    k.I('v_cvt_pk_bf16_f32 v%d, v%d, v%d' % (hi, sm, sm))
    k.I('v_and_b32 v%d, 0xffff0000, v%d' % (hi, hi))
    k.I('v_sub_f32 v%d, v%d, v%d' % (lo, sm, hi))
    k.I('v_cvt_pk_bf16_f32 v%d, v%d, v%d' % (hi, hi, lo))
    k.I('v_fmac_f32 v%d, v%d, v%d' % (m2, sm, mean))
    k.I('s_mov_b64 exec, 0xffff')
    k.I('buffer_store_dword v%d, v%d, %s, s%d offen' % (hi, vP, SRD_WS, d2_soff_sgpr))
    if statacc is None:
        k.I('buffer_atomic_add_f32 v%d, v%d, %s, s%d offen' % (sm, vST, SRD_WS, d2_soff_sgpr + 1))
        k.I('buffer_atomic_add_f32 v%d, v%d, %s, s%d offen offset:4' % (m2, vST, SRD_WS, d2_soff_sgpr + 1))
    k.I('s_mov_b64 exec, -1')
    if statacc is not None:
        k.I('v_add_f32 v%d, v%d, v%d' % (statacc, statacc, sm))
        k.I('v_add_f32 v%d, v%d, v%d' % (statacc + 1, statacc + 1, m2))
    for mo in range(5):
        for h in range(2):
            o = B + 2 * mo + h
            o = X + 2 * mo + h
            k.I('v_cvt_pk_bf16_f32 v%d, v%d, v%d' % (o, Dm + 4 * mo + 2 * h, Dm + 4 * mo + 2 * h + 1))
            k.I('s_add_u32 s%d, s%d, %d' % (sbase, d2_soff_sgpr, (8 * mo + h) * 65536))
            k.I('buffer_store_dword v%d, v%d, %s, s%d offen'
                % (o, vP0 if (mo == 0 and h == 0) else vP, SRD_WS, sbase))


def dma_table(k, tab_off, nchunks, lds_base, wave_s, vlane16, st):
    k.I('s_lshl_b32 s%d, s%d, 10' % (st, wave_s))
    k.I('s_add_u32 m0, s%d, %d' % (st, lds_base))
    k.I('s_add_u32 s%d, s%d, %d' % (st, st, tab_off))
    for i in range((nchunks + 3) // 4):
        if i:
            k.I('s_add_u32 m0, m0, 4096')
            k.I('s_add_u32 s%d, s%d, 4096' % (st, st))
        k.I('buffer_load_dwordx4 v%d, %s, s%d offen lds' % (vlane16, SRD_TAB, st))


def stub_kernel(name, main, sreg, value, target):
    k = Kernel(name)
    k.I('s_mov_b32 s%d, %d' % (sreg, value))
    k.I('s_branch %s' % target)
    k.main = main
    return k


def lane_ids(k, vj, vg, vw_s):
    k.I('v_and_b32 v%d, 15, v0' % vj)
    k.I('v_bfe_u32 v%d, v0, 4, 2' % vg)
    k.I('v_lshrrev_b32 v1, 6, v0')
    k.I('v_readfirstlane_b32 s%d, v1' % vw_s)


def gen_wprep(k, base):
    N1, N2 = 30, 30
    k.I('s_cmp_ge_u32 s2, %d' % (base + N1 + N2))
    k.I('s_cbranch_scc1 L_prep_end')
    prologue(k, {SRD_OUT: (32, D * F * 2), 's[40:43]': (40, F * D * 2)})
    SRD_W1, SRD_W2 = SRD_OUT, 's[40:43]'
    lane_ids(k, 2, 3, 44)
    k.I('v_and_b32 v4, 63, v0')
    k.I('v_lshlrev_b32 v8, 4, v4')
    k.I('s_mov_b32 s46, 0x05040100')
    k.I('s_mov_b32 s47, 0x07060302')
    k.I('s_lshl_b32 s59, s44, 14')
    k.I('v_lshrrev_b32 v9, 1, v2')
    k.I('v_lshlrev_b32 v9, 10, v9')
    k.I('v_and_b32 v10, 1, v2')
    k.I('v_lshl_add_u32 v9, v10, 7, v9')
    k.I('v_lshl_add_u32 v9, v3, 8, v9')
    k.I('v_add_u32 v9, s59, v9')
    k.I('v_add_u32 v10, s59, v8')

    def transpose8(R, O):
        for c in range(8):
            for kk in range(4):
                k.I('v_perm_b32 v%d, v%d, v%d, %s' % (O + 4 * c + kk, R + 4 * (2 * kk + 1) + c // 2,
                                                      R + 4 * (2 * kk) + c // 2, 's47' if c % 2 else 's46'))

    def via_lds(O, i, T):
        for c in range(8):
            k.I('ds_write_b128 v9, v[%d:%d] offset:%d' % (O + 4 * c, O + 4 * c + 3, 8192 * i + 16 * c))
        for q in range(8):
            k.I('ds_read_b128 v[%d:%d], v10 offset:%d' % (T + 4 * q, T + 4 * q + 3, 8192 * i + 1024 * q))
    k.I('s_cmp_ge_u32 s2, %d' % (base + N1))
    k.I('s_cbranch_scc1 L_prep_w2')
    k.I('s_sub_u32 s45, s2, %d' % base)
    k.I('s_lshl_b32 s45, s45, 2')
    k.I('s_add_u32 s45, s45, s44')
    k.I('s_lshl_b32 s45, s45, 1')
    k.I('v_mul_u32_u24 v5, %d, v3' % (32 * 3072))
    k.I('v_lshl_add_u32 v5, v2, 4, v5')
    for i in range(2):
        R = 16 + 32 * i
        k.I('s_add_u32 s56, s45, %d' % i)
        k.I('s_mul_i32 s57, s56, 43691')
        k.I('s_lshr_b32 s%d, s57, 19' % (60 + 2 * i))
        k.I('s_mul_i32 s58, s%d, 12' % (60 + 2 * i))
        k.I('s_sub_u32 s%d, s56, s58' % (61 + 2 * i))
        for e in range(8):
            k.I('s_lshl_b32 s50, s%d, 1' % (60 + 2 * i))
            k.I('s_add_u32 s50, s50, %d' % (e // 4))
            k.I('s_mul_i32 s51, s50, 13')
            k.I('s_lshr_b32 s51, s51, 6')
            k.I('s_mul_i32 s52, s51, 5')
            k.I('s_sub_u32 s52, s50, s52')
            k.I('s_lshl_b32 s52, s52, 7')
            k.I('s_add_u32 s52, s52, s51')
            k.I('s_add_u32 s52, s52, %d' % (8 * (e % 4)))
            k.I('s_mul_i32 s52, s52, 3072')
            k.I('s_lshl_b32 s53, s%d, 8' % (61 + 2 * i))
            k.I('s_add_u32 s52, s52, s53')
            k.I('buffer_load_dwordx4 v[%d:%d], v5, %s, s52 offen' % (R + 4 * e, R + 4 * e + 3, SRD_W1))
    for i in range(2):
        R, O, T = 16 + 32 * i, 80 + 32 * i, 144 + 32 * i
        transpose8(R, O)
        via_lds(O, i, T)
        k.I('s_mul_i32 s50, s%d, %d' % (61 + 2 * i, 8 * 20480))
        k.I('s_lshl_b32 s51, s%d, 10' % (60 + 2 * i))
        k.I('s_add_u32 s50, s50, s51')
        for q in range(8):
            k.I('s_add_u32 s51, s50, %d' % (WS_W1F + q * 20480))
            k.I('buffer_store_dwordx4 v[%d:%d], v8, %s, s51 offen' % (T + 4 * q, T + 4 * q + 3, SRD_WS))
    k.I('s_endpgm')
    k.label('L_prep_w2')
    k.I('s_sub_u32 s45, s2, %d' % (base + N1))
    k.I('s_lshl_b32 s45, s45, 2')
    k.I('s_add_u32 s45, s45, s44')
    k.I('s_lshl_b32 s45, s45, 1')
    k.I('v_mul_u32_u24 v5, 5120, v3')
    k.I('v_lshl_add_u32 v5, v2, 4, v5')
    for i in range(2):
        R = 16 + 32 * i
        k.I('s_add_u32 s56, s45, %d' % i)
        k.I('s_mul_i32 s57, s56, 52429')
        k.I('s_lshr_b32 s%d, s57, 18' % (60 + 2 * i))
        k.I('s_mul_i32 s58, s%d, 5' % (60 + 2 * i))
        k.I('s_sub_u32 s%d, s56, s58' % (61 + 2 * i))
        for e in range(8):
            k.I('s_lshl_b32 s50, s%d, 5' % (60 + 2 * i))
            k.I('s_add_u32 s50, s50, %d' % (16 * (e // 4) + e % 4))
            k.I('s_mul_i32 s50, s50, 1280')
            k.I('s_lshl_b32 s53, s%d, 8' % (61 + 2 * i))
            k.I('s_add_u32 s50, s50, s53')
            k.I('buffer_load_dwordx4 v[%d:%d], v5, %s, s50 offen' % (R + 4 * e, R + 4 * e + 3, SRD_W2))
    for i in range(2):
        R, O, T = 16 + 32 * i, 80 + 32 * i, 144 + 32 * i
        transpose8(R, O)
        via_lds(O, i, T)
        k.I('s_mul_i32 s50, s%d, 49152' % (61 + 2 * i))
        k.I('s_lshl_b32 s51, s%d, 10' % (60 + 2 * i))
        k.I('s_add_u32 s50, s50, s51')
        for c in range(8):
            k.I('s_add_u32 s52, s50, %d' % (WS_W2FA + c * 245760))
            k.I('buffer_store_dwordx4 v[%d:%d], v8, %s, s52 offen' % (O + 4 * c, O + 4 * c + 3, SRD_WS))
        k.I('s_mul_i32 s50, s%d, %d' % (61 + 2 * i, 8 * 49152))
        k.I('s_add_u32 s50, s50, s51')
        for q in range(8):
            k.I('s_add_u32 s52, s50, %d' % (WS_W2FB + q * 49152))
            k.I('buffer_store_dwordx4 v[%d:%d], v8, %s, s52 offen' % (T + 4 * q, T + 4 * q + 3, SRD_WS))
    k.label('L_prep_end')
    k.I('s_endpgm')
    return N1 + N2


def gen_k1():
    k = Kernel('k1_kernel')
    NX, NW = 128, 256
    k.I('s_cmp_ge_u32 s2, %d' % (NX + NW))
    k.I('s_cbranch_scc1 L_k1_end')
    k.stamp()
    prologue(k, {SRD_A: (0, S * D * 2), SRD_B: (8, S * 321 * 2), SRD_C: (16, S * 321 * 2)})
    lane_ids(k, 2, 3, 44)
    k.I('s_mov_b32 s46, 0x05040100')
    k.I('s_mov_b32 s47, 0x07060302')
    k.I('s_cmp_ge_u32 s2, %d' % NX)
    k.I('s_cbranch_scc1 L_k1_w')
    k.I('s_lshl_b32 s45, s2, 4')
    k.I('v_add_u32 v4, s45, v2')
    XL = 512 + 16 * 1024
    R = 16
    k.I('s_mul_i32 s48, s2, 20480')
    k.I('v_lshlrev_b32 v5, 4, v0')
    for i in range(5):
        k.I('s_add_u32 s49, s48, %d' % (4096 * i))
        k.I('buffer_load_dwordx4 v[%d:%d], v5, %s, s49 offen' % (40 + 4 * i, 43 + 4 * i, SRD_A))
    k.I('v_and_b32 v6, 63, v0')
    k.I('v_lshlrev_b32 v6, 4, v6')
    dma_table(k, table_off['G80F'], 15, 512, 44, 6, 50)
    k.I('s_mov_b32 s48, 52429')
    for i in range(5):
        k.I('v_add_u32 v7, %d, v0' % (256 * i))
        k.I('v_mul_lo_u32 v8, v7, s48')
        k.I('v_lshrrev_b32 v8, 22, v8')
        k.I('v_lshlrev_b32 v7, 4, v7')
        k.I('v_lshl_add_u32 v7, v8, 4, v7')
        k.I('ds_write_b128 v7, v[%d:%d] offset:%d' % (40 + 4 * i, 43 + 4 * i, XL))
    k.wait_vm0()
    k.barrier()
    k.I('v_mul_u32_u24 v5, 1296, v2')
    k.I('v_lshl_add_u32 v5, v3, 6, v5')
    k.I('s_lshl_b32 s49, s44, 2')
    k.I('v_add_u32 v5, s49, v5')
    for mt in range(5):
        for r in range(4):
            k.I('ds_read_b32 v%d, v5 offset:%d' % (R + 4 * mt + r, XL + 256 * mt + 16 * r))
    for q in range(15):
        k.I('ds_read_b128 a[%d:%d], v6 offset:%d' % (4 * q, 4 * q + 3, 512 + 1024 * q))
    k.I('v_lshlrev_b32 v7, 2, v4')
    k.I('v_lshl_add_u32 v7, v3, 17, v7')
    k.I('v_mov_b32 v8, v7')
    k.I('v_cmp_eq_u32 vcc, 0, v3')
    k.I('v_add_u32 v9, %d, v7' % (40 * 65536))
    k.I('v_cndmask_b32 v8, v7, v9, vcc')
    k.I('v_lshlrev_b32 v9, 3, v4')
    k.I('v_mov_b32 v12, 0')
    k.I('v_mov_b32 v13, 0')
    k.I('v_lshlrev_b32 v10, 6, v4')
    k.I('v_lshl_add_u32 v10, v3, 4, v10')
    X, T, PK = 40, 64, 104
    k.I('s_mul_i32 s54, s44, %d' % (5 * 131072))
    k.I('s_add_u32 s54, s54, %d' % WS_XP)
    for mt in range(5):
        pk = PK + 4 * mt
        k.I('v_perm_b32 v%d, v%d, v%d, s46' % (pk, R + 4 * mt + 1, R + 4 * mt))
        k.I('v_perm_b32 v%d, v%d, v%d, s46' % (pk + 1, R + 4 * mt + 3, R + 4 * mt + 2))
        k.I('v_perm_b32 v%d, v%d, v%d, s47' % (pk + 2, R + 4 * mt + 1, R + 4 * mt))
        k.I('v_perm_b32 v%d, v%d, v%d, s47' % (pk + 3, R + 4 * mt + 3, R + 4 * mt + 2))
        k.I('s_add_u32 s55, s54, %d' % (mt * 131072))
        k.I('buffer_store_dwordx4 v[%d:%d], v10, %s, s55 offen' % (pk, pk + 3, SRD_WS))
    for e in range(2):
        k.I('s_lshl_b32 s51, s44, 1')
        k.I('s_add_u32 s51, s51, %d' % e)
        k.I('s_lshl_b32 s52, s51, 13')
        k.I('s_add_u32 s52, s52, %d' % WS_P)
        for q in range(20):
            if e == 0:
                k.I('v_lshlrev_b32 v%d, 16, v%d' % (X + q, R + q))
            else:
                k.I('v_and_b32 v%d, 0xffff0000, v%d' % (X + q, R + q))
        fwd_epilogue(k, X, T, lambda mo, t: 'a[%d:%d]' % (4 * (3 * mo + t), 4 * (3 * mo + t) + 3),
                     7, 8, 9, 55, 52, statacc=12)
    k.I('s_lshl_b32 s51, s44, 7')
    k.I('v_lshl_add_u32 v14, v2, 3, s51')
    k.I('s_mov_b64 exec, 0xffff')
    k.I('ds_write_b64 v14, v[12:13]')
    k.I('s_mov_b64 exec, -1')
    k.barrier()
    k.I('s_cmp_eq_u32 s44, 0')
    k.I('s_cbranch_scc0 L_k1_xdone')
    k.I('v_lshlrev_b32 v14, 3, v2')
    for w in range(4):
        k.I('ds_read_b64 v[%d:%d], v14 offset:%d' % (16 + 2 * w, 17 + 2 * w, 128 * w))
    k.I('v_pk_add_f32 v[16:17], v[16:17], v[18:19]')
    k.I('v_pk_add_f32 v[20:21], v[20:21], v[22:23]')
    k.I('v_pk_add_f32 v[16:17], v[16:17], v[20:21]')
    k.I('v_mov_b32 v18, 0')
    k.I('v_mov_b32 v19, 0')
    k.I('s_mov_b32 s51, %d' % WS_ST)
    k.I('s_mov_b32 s52, %d' % WS_STB)
    k.I('s_mov_b64 exec, 0xffff')
    k.I('buffer_store_dwordx2 v[16:17], v9, %s, s51 offen' % SRD_WS)
    k.I('buffer_store_dwordx2 v[18:19], v9, %s, s52 offen' % SRD_WS)
    k.I('s_mov_b64 exec, -1')
    k.label('L_k1_xdone')
    k.stamp()
    k.wait_vm0()
    k.stamp_flush(0, 44, SRD_WS)
    k.nstamp = 1
    k.I('s_endpgm')
    k.label('L_k1_w')
    k.I('s_sub_u32 s45, s2, %d' % NX)
    k.I('s_lshr_b32 s48, s45, 5')
    k.I('s_and_b32 s49, s45, 31')
    k.I('s_lshl_b32 s49, s49, 2')
    k.I('s_add_u32 s49, s49, s44')
    k.I('s_lshr_b32 s50, s49, 6')
    k.I('s_and_b32 s51, s49, 63')
    k.I('s_and_b32 s52, s51, 15')
    k.I('s_lshr_b32 s53, s51, 4')
    k.I('s_lshl_b32 s54, s50, 4')
    k.I('s_add_u32 s54, s54, s52')
    k.I('s_lshl_b32 s55, s53, 9')
    k.I('s_add_u32 s54, s54, s55')
    k.I('v_and_b32 v4, 63, v0')
    k.I('s_mul_i32 s55, s48, 80')
    k.I('v_add_u32 v5, s55, v4')
    k.I('v_sub_u32 v6, 640, v5')
    k.I('s_cmp_lt_u32 s48, 4')
    k.I('s_cselect_b32 s56, 0, -1')
    k.I('s_cselect_b32 s57, 0, 0x80000000')
    k.I('v_mov_b32 v7, s56')
    k.I('v_cmp_eq_u32 vcc, 0, v7')
    k.I('v_cndmask_b32 v5, v6, v5, vcc')
    k.I('v_lshlrev_b32 v5, 1, v5')
    RE, IM, RE2, IM2 = 16, 32, 48, 64
    for mt in range(4):
        for r in range(4):
            q = 4 * mt + r
            k.I('s_add_u32 s58, s54, %d' % (32 * (4 * r + mt)))
            k.I('s_sub_u32 s59, 0, s58')
            k.I('s_and_b32 s59, s59, 2047')
            k.I('s_cmp_lt_u32 s48, 4')
            k.I('s_cselect_b32 s60, s58, s59')
            k.I('s_mul_i32 s60, s60, 642')
            k.I('buffer_load_ushort v%d, v5, %s, s60 offen' % (RE + q, SRD_B))
            k.I('buffer_load_ushort v%d, v5, %s, s60 offen' % (IM + q, SRD_C))
    k.I('s_and_b32 s61, s48, 3')
    k.I('s_cmp_eq_u32 s61, 0')
    k.I('s_cbranch_scc0 L_k1_w_nosym')
    for mt in range(4):
        for r in range(4):
            q = 4 * mt + r
            k.I('s_add_u32 s58, s54, %d' % (32 * (4 * r + mt)))
            k.I('s_sub_u32 s59, 0, s58')
            k.I('s_and_b32 s59, s59, 2047')
            k.I('s_cmp_lt_u32 s48, 4')
            k.I('s_cselect_b32 s60, s59, s58')
            k.I('s_mul_i32 s60, s60, 642')
            k.I('buffer_load_ushort v%d, v5, %s, s60 offen' % (RE2 + q, SRD_B))
            k.I('buffer_load_ushort v%d, v5, %s, s60 offen' % (IM2 + q, SRD_C))
    k.wait_vm0()
    k.I('s_mov_b64 exec, 1')
    for q in range(16):
        k.I('v_lshlrev_b32 v8, 16, v%d' % (RE + q))
        k.I('v_lshlrev_b32 v9, 16, v%d' % (RE2 + q))
        k.I('v_add_f32 v8, v8, v9')
        k.I('v_mul_f32 v8, 0.5, v8')
        k.I('v_lshlrev_b32 v10, 16, v%d' % (IM + q))
        k.I('v_lshlrev_b32 v9, 16, v%d' % (IM2 + q))
        k.I('v_sub_f32 v10, v10, v9')
        k.I('v_mul_f32 v10, 0.5, v10')
        k.I('v_cvt_pk_bf16_f32 v8, v8, v10')
        k.I('v_and_b32 v%d, 0xffff, v8' % (RE + q))
        k.I('v_lshrrev_b32 v%d, 16, v8' % (IM + q))
    k.I('s_mov_b64 exec, -1')
    k.label('L_k1_w_nosym')
    k.wait_vm0()
    for q in range(16):
        k.I('v_lshl_or_b32 v%d, v%d, 16, v%d' % (RE + q, IM + q, RE + q))
        k.I('v_xor_b32 v%d, s57, v%d' % (RE + q, RE + q))
    k.I('v_lshlrev_b32 v6, 16, v4')
    k.I('s_lshl_b32 s58, s48, 13')
    k.I('s_lshl_b32 s59, s49, 6')
    k.I('s_add_u32 s58, s58, s59')
    k.I('s_add_u32 s58, s58, %d' % WS_WC)
    k.I('v_cmp_gt_u32 vcc, 41, v4')
    k.I('s_and_saveexec_b64 s[62:63], vcc')
    for mt in range(4):
        k.I('buffer_store_dwordx4 v[%d:%d], v6, %s, s58 offen offset:%d' % (RE + 4 * mt, RE + 4 * mt + 3, SRD_WS, 16 * mt))
    k.stamp()
    k.wait_vm0()
    k.stamp_flush(0, 44, SRD_WS)
    k.nstamp = 1
    k.I('s_endpgm')

    k.label('L_k1_end')
    k.I('s_endpgm')
    return k, (NX + NW), 512 + 16 * 1024 + 16 * 1296


HEADER = '''; Kernarg layout for this problem (72 bytes, ptrs only, base s[0:1]):
'''


def build(kernels, launches):
    out = [HEADER.rstrip('\n')]
    for name, grid, lds in launches:
        out.append('; @launch kernel=%s grid=(%d,1,1) block=(256,1,1) lds=%d' % (name, grid, lds))
    out.append('.amdgcn_target "amdgcn-amd-amdhsa--gfx950"')
    out.append('.text')
    for k in kernels:
        out.append('.globl %s' % k.name)
        out.append('.p2align 8')
        out.append('.type %s,@function' % k.name)
        out.append('%s:' % k.name)
        out += k.out
    out.append('.section .rodata,"a"')
    for k in kernels:
        if getattr(k, 'main', None) is not None:
            k.maxv, k.maxa, k.maxs = k.main.maxv, k.main.maxa, k.main.maxs
        nv = k.maxv + 1
        acc_off = (nv + 3) // 4 * 4
        nfv = acc_off + (k.maxa + 1) if k.maxa >= 0 else nv
        out.append('.p2align 6')
        out.append('.amdhsa_kernel %s' % k.name)
        out.append('  .amdhsa_next_free_vgpr %d' % nfv)
        out.append('  .amdhsa_next_free_sgpr %d' % max(k.maxs + 1, 16))
        out.append('  .amdhsa_accum_offset %d' % acc_off)
        out.append('  .amdhsa_group_segment_fixed_size 0')
        out.append('  .amdhsa_kernarg_size 72')
        out.append('  .amdhsa_user_sgpr_count 2')
        out.append('  .amdhsa_user_sgpr_kernarg_segment_ptr 1')
        out.append('  .amdhsa_system_sgpr_workgroup_id_x 1')
        out.append('  .amdhsa_float_denorm_mode_32 3')
        out.append('  .amdhsa_float_denorm_mode_16_64 3')
        out.append('.end_amdhsa_kernel')
    out.append('.p2align 8')
    out.append('tab_base:')
    for n, w in tables.items():
        out += emit_table('tab_' + n, w)
    return '\n'.join(out) + '\n'


make_tables()
TAB_BYTES = layout_tables()

if __name__ == '__main__':
    if len(sys.argv) > 2 and sys.argv[2] in ('diag', 'real'):
        Kernel.DIAG = True
        Kernel.REAL = sys.argv[2] == 'real'
    ks, launches = [], []
    k, g, l = gen_k1()
    ks.append(k)
    launches.append((k.name, g, l))
    try:
        from gen2 import more_kernels
        more_kernels(ks, launches)
    except ImportError:
        pass
    path = sys.argv[1] if len(sys.argv) > 1 else 'interleave_layers__spectral_gfnet__dense_activation_silu__prompt.s'
    open(path, 'w').write(build(ks, launches))
    print('wrote', path)
```

```python
import numpy as np
from asmlib import Kernel, f32bits
import gen as G
from gen import (prologue, lane_ids, xsum_g, fwd_epilogue, table_off, SRD_WS, SRD_TAB, SRD_A, SRD_B, SRD_C,
                 SRD_OUT, S, D, F)


def vr(b, n=4):
    return 'v[%d:%d]' % (b, b + n - 1)


def ar(b, n=4):
    return 'a[%d:%d]' % (b, b + n - 1)


def bf16_round2(k, a, b, tmp):
    k.I('v_cvt_pk_bf16_f32 v%d, v%d, v%d' % (tmp, a, b))
    k.I('v_lshlrev_b32 v%d, 16, v%d' % (a, tmp))
    k.I('v_and_b32 v%d, 0xffff0000, v%d' % (b, tmp))


def cmul_pk(k, xr, xi, tr, ti, o_r, o_i, conj=False):
    k.I('v_pk_mul_f32 %s, %s, %s' % (vr(o_r, 2), vr(xr, 2), vr(tr, 2)))
    if not conj:
        k.I('v_pk_mul_f32 %s, %s, %s' % (vr(o_i, 2), vr(xr, 2), vr(ti, 2)))
        k.I('v_pk_fma_f32 %s, %s, %s, %s neg_lo:[1,0,0] neg_hi:[1,0,0]' % (vr(o_r, 2), vr(xi, 2), vr(ti, 2), vr(o_r, 2)))
        k.I('v_pk_fma_f32 %s, %s, %s, %s' % (vr(o_i, 2), vr(xi, 2), vr(tr, 2), vr(o_i, 2)))
    else:
        k.I('v_pk_mul_f32 %s, %s, %s' % (vr(o_i, 2), vr(xi, 2), vr(tr, 2)))
        k.I('v_pk_fma_f32 %s, %s, %s, %s' % (vr(o_r, 2), vr(xi, 2), vr(ti, 2), vr(o_r, 2)))
        k.I('v_pk_fma_f32 %s, %s, %s, %s neg_lo:[1,0,0] neg_hi:[1,0,0]' % (vr(o_i, 2), vr(xr, 2), vr(ti, 2), vr(o_i, 2)))


MF = 'v_mfma_f32_16x16x32_bf16'
MF16 = 'v_mfma_f32_16x16x16_bf16'


def gen_c():
    k = Kernel('c1_kernel')
    k.I('s_cmp_ge_u32 s2, 192')
    k.I('s_cbranch_scc1 %s' % ('L_c_end' if G.PREP_IN_K1 else 'L_c_prep'))
    k.I('s_mov_b32 s60, %d' % G.WS_ST)
    k.out.append('L_c_body:')
    k.I('s_and_b32 s40, s2, 7')
    k.I('s_lshr_b32 s41, s2, 3')
    k.I('s_and_b32 s42, s41, 3')
    k.I('s_lshr_b32 s43, s41, 3')
    k.I('s_lshl_b32 s43, s43, 3')
    k.I('s_add_u32 s40, s40, s43')
    k.I('s_lshl_b32 s40, s40, 1')
    k.I('s_bfe_u32 s43, s41, 0x10002')
    k.I('s_add_u32 s40, s40, s43')
    k.I('s_cmp_ge_u32 s40, 41')
    k.I('s_cbranch_scc1 L_c_end')
    k.stamp()
    ST, TW, WW, AZ, TZ, RS, MB, DZ = 16, 144, 176, 192, 200, 202, 210, 218
    aP, aF32, aF64, aF32o = 0, 64, 88, 184
    TABL = 34816

    def early():
        lane_ids(k, 2, 3, 44)
        k.I('v_and_b32 v4, 63, v0')
        k.I('v_lshlrev_b32 v8, 4, v4')
        k.I('v_and_b32 v6, 3, v2')
        k.I('v_lshl_add_u32 v6, v6, 3, v3')
        k.I('v_lshlrev_b32 v6, 2, v6')
        k.I('s_lshl_b32 s48, s40, 3')
        k.I('s_lshl_b32 s49, s42, 1')
        k.I('s_add_u32 s48, s48, s49')
        k.I('s_lshl_b32 s49, s48, 6')
        k.I('s_add_u32 s49, s49, %d' % table_off['TZ'])
        k.I('buffer_load_dword v%d, v6, %s, s49 offen' % (TZ, SRD_TAB))
        k.I('buffer_load_dword v%d, v6, %s, s49 offen offset:16' % (TZ + 1, SRD_TAB))
    prologue(k, {}, early)
    k.I('v_lshl_add_u32 v7, v2, 2, v3')
    k.I('v_lshlrev_b32 v7, 3, v7')
    k.I('s_lshl_b32 s45, s44, 12')
    k.I('v_add_u32 v7, s45, v7')
    for e in range(8):
        k.I('buffer_load_dwordx2 %s, v7, %s, s60 offen offset:%d' % (vr(ST + 2 * e, 2), SRD_WS, 512 * e))
    k.I('v_lshlrev_b32 v5, 13, v3')
    k.I('v_lshl_add_u32 v5, v2, 4, v5')
    k.I('s_lshl_b32 s45, s44, 11')
    k.I('v_add_u32 v5, s45, v5')
    k.I('s_lshl_b32 s46, s40, 16')
    k.I('s_add_u32 s46, s46, %d' % G.WS_P)
    k.I('s_add_u32 s47, s46, 32768')
    for e in range(8):
        for h2 in range(2):
            k.I('buffer_load_dwordx4 %s, v5, %s, s%d offen offset:%d' % (ar(aP + 8 * e + 4 * h2), SRD_WS, 46 + h2, 256 * e))
    k.I('s_and_b32 s51, s44, 1')
    assert table_off['F64'] == table_off['F32'] + 6144 and table_off['TW'] == table_off['F64'] + 24576
    G.dma_table(k, table_off['F32'], 46, TABL, 44, 8, 52)
    dma_mark = k.mark()
    k.I('v_lshlrev_b32 v9, 6, v4')
    k.I('s_lshl_b32 s52, s48, 13')
    k.I('s_lshl_b32 s53, s44, 12')
    k.I('s_add_u32 s52, s52, s53')
    k.I('s_add_u32 s52, s52, %d' % G.WS_WC)
    for mt in range(4):
        k.I('buffer_load_dwordx4 %s, v9, %s, s52 offen offset:%d' % (vr(WW + 4 * mt), SRD_WS, 16 * mt))
    k.I('s_or_b32 s53, s40, s42')
    k.I('s_or_b32 s53, s53, s44')
    k.I('s_cmp_eq_u32 s53, 0')
    k.I('s_cselect_b32 s54, -1, 0')
    k.I('s_mov_b32 s55, 0')
    k.I('v_lshlrev_b32 v6, 8, v4')
    k.I('v_mov_b32 v7, 0')
    k.I('s_mov_b32 s53, %d' % G.WS_CNT)
    k.I('s_mov_b64 exec, s[54:55]')
    k.I('buffer_store_dword v7, v6, %s, s53 offen' % SRD_WS)
    k.I('s_mov_b64 exec, -1')
    k.stamp()
    k.I('v_lshrrev_b32 v10, 2, v2')
    for m in range(4):
        k.I('v_cmp_eq_u32 vcc, %d, v10' % m)
        k.I('v_cndmask_b32 v%d, 0, v%d, vcc' % (AZ + m, TZ))
        k.I('v_cndmask_b32 v%d, 0, v%d, vcc' % (AZ + 4 + m, TZ + 1))
    k.stamp()
    k.I('s_or_b32 s53, s40, s42')
    k.I('s_cmp_eq_u32 s53, 0')
    k.I('s_cselect_b32 s53, 0x%x, 0' % f32bits(-640.0))
    k.I('s_mov_b32 s54, 0x%x' % f32bits(1.0 / 640))
    k.I('s_mov_b32 s55, s54')
    for e in range(8):
        b = ST + 2 * e
        k.I('v_pk_mul_f32 %s, %s, s[54:55]' % (vr(b, 2), vr(b, 2)))
        k.I('v_fma_f32 v%d, -v%d, v%d, v%d' % (b + 1, b, b, b + 1))
        bf16_round2(k, b, b + 1, 13)
        k.I('v_mov_b32 v%d, v%d' % (MB + e, b))
        k.I('v_add_f32 v%d, 0x%x, v%d' % (b + 1, f32bits(1e-5), b + 1))
    for e in range(0, 8, 2):
        b = ST + 2 * e
        bf16_round2(k, b + 1, b + 3, 13)
        k.I('v_sqrt_f32 v%d, v%d' % (b + 1, b + 1))
        k.I('v_sqrt_f32 v%d, v%d' % (b + 3, b + 3))
        bf16_round2(k, b + 1, b + 3, 13)
        k.I('v_rcp_f32 v%d, v%d' % (b + 1, b + 1))
        k.I('v_rcp_f32 v%d, v%d' % (b + 3, b + 3))
        k.I('v_mul_f32 v%d, 0x%x, v%d' % (RS + e, f32bits(1.0 / (S * D)), b + 1))
        k.I('v_mul_f32 v%d, 0x%x, v%d' % (RS + e + 1, f32bits(1.0 / (S * D)), b + 3))
    k.stamp()
    for e in range(8):
        k.I('%s %s, %s, %s, 0' % (MF, vr(DZ + 4 * e), vr(AZ), ar(aP + 8 * e)))
        k.I('%s %s, %s, %s, %s' % (MF, vr(DZ + 4 * e), vr(AZ + 4), ar(aP + 8 * e + 4), vr(DZ + 4 * e)))
    for e in range(8):
        k.I('v_fmac_f32 v%d, s53, v%d' % (DZ + 4 * e, MB + e))
        rs = RS + e
        if rs % 2 == 0:
            src, sel = vr(rs, 2), 'op_sel:[0,0] op_sel_hi:[1,0]'
        else:
            src, sel = vr(rs - 1, 2), 'op_sel:[0,1] op_sel_hi:[1,1]'
        k.I('v_pk_mul_f32 %s, %s, %s %s' % (vr(DZ + 4 * e, 2), vr(DZ + 4 * e, 2), src, sel))
        k.I('v_pk_mul_f32 %s, %s, %s %s' % (vr(DZ + 4 * e + 2, 2), vr(DZ + 4 * e + 2, 2), src, sel))
    ZF = 16
    for arr in range(4):
        for h in range(4):
            k.I('v_cvt_pk_bf16_f32 v%d, v%d, v%d' % (ZF + 4 * arr + h, DZ + 8 * h + arr, DZ + 8 * h + 4 + arr))
    k.I('v_lshlrev_b32 v10, 10, v3')
    k.I('v_lshl_add_u32 v10, v2, 4, v10')
    k.I('s_lshl_b32 s45, s44, 8')
    k.I('v_add_u32 v10, s45, v10')
    for arr in range(4):
        k.I('ds_write_b128 v10, %s offset:%d' % (vr(ZF + 4 * arr), 4096 * arr))
    k.wait_mark(dma_mark)
    k.barrier()
    k.stamp()
    k.I('s_mul_i32 s52, s51, 3072')
    k.I('v_add_u32 v11, s52, v8')
    for var in range(3):
        k.I('ds_read_b128 %s, v11 offset:%d' % (ar(aF32o + 4 * var), TABL + 1024 * var))
    AF, D1, TMP, B3, D3 = 32, 64, 96, 128, 218
    k.I('s_lshr_b32 s45, s44, 1')
    k.I('s_lshl_b32 s45, s45, 13')
    k.I('v_add_u32 v10, s45, v8')
    for c in range(2):
        for m in range(4):
            k.I('ds_read_b128 %s, v10 offset:%d' % (vr(AF + 16 * c + 4 * m), 4096 * c + 1024 * m))
    k.I('s_lshl_b32 s52, s51, 13')
    k.I('s_add_u32 s52, s52, %d' % (TABL + 30720))
    k.I('v_add_u32 v11, s52, v8')
    for c in range(2):
        for m in range(4):
            k.I('ds_read_b128 %s, v11 offset:%d' % (vr(TW + 16 * c + 4 * m), 4096 * c + 1024 * m))
    Fr, Fi, Fn = ar(aF32o), ar(aF32o + 4), ar(aF32o + 8)
    for m in range(4):
        k.I('%s %s, %s, %s, 0' % (MF, vr(D1 + 4 * m), vr(AF + 4 * m), Fr))
        k.I('%s %s, %s, %s, 0' % (MF, vr(D1 + 16 + 4 * m), vr(AF + 4 * m), Fi))
    for m in range(4):
        k.I('%s %s, %s, %s, %s' % (MF, vr(D1 + 4 * m), vr(AF + 16 + 4 * m), Fn, vr(D1 + 4 * m)))
        k.I('%s %s, %s, %s, %s' % (MF, vr(D1 + 16 + 4 * m), vr(AF + 16 + 4 * m), Fr, vr(D1 + 16 + 4 * m)))

    for q in range(24):
        k.I('ds_read_b128 %s, v8 offset:%d' % (ar(aF64 + 4 * q), TABL + 6144 + 1024 * q))
    for q in range(6):
        k.I('ds_read_b128 %s, v8 offset:%d' % (ar(aF32 + 4 * q), TABL + 1024 * q))

    def f64(var, mt, t):
        return ar(aF64 + 4 * ((var * 4 + mt) * 2 + t))

    def twiddle_pack(src, dstB, conj):
        for m in range(4):
            for h in range(2):
                o = 2 * h
                cmul_pk(k, src + 4 * m + o, src + 16 + 4 * m + o, TW + 4 * m + o, TW + 16 + 4 * m + o,
                        TMP + 4 * m + o, TMP + 16 + 4 * m + o, conj)

    twiddle_pack(D1, B3, False)
    for c in range(2):
        for m in range(4):
            for h in range(2):
                k.I('v_cvt_pk_bf16_f32 v%d, v%d, v%d' % (B3 + 8 * c + 2 * m + h, TMP + 16 * c + 4 * m + 2 * h,
                                                         TMP + 16 * c + 4 * m + 2 * h + 1))

    def dft64(Dd, Bb, conj):
        vi, vn = (1, 2) if not conj else (2, 1)
        for mt in range(4):
            for t in range(2):
                cr = '0' if t == 0 else vr(Dd + 4 * mt)
                ci = '0' if t == 0 else vr(Dd + 16 + 4 * mt)
                k.I('%s %s, %s, %s, %s' % (MF, vr(Dd + 4 * mt), f64(0, mt, t), vr(Bb + 4 * t), cr))
                k.I('%s %s, %s, %s, %s' % (MF, vr(Dd + 16 + 4 * mt), f64(0, mt, t), vr(Bb + 8 + 4 * t), ci))
                k.I('%s %s, %s, %s, %s' % (MF, vr(Dd + 4 * mt), f64(vn, mt, t), vr(Bb + 8 + 4 * t), vr(Dd + 4 * mt)))
                k.I('%s %s, %s, %s, %s' % (MF, vr(Dd + 16 + 4 * mt), f64(vi, mt, t), vr(Bb + 4 * t), vr(Dd + 16 + 4 * mt)))

    k.stamp()
    dft64(D3, B3, False)
    for q in range(16):
        k.I('v_lshlrev_b32 v%d, 16, v%d' % (AF + q, WW + q))
        k.I('v_and_b32 v%d, 0xffff0000, v%d' % (AF + 16 + q, WW + q))
    for mt in range(4):
        for h in range(2):
            o = 4 * mt + 2 * h
            cmul_pk(k, D3 + o, D3 + 16 + o, AF + o, AF + 16 + o, TMP + o, TMP + 16 + o, False)
    B5 = 64
    for c in range(2):
        for m in range(4):
            for h in range(2):
                k.I('v_cvt_pk_bf16_f32 v%d, v%d, v%d' % (B5 + 8 * c + 2 * m + h, TMP + 16 * c + 4 * m + 2 * h,
                                                         TMP + 16 * c + 4 * m + 2 * h + 1))
    D5 = 218
    k.stamp()
    dft64(D5, B5, True)
    twiddle_pack(D5, None, True)
    L2 = 128
    for c in range(2):
        for r in range(4):
            for mp in range(2):
                k.I('v_cvt_pk_bf16_f32 v%d, v%d, v%d' % (L2 + 8 * c + 2 * r + mp, TMP + 16 * c + 4 * (2 * mp) + r,
                                                         TMP + 16 * c + 4 * (2 * mp + 1) + r))
    LB2, ARR2 = 16384, 4608
    k.I('s_lshr_b32 s45, s44, 1')
    k.I('s_mul_i32 s45, s45, %d' % (2 * ARR2))
    k.I('s_mul_i32 s46, s51, %d' % (16 * 144))
    k.I('s_add_u32 s45, s45, s46')
    k.I('s_add_u32 s45, s45, %d' % LB2)
    k.I('v_mul_u32_u24 v10, 144, v2')
    k.I('v_lshl_add_u32 v10, v3, 5, v10')
    k.I('v_add_u32 v10, s45, v10')
    for c in range(2):
        for h in range(2):
            k.I('ds_write_b128 v10, %s offset:%d' % (vr(L2 + 8 * c + 4 * h), ARR2 * c + 16 * h))
    k.barrier()
    k.stamp()
    k.I('v_lshrrev_b32 v10, 2, v2')
    k.I('v_lshl_add_u32 v10, v3, 3, v10')
    k.I('v_mul_u32_u24 v10, 144, v10')
    k.I('v_and_b32 v11, 3, v2')
    k.I('v_lshl_add_u32 v10, v11, 3, v10')
    k.I('s_lshl_b32 s45, s44, 5')
    k.I('s_add_u32 s45, s45, %d' % LB2)
    k.I('v_add_u32 v10, s45, v10')
    B7 = 32
    for arr in range(4):
        for h in range(2):
            k.I('ds_read_b64_tr_b16 %s, v10 offset:%d' % (vr(B7 + 4 * arr + 2 * h, 2), ARR2 * arr + 576 * h))
    D7 = 64

    def f32(tile, var):
        return ar(aF32 + 4 * (3 * tile + var))
    for col in range(2):
        for mt in range(2):
            dr, di = D7 + 16 * col + 4 * mt, D7 + 16 * col + 8 + 4 * mt
            br, bi = B7 + 8 * col, B7 + 8 * col + 4
            k.I('%s %s, %s, %s, 0' % (MF, vr(dr), f32(mt, 0), vr(br)))
            k.I('%s %s, %s, %s, 0' % (MF, vr(di), f32(mt, 0), vr(bi)))
            k.I('%s %s, %s, %s, %s' % (MF, vr(dr), f32(mt, 1), vr(bi), vr(dr)))
            k.I('%s %s, %s, %s, %s' % (MF, vr(di), f32(mt, 2), vr(br), vr(di)))
    k.I('v_lshl_add_u32 v10, v3, 8, v2')
    k.I('s_lshl_b32 s45, s44, 4')
    k.I('v_add_u32 v10, s45, v10')
    k.I('v_lshlrev_b32 v10, 4, v10')
    k.I('s_lshr_b32 s45, s40, 1')
    k.I('s_lshl_b32 s45, s45, 2')
    k.I('s_add_u32 s45, s45, s42')
    k.I('s_lshl_b32 s45, s45, 15')
    k.I('s_and_b32 s46, s40, 1')
    k.I('s_lshl_b32 s46, s46, 3')
    k.I('s_add_u32 s45, s45, s46')
    k.I('s_add_u32 s45, s45, %d' % G.WS_ZP)
    k.I('s_add_u32 s46, s45, 16384')
    O = 96
    for mt in range(2):
        for r in range(4):
            o = O + 2 * (4 * mt + r)
            for col in range(2):
                k.I('v_cvt_pk_bf16_f32 v%d, v%d, v%d' % (o + col, D7 + 16 * col + 4 * mt + r, D7 + 16 * col + 8 + 4 * mt + r))
            k.I('buffer_store_dwordx2 %s, v10, %s, s%d offen offset:%d' % (vr(o, 2), SRD_WS, 45 + mt, 1024 * r))
    k.stamp()
    k.wait_vm0()
    k.stamp_flush(1, 44, SRD_WS)
    k.label('L_c_end')
    k.I('s_endpgm')
    nprep = 0
    if not G.PREP_IN_K1:
        k.label('L_c_prep')
        k.vm, k.lg = [], []
        nprep = G.gen_wprep(k, 192)
    return k, 192, TABL + 48 * 1024, nprep


def more_kernels(ks, launches):
    kc, gc, lc, nprep = gen_c()
    ks.append(kc)
    kc2 = G.stub_kernel('c2_kernel', kc, 60, G.WS_STB, 'L_c_body')
    ks.append(kc2)
    launches.append((kc.name, gc + nprep, lc))
    try:
        from gen3 import gemm_kernels
        gemm_kernels(ks, launches, (kc2.name, gc, lc))
    except ImportError:
        pass
```

```python
import copy
import numpy as np
from asmlib import Kernel, f32bits
import gen as G
from gen import (prologue, lane_ids, xsum_g, fwd_epilogue, table_off, SRD_WS, SRD_TAB, SRD_A, SRD_B, SRD_C,
                 SRD_OUT, S, D, F)
from gen2 import vr, ar, bf16_round2, MF, MF16


def wg_map(k):
    k.I('s_cmp_ge_u32 s2, 256')
    k.I('s_cbranch_scc1 L_%s_end' % k.name)
    k.I('s_and_b32 s40, s2, 7')
    k.I('s_lshl_b32 s40, s40, 2')
    k.I('s_lshr_b32 s41, s2, 6')
    k.I('s_add_u32 s40, s40, s41')
    k.I('s_lshr_b32 s41, s2, 3')
    k.I('s_and_b32 s41, s41, 7')


def bcast(reg):
    if reg % 2 == 0:
        return vr(reg, 2), 0
    return vr(reg - 1, 2), 1


import os
PACE = int(os.environ.get('PACE', '12'))
PACE2 = int(os.environ.get('PACE2', '6'))
PACE3 = int(os.environ.get('PACE3', '10'))
SLEEP = int(os.environ.get('SLEEP', '2'))


def gen_g1(final):
    k = Kernel('g12b_kernel' if final else 'g12a_kernel')
    k.I('s_mov_b32 s60, %d' % (G.WS_STB if final else G.WS_ST))
    k.I('s_mov_b32 s65, %d' % (G.WS_W2FB if final else G.WS_W2FA))
    k.I('s_mov_b32 s66, %d' % (G.WS_HB if final else G.WS_H))
    V = 'b' if final else 'a'
    wg_map(k)
    k.stamp()
    REG = 26624
    TABL = 4 * REG
    RSL = TABL + 40 * 1024 + 3840
    assert (RSL + 256) % 4096 == 0
    assert table_off['G80I'] == table_off['TA'] + 22528

    def early():
        lane_ids(k, 2, 3, 44)
        k.I('v_and_b32 v4, 63, v0')
        k.I('v_lshlrev_b32 v8, 4, v4')
        G.dma_table(k, table_off['TA'], 37, TABL, 44, 8, 52)
    prologue(k, {SRD_OUT: (48, S * D * 2)}, early)
    dma_mark = k.mark()
    k.I('s_lshl_b32 s45, s40, 6')
    k.I('s_lshl_b32 s46, s44, 4')
    k.I('s_add_u32 s45, s45, s46')
    k.I('v_add_u32 v5, s45, v2')
    XF, ACC = 16, 96
    aZP, aTA, aG80 = 0, 84, 100
    k.I('v_lshlrev_b32 v7, 3, v5')
    k.I('s_mov_b32 s47, %d' % G.WS_ZP)
    k.I('buffer_load_dword v12, v7, %s, s60 offen' % SRD_WS)
    k.I('v_lshlrev_b32 v7, 4, v5')
    k.I('buffer_load_ushort v13, v7, %s, s47 offen' % SRD_WS)
    k.I('v_lshl_add_u32 v7, v3, 15, v7')
    for q in range(21):
        k.I('s_mov_b32 s47, %d' % (G.WS_ZP + q * 131072))
        k.I('buffer_load_dwordx4 %s, v7, %s, s47 offen' % (ar(aZP + 4 * q), SRD_WS))
    k.I('v_lshlrev_b32 v6, 6, v5')
    k.I('v_lshl_add_u32 v6, v3, 4, v6')
    x_issued = [0]

    def issue_x(upto):
        while x_issued[0] < min(upto, 20):
            q = x_issued[0]
            k.I('s_mov_b32 s47, %d' % (G.WS_XP + q * 131072))
            k.I('buffer_load_dwordx4 %s, v6, %s, s47 offen' % (vr(XF + 4 * q), SRD_WS))
            x_issued[0] += 1
    slots = [160 + 4 * i for i in range(24)] + [aZP + 4 * q for q in range(21)] + \
            [aTA + 4 * i for i in range(4)] + [aG80 + 4 * i for i in range(11)]
    w1reg = {}
    n = 0
    for t in range(20):
        for mt in range(3):
            w1reg[(t, mt)] = slots[n]
            n += 1
    k.I('s_mul_i32 s49, s41, 12')
    k.I('s_mul_i32 s50, s44, 3')
    k.I('s_add_u32 s49, s49, s50')
    k.I('s_and_b32 s53, s44, 1')
    k.I('s_add_u32 s50, s49, s53')
    k.I('s_add_u32 s51, s50, 1')
    k.I('s_lshl_b32 s54, s53, 1')
    k.I('s_sub_u32 s52, 2, s54')
    k.I('s_add_u32 s52, s52, s49')
    k.I('s_mov_b32 s56, s50')
    k.I('s_mov_b32 s57, s52')
    for mt in range(3):
        k.I('s_mul_i32 s%d, s%d, 20480' % (50 + mt, 50 + mt))
        k.I('s_add_u32 s%d, s%d, %d' % (50 + mt, 50 + mt, G.WS_W1F))
    w1_issued = [0]

    def issue_w1(upto):
        while w1_issued[0] < min(upto, 60):
            n = w1_issued[0]
            t, mt = n // 3, n % 3
            k.I('s_add_u32 s55, s%d, %d' % (50 + mt, (t // 4) * 4096))
            k.I('buffer_load_dwordx4 %s, v8, %s, s55 offen offset:%d' % (ar(w1reg[(t, mt)]), SRD_WS, (t % 4) * 1024))
            w1_issued[0] += 1
    k.stamp()
    k.I('v_lshlrev_b32 v9, 2, v3')
    k.I('v_sub_u32 v9, v2, v9')
    k.I('v_mov_b32 v14, 0x3f80')
    k.I('v_mov_b32 v15, 0x3f800000')
    k.I('v_cmp_eq_u32 vcc, 0, v9')
    k.I('v_cndmask_b32 v10, 0, v14, vcc')
    k.I('v_cmp_eq_u32 vcc, 1, v9')
    k.I('v_cndmask_b32 v10, v10, v15, vcc')
    k.I('v_cmp_eq_u32 vcc, 2, v9')
    k.I('v_cndmask_b32 v11, 0, v14, vcc')
    k.I('v_cmp_eq_u32 vcc, 3, v9')
    k.I('v_cndmask_b32 v11, v11, v15, vcc')
    k.I('s_mul_i32 s59, s44, %d' % REG)
    k.I('v_lshl_add_u32 v9, v3, 5, v2')
    k.I('v_mul_u32_u24 v9, 208, v9')
    k.I('v_add_u32 v9, s59, v9')
    k.I('v_add_u32 v4, %d, v8' % TABL)
    k.wait_mark(dma_mark)
    k.barrier()

    def rdTA(ch):
        for u in range(2):
            q = 2 * ch + u
            if q < 21:
                k.I('ds_read_b128 %s, v4 offset:%d' % (ar(aTA + 4 * (q % 4)), 1024 * q))
    rdTA(0)
    rdTA(1)
    k.I('v_lshlrev_b32 v13, 16, v13')
    k.I('v_fmac_f32 v13, 0x%x, v12' % f32bits(1.0 / 640))
    k.I('v_mov_b32 v14, v13')
    k.I('v_mov_b32 v15, v13')
    bf16_round2(k, 15, 13, 12)
    w1_cap = [24]

    def hook():
        if x_issued[0] < 20:
            issue_x(x_issued[0] + 1)
        elif w1_issued[0] < w1_cap[0]:
            issue_w1(w1_issued[0] + 1)
    k.pace_hook, k.pace_every = hook, PACE
    k.stamp()
    DT, QP = 96, 128

    def i1_mfma(ch):
        for u in range(4):
            k1 = 4 * ch + u
            if k1 <= 40:
                dt = DT + 4 * (k1 % 8)
                k.I('%s %s, %s, %s, 0' % (MF16, vr(dt), ar(aTA + 2 * (k1 % 8), 2), ar(aZP + 2 * k1, 2)))
    i1_mfma(0)
    for ch in range(12):
        qp = QP + 8 * (ch % 2)
        if ch + 1 < 11:
            i1_mfma(ch + 1)
        if ch + 2 < 11:
            rdTA(ch + 2)
        for u in range(4):
            k1 = 4 * ch + u
            if k1 <= 40:
                dt = DT + 4 * (k1 % 8)
                k.I('v_cvt_pk_bf16_f32 v%d, v%d, v%d' % (qp + u, dt, dt + 1))
                k.I('v_cvt_pk_bf16_f32 v%d, v%d, v%d' % (qp + 4 + u, dt + 2, dt + 3))
            else:
                k.I('v_mov_b32 v%d, 0' % (qp + u))
                k.I('v_mov_b32 v%d, 0' % (qp + 4 + u))
        k.I('ds_write_b128 v9, %s offset:%d' % (vr(qp), 16 * ch))
        k.I('ds_write_b128 v9, %s offset:%d' % (vr(qp + 4), 3328 + 16 * ch))
        if ch == 8:
            for q in range(15):
                k.I('ds_read_b128 %s, v4 offset:%d' % (ar(aG80 + 4 * q), 22528 + 1024 * q))
    k.stamp()
    k.wait_lgkm0()
    w1_cap[0] = 45
    CI = ACC + 4 * 39
    for r in range(4):
        k.I('v_sub_f32 v%d, 0, v15' % (CI + r))
    k.I('v_mul_u32_u24 v9, 208, v2')
    k.I('v_lshl_add_u32 v9, v3, 4, v9')
    k.I('v_add_u32 v9, s59, v9')
    k.I('v_add_u32 v12, s59, v8')
    GR = 4

    def bfrag(d2, t):
        if d2 % 2 == 0:
            return ar(84 + 4 * t)
        return [ar(96), vr(ACC + 4 * 37), vr(ACC + 4 * 38)][t] if d2 < 7 else [ar(96), vr(16), vr(20)][t]

    def rdQ(d2):
        for t in range(3):
            k.I('ds_read_b128 %s, v9 offset:%d' % (bfrag(d2, t), 3328 * d2 + 64 * t))
    xn_done = [0]

    def xn_upto(nq):
        while 2 * xn_done[0] + 1 < nq:
            t = xn_done[0]
            pk = PKX[t]
            for h in range(4):
                a = ACC + 8 * t + 2 * h
                k.I('v_cvt_pk_bf16_f32 v%d, v%d, v%d' % (pk + h, a, a + 1))
            k.I('ds_write_b128 v12, %s offset:%d' % (vr(pk), 1024 * t))
            k.I('%s %s, %s, %s, %s' % (MF, vr(GR), vr(pk), vr(pk), '0' if t == 0 else vr(GR)))
            xn_done[0] += 1
    PKX = {}
    for t in range(20):
        dnow = (2 * t + 1) // 5 + 1
        PKX[t] = ACC + 4 * (35 + t % 2) if dnow <= 6 else 24 + 4 * (t % 4)
    k.I('v_mov_b32 v13, v5')
    rdQ(0)
    for d2 in range(8):
        if d2 + 1 < 8:
            rdQ(d2 + 1)
        for t in range(3):
            for mt in range(5):
                a = ACC + 4 * (5 * d2 + mt)
                k.I('%s %s, %s, %s, %s' % (MF, vr(a), ar(aG80 + 4 * (3 * mt + t)), bfrag(d2, t), vr(CI) if t == 0 else vr(a)))
            if t == 0:
                xn_upto(5 * d2)
        issue_x(5 * (d2 // 2) + 5)
        for mt in range(5):
            a = ACC + 4 * (5 * d2 + mt)
            k.I('%s %s, v[10:11], %s, %s' % (MF16, vr(a), vr(XF + 4 * (5 * (d2 // 2) + mt) + 2 * (d2 % 2), 2), vr(a)))
    w1_cap[0] = 60
    k.pace_every = PACE2
    xn_upto(40)
    k.stamp()
    x1ops = ['s_mul_i32 s63, s41, 20']
    aX1 = 144

    def idx_add(r0, r1):
        return ('s_set_gpr_idx_on s63, 0x1', 'v_add_f32 v84, v%d, v15' % r0, 'v_add_f32 v85, v%d, v15' % r1,
                's_set_gpr_idx_off')
    for mt in range(5 if not final else 0):
        for h in range(2):
            x1ops += [idx_add(ACC + 4 * mt + 2 * h, ACC + 4 * mt + 2 * h + 1),
                      'v_cvt_pk_bf16_f32 v86, v84, v85', 'v_accvgpr_write_b32 a%d, v86' % (aX1 + 2 * mt + h)]
    if final:
        x1ops += ['s_mul_i32 s61, s41, 10', 's_lshr_b32 s62, s61, 4', 's_min_u32 s62, s62, 3',
                  's_lshl_b32 s63, s62, 2',
                  's_lshl_b32 s62, s62, 4', 's_sub_u32 s62, s62, s61',
                  'v_lshl_add_u32 v0, v3, 2, s62',
                  's_add_u32 s61, s59, 20480', 'v_mul_u32_u24 v1, 176, v2', 'v_add_u32 v1, s61, v1']
        for i in range(8):
            du = 16 * (i // 4) + i % 4
            for h in range(4):
                x1ops += [idx_add(ACC + 40 * h + i, ACC + 40 * h + 20 + i), 'v_cvt_pk_bf16_f32 v%d, v84, v85' % (88 + h)]
            x1ops += ['v_add_u32 v84, %d, v0' % du, 'v_lshl_add_u32 v85, v84, 4, v1',
                      ('v_cmp_gt_u32 vcc, 10, v84', 's_nop 1', 's_and_saveexec_b64 s[68:69], vcc',
                       'ds_write_b128 v85, v[88:91]', 's_mov_b64 exec, -1')]
        x1ops += ['v_lshl_add_u32 v1, v3, 3, v1']
        x1ops += [tuple(
                        ['ds_read_b64 a[%d:%d], v1 offset:%d' % (aX1 + 2 * mt, aX1 + 2 * mt + 1, 32 * mt) for mt in range(5)])]
    k.I('v_and_b32 v9, 3, v2')
    k.I('v_cmp_eq_u32 vcc, 1, v9')
    k.I('v_cndmask_b32 v4, v4, v5, vcc')
    k.I('v_cmp_eq_u32 vcc, 2, v9')
    k.I('v_cndmask_b32 v4, v4, v6, vcc')
    k.I('v_cmp_eq_u32 vcc, 3, v9')
    k.I('v_cndmask_b32 v4, v4, v7, vcc')
    k.I('v_sub_f32 v10, v14, v15')
    k.I('v_mul_f32 v12, 0x%x, v4' % f32bits(1.0 / 640))
    k.I('v_fma_f32 v12, -v10, v10, v12')
    bf16_round2(k, 11, 12, 13)
    k.I('v_add_f32 v12, 0x%x, v12' % f32bits(1e-5))
    bf16_round2(k, 11, 12, 13)
    k.I('v_sqrt_f32 v12, v12')
    bf16_round2(k, 11, 12, 13)
    k.I('v_rcp_f32 v12, v12')
    k.I('s_lshl_b32 s49, s44, 6')
    k.I('s_add_u32 s49, s49, %d' % RSL)
    k.I('v_lshl_add_u32 v13, v2, 2, s49')
    k.I('v_lshrrev_b32 v9, 2, v2')
    k.I('v_cmp_eq_u32 vcc, v9, v3')
    k.I('s_and_saveexec_b64 s[62:63], vcc')
    k.I('ds_write_b32 v13, v12')
    k.I('s_mov_b64 exec, -1')
    k.barrier()
    k.stamp()
    if not final:
        G.dma_table(k, table_off['G80F'], 15, TABL, 44, 8, 49)
    w2reg = {}
    for n in range(60):
        w2reg[(n // 5, n % 5)] = slots[n]
    k.I('s_mul_i32 s67, s41, %d' % (5 * 49152))
    k.I('s_mul_i32 s49, s44, %d' % (12 * 1024))
    k.I('s_add_u32 s67, s67, s49')
    k.I('s_add_u32 s67, s67, s65')
    w2_issued, w2_cap = [0], [0]

    def issue_w2(upto):
        while w2_issued[0] < min(upto, 60):
            n = w2_issued[0]
            ks, mt = n // 5, n % 5
            k.I('s_add_u32 s55, s67, %d' % (mt * 49152 + (ks // 4) * 4096))
            k.I('buffer_load_dwordx4 %s, v8, %s, s55 offen offset:%d' % (ar(w2reg[(ks, mt)]), SRD_WS, (ks % 4) * 1024))
            w2_issued[0] += 1

    def hook2():
        if w1_issued[0] < 60:
            issue_w1(w1_issued[0] + 1)
        elif w2_issued[0] < w2_cap[0]:
            issue_w2(w2_issued[0] + 1)
    k.pace_hook = hook2
    RSV = 92
    k.I('v_lshlrev_b32 v13, 2, v2')
    k.I('v_add_u32 v13, %d, v13' % RSL)
    for n2 in range(4):
        k.I('ds_read_b32 v%d, v13 offset:%d' % (RSV + n2, 64 * n2))
    A2, BB = 16, 64
    k.I('v_add_u32 v9, %d, v8' % (2 * REG))
    k.I('s_mov_b32 s58, 0x%x' % f32bits(-1.4426950408889634))
    k.I('s_lshl_b32 s45, s40, 2')
    k.I('s_mul_i32 s45, s45, 49152')
    k.I('s_add_u32 s45, s45, s66')
    k.I('s_lshr_b32 s46, s56, 1')
    k.I('s_lshl_b32 s46, s46, 10')
    k.I('s_add_u32 s46, s46, s45')
    k.I('s_lshr_b32 s48, s57, 1')
    k.I('s_lshl_b32 s48, s48, 10')
    k.I('s_add_u32 s48, s48, s45')
    EXL = RSL + 256
    k.I('s_lshl_b32 s49, s44, 11')
    k.I('s_add_u32 s49, s49, %d' % EXL)
    k.I('v_lshrrev_b32 v7, 1, v8')
    k.I('v_add_u32 v7, s49, v7')

    HO = 192

    def silu_ops(nt):
        ops = []
        for mt in range(3):
            for h in range(2):
                a = A2 + 4 * (3 * nt + mt) + 2 * h
                t0 = 176 + 4 * ((2 * mt + h) % 4)
                ops += ['v_mul_f32 v%d, v%d, v%d' % (a, a, RSV + nt),
                        'v_mul_f32 v%d, v%d, v%d' % (a + 1, a + 1, RSV + nt),
                        'v_cvt_pk_bf16_f32 v%d, v%d, v%d' % (t0, a, a + 1),
                        'v_lshlrev_b32 v%d, 16, v%d' % (a, t0),
                        'v_and_b32 v%d, 0xffff0000, v%d' % (a + 1, t0),
                        'v_mul_f32 v%d, s58, v%d' % (t0, a),
                        'v_mul_f32 v%d, s58, v%d' % (t0 + 1, a + 1),
                        'v_exp_f32 v%d, v%d' % (t0, t0),
                        'v_exp_f32 v%d, v%d' % (t0 + 1, t0 + 1),
                        'v_add_f32 v%d, 1.0, v%d' % (t0, t0),
                        'v_add_f32 v%d, 1.0, v%d' % (t0 + 1, t0 + 1),
                        'v_rcp_f32 v%d, v%d' % (t0, t0),
                        'v_rcp_f32 v%d, v%d' % (t0 + 1, t0 + 1),
                        'v_mul_f32 v%d, v%d, v%d' % (t0, t0, a),
                        'v_mul_f32 v%d, v%d, v%d' % (t0 + 1, t0 + 1, a + 1),
                        'v_cvt_pk_bf16_f32 v%d, v%d, v%d' % (HO + 8 * nt + 2 * mt + h, t0, t0 + 1)]
        ops += [('s_add_u32 s55, s46, %d' % (nt * 49152),
                 'buffer_store_dwordx4 %s, v8, %s, s55 offen sc1' % (vr(HO + 8 * nt), SRD_WS)),
                'ds_write_b64 v7, %s offset:%d' % (vr(HO + 8 * nt + 4, 2), 512 * nt)]
        return ops

    T1 = int(os.environ.get('T1', '15'))
    order = [(nt, t) for t in range(T1) for nt in range(4)] + [(nt, t) for nt in range(4) for t in range(T1, 20)]

    def rdB(i):
        nt, t = order[i]
        k.I('ds_read_b128 %s, v%d offset:%d' % (vr(BB + 4 * (i % 5)), 8 if nt < 2 else 9, (nt % 2) * REG + 1024 * t))
    for i in range(4):
        rdB(i)
    fill, fi = x1ops, 0
    for i, (nt, t) in enumerate(order):
        if i + 4 < 80:
            rdB(i + 4)
        if t == T1:
            while fi < len(fill):
                k.F(fill[fi])
                fi += 1
            fill, fi = (silu_ops(nt - 1) if nt else []), 0
        issue_w1(3 * t + 3)
        if t <= T1 and nt == 0:
            w2_cap[0] = 3 * t
            if w1_issued[0] == 60:
                k.pace_every = PACE3
        if t > T1 and nt == 3:
            w2_cap[0] = 3 * t
        for mt in range(3):
            a = A2 + 4 * (3 * nt + mt)
            k.I('%s %s, %s, %s, %s' % (MF, vr(a), ar(w1reg[(t, mt)]), vr(BB + 4 * (i % 5)), '0' if t == 0 else vr(a)))
            if t < T1:
                tgt = len(fill) * (3 * i + mt + 1) // (3 * 4 * T1 - 12)
                while fi < min(tgt, len(fill)):
                    k.F(fill[fi])
                    fi += 1
            if t >= T1:
                nm = 3 * (20 - T1)
                m = 3 * (t - T1) + mt + 1
                tgt = 0 if m < 4 else (len(fill) * (m - 3) + (nm - 4)) // (nm - 3)
                while fi < min(tgt, len(fill)):
                    k.F(fill[fi])
                    fi += 1
    while fi < len(fill):
        k.F(fill[fi])
        fi += 1
    assert w1_issued[0] == 60
    k.stamp()
    for op in silu_ops(3):
        k.F(op)
    k.pace_hook = None
    k.barrier()
    k.I('v_xor_b32 v7, 2048, v7')
    for nt in range(4):
        k.I('ds_read_b64 %s, v7 offset:%d' % (vr(HO + 8 * nt + 6, 2), 512 * nt))
    k.I('s_cmp_eq_u32 s53, 0')
    k.I('s_cselect_b64 exec, -1, 0')
    for nt in range(4):
        k.I('s_add_u32 s55, s48, %d' % (nt * 49152))
        k.I('buffer_store_dwordx4 %s, v8, %s, s55 offen sc1' % (vr(HO + 8 * nt + 4), SRD_WS))
    k.I('s_mov_b64 exec, -1')
    st_mark = k.mark()
    issue_w2(60)
    k.stamp()
    k.wait_mark(st_mark)
    k.I('s_barrier')
    k.I('s_lshl_b32 s49, s40, 8')
    k.I('s_add_u32 s49, s49, %d' % G.WS_CNT)
    k.I('v_mov_b32 v5, s49')
    k.I('v_mov_b32 v4, 1')
    k.I('s_cmp_eq_u32 s44, 0')
    k.I('s_cbranch_scc0 L_g12%s_go' % V)
    k.I('s_mov_b64 exec, 1')
    k.raw('    buffer_atomic_add v4, v5, %s, 0 offen' % SRD_WS)
    k.I('s_mov_b32 s49, 0')
    k.out.append('L_g12%s_poll:' % V)
    k.I('s_sleep %d' % SLEEP)
    k.raw('    buffer_load_dword v4, v5, %s, 0 offen sc1' % SRD_WS)
    k.I('s_waitcnt vmcnt(0)')
    k.I('v_readfirstlane_b32 s50, v4')
    k.I('s_add_u32 s49, s49, 1')
    k.I('s_cmp_ge_u32 s50, 8')
    k.I('s_cbranch_scc1 L_g12%s_go0' % V)
    k.I('s_cmp_lt_u32 s49, 0x80000')
    k.I('s_cbranch_scc1 L_g12%s_poll' % V)
    k.out.append('L_g12%s_go0:' % V)
    k.I('s_mov_b64 exec, -1')
    k.label('L_g12%s_go' % V)
    k.I('s_barrier')
    k.stamp()
    AC2, HR = 16, 96
    k.I('s_mul_i32 s47, s40, %d' % (4 * 49152))
    k.I('s_mul_i32 s49, s44, %d' % (12 * 1024))
    k.I('s_add_u32 s47, s47, s49')
    k.I('s_add_u32 s47, s47, s66')

    def issue_h(i):
        nt, ks = i // 12, i % 12
        k.I('s_add_u32 s55, s47, %d' % (nt * 49152 + (ks // 4) * 4096))
        k.I('buffer_load_dwordx4 %s, v8, %s, s55 offen offset:%d sc1' % (vr(HR + 4 * (i % 40)), SRD_WS, (ks % 4) * 1024))
    for i in range(40):
        issue_h(i)
    k.I('s_lshl_b32 s48, s40, 6')
    k.I('s_lshl_b32 s46, s44, 4')
    k.I('s_add_u32 s48, s48, s46')
    k.I('v_add_u32 v5, s48, v2')
    k.I('s_mov_b32 s48, 1280')
    k.I('v_mul_lo_u32 v6, v5, s48')
    k.I('v_lshl_add_u32 v6, v3, 3, v6')
    k.I('s_mul_i32 s49, s41, 160')
    k.I('v_add_u32 v6, s49, v6')
    k.I('s_mul_i32 s46, s44, 20480')
    k.I('v_add_u32 v9, s46, v8')
    for nt in range(4):
        for ks in range(12):
            i = 12 * nt + ks
            for mt in range(5):
                a = AC2 + 4 * (5 * nt + mt)
                k.I('%s %s, %s, %s, %s' % (MF, vr(a), ar(w2reg[(ks, mt)]), vr(HR + 4 * (i % 40)), '0' if ks == 0 else vr(a)))
            if i + 40 < 48:
                issue_h(i + 40)
            if nt > 0 and 2 <= ks < 7:
                q = 5 * (nt - 1) + ks - 2
                k.I('ds_write_b128 v9, %s offset:%d' % (vr(AC2 + 4 * q), 1024 * q))
    k.stamp()
    X1 = 96
    for q in range(15, 20):
        k.I('ds_write_b128 v9, %s offset:%d' % (vr(AC2 + 4 * q), 1024 * q))
    k.barrier()
    k.I('s_mul_i32 s46, s44, 5120')
    k.I('v_add_u32 v9, s46, v8')
    k.I('v_add_u32 v10, 40960, v9')
    for src in range(4):
        for mt in range(5):
            k.I('ds_read_b128 %s, v%d offset:%d' % (vr(AC2 + 20 * src + 4 * mt), 9 if src < 2 else 10,
                                                    (src % 2) * 20480 + 1024 * mt))
    G80 = 112
    k.I('v_add_u32 v10, %d, v8' % TABL)
    for q in range(15 if not final else 0):
        k.I('ds_read_b128 %s, v10 offset:%d' % (vr(G80 + 4 * q), 1024 * q))
    for q in range(10):
        k.I('v_pk_add_f32 %s, %s, %s' % (vr(AC2 + 2 * q, 2), vr(AC2 + 2 * q, 2), vr(AC2 + 20 + 2 * q, 2)))
        k.I('v_pk_add_f32 %s, %s, %s' % (vr(AC2 + 40 + 2 * q, 2), vr(AC2 + 40 + 2 * q, 2), vr(AC2 + 60 + 2 * q, 2)))
    for q in range(10):
        k.I('v_pk_add_f32 %s, %s, %s' % (vr(AC2 + 2 * q, 2), vr(AC2 + 2 * q, 2), vr(AC2 + 40 + 2 * q, 2)))
    k.stamp()
    k.wait_vm0()
    k.wait_lgkm0()
    for q in range(10):
        k.I('v_accvgpr_read_b32 v%d, a%d' % (X1 + q, aX1 + q))
    U = AC2 + 20
    PK = AC2 + 40
    for q in range(10):
        bf16_round2(k, AC2 + 2 * q, AC2 + 2 * q + 1, 10)
        k.I('v_lshlrev_b32 v%d, 16, v%d' % (U + 2 * q, X1 + q))
        k.I('v_and_b32 v%d, 0xffff0000, v%d' % (U + 2 * q + 1, X1 + q))
        k.I('v_pk_add_f32 %s, %s, %s' % (vr(AC2 + 2 * q, 2), vr(AC2 + 2 * q, 2), vr(U + 2 * q, 2)))
        k.I('v_cvt_pk_bf16_f32 v%d, v%d, v%d' % (PK + q, AC2 + 2 * q, AC2 + 2 * q + 1))
    if final:
        for mt in range(5):
            k.I('buffer_store_dwordx2 %s, v6, %s, 0 offen offset:%d' % (vr(PK + 2 * mt, 2), SRD_OUT, 32 * mt))
    else:
        k.I('v_lshlrev_b32 v7, 6, v5')
        k.I('v_lshl_add_u32 v7, v3, 4, v7')
        k.I('s_lshr_b32 s51, s41, 1')
        k.I('s_mul_i32 s51, s51, %d' % (5 * 131072))
        k.I('s_and_b32 s50, s41, 1')
        k.I('s_lshl_b32 s50, s50, 3')
        k.I('s_add_u32 s51, s51, s50')
        for mt in range(5):
            k.I('s_add_u32 s50, s51, %d' % (G.WS_XP + mt * 131072))
            k.I('buffer_store_dwordx2 %s, v7, %s, s50 offen' % (vr(PK + 2 * mt, 2), SRD_WS))
        for q in range(10):
            k.I('v_lshlrev_b32 v%d, 16, v%d' % (AC2 + 2 * q, PK + q))
            k.I('v_and_b32 v%d, 0xffff0000, v%d' % (AC2 + 2 * q + 1, PK + q))
        k.I('v_lshlrev_b32 v7, 2, v5')
        k.I('v_lshl_add_u32 v7, v3, 17, v7')
        k.I('v_cmp_eq_u32 vcc, 0, v3')
        k.I('v_add_u32 v9, %d, v7' % (40 * 65536))
        k.I('v_cndmask_b32 v11, v7, v9, vcc')
        k.I('v_lshlrev_b32 v9, 3, v5')
        k.I('s_lshl_b32 s52, s41, 13')
        k.I('s_add_u32 s52, s52, %d' % G.WS_P)
        k.I('s_mov_b32 s53, %d' % G.WS_STB)
        fwd_epilogue(k, AC2, 176, lambda mo, t: vr(G80 + 4 * (3 * mo + t)), 7, 11, 9, 55, 52)
    k.stamp()
    k.wait_vm0()
    k.stamp_flush(3 if final else 2, 44, SRD_WS)
    k.label('L_%s_end' % k.name)
    k.I('s_endpgm')
    return k, 256, RSL + 256 + 8192


def gen_g2(final):
    k = Kernel('g2b_kernel' if final else 'g2a_kernel')
    wg_map(k)
    k.stamp()
    prologue(k, {SRD_OUT: (48, S * D * 2)} if final else {})
    lane_ids(k, 2, 3, 44)
    k.I('v_and_b32 v4, 63, v0')
    k.I('v_lshlrev_b32 v8, 4, v4')
    ACC = 16
    k.I('s_mul_i32 s45, s41, %d' % (5 * 49152))
    k.I('s_mul_i32 s46, s44, %d' % (12 * 1024))
    k.I('s_add_u32 s45, s45, s46')
    k.I('s_add_u32 s45, s45, %d' % (G.WS_W2FB if final else G.WS_W2FA))
    k.I('s_mul_i32 s47, s40, %d' % (4 * 49152))
    k.I('s_add_u32 s47, s47, s46')
    k.I('s_add_u32 s47, s47, %d' % G.WS_H)
    NS = 7

    def issue(ks):
        sl = 36 * (ks % NS)
        for mt in range(5):
            k.I('s_add_u32 s55, s45, %d' % (mt * 49152 + (ks // 4) * 4096))
            k.I('buffer_load_dwordx4 %s, v8, %s, s55 offen offset:%d' % (ar(sl + 4 * mt), SRD_WS, (ks % 4) * 1024))
        for nt in range(4):
            k.I('s_add_u32 s55, s47, %d' % (nt * 49152 + (ks // 4) * 4096))
            k.I('buffer_load_dwordx4 %s, v8, %s, s55 offen offset:%d' % (ar(sl + 20 + 4 * nt), SRD_WS, (ks % 4) * 1024))
    for ks in range(NS - 1):
        issue(ks)
    k.I('s_lshl_b32 s48, s40, 6')
    k.I('s_lshl_b32 s46, s44, 4')
    k.I('s_add_u32 s48, s48, s46')
    k.I('v_add_u32 v5, s48, v2')
    X1 = 96
    G80 = 112
    if final:
        k.I('s_mov_b32 s48, 1280')
        k.I('v_mul_lo_u32 v6, v5, s48')
        k.I('v_lshl_add_u32 v6, v3, 3, v6')
        k.I('s_mul_i32 s49, s41, 160')
        k.I('v_add_u32 v6, s49, v6')
        k.I('s_mov_b32 s50, %d' % G.WS_X1N)
        for mt in range(5):
            k.I('buffer_load_dwordx2 %s, v6, %s, s50 offen offset:%d' % (vr(X1 + 2 * mt, 2), SRD_WS, 32 * mt))
    else:
        k.I('v_lshlrev_b32 v6, 5, v5')
        k.I('v_lshl_add_u32 v6, v3, 3, v6')
        k.I('s_mul_i32 s49, s41, %d' % (5 * 65536))
        for mt in range(5):
            k.I('s_add_u32 s50, s49, %d' % (G.WS_X1P + mt * 65536))
            k.I('buffer_load_dwordx2 %s, v6, %s, s50 offen' % (vr(X1 + 2 * mt, 2), SRD_WS))
    issue(NS - 1)
    k.stamp()
    for ks in range(12):
        sl = 36 * (ks % NS)
        for nt in range(4):
            for mt in range(5):
                a = ACC + 4 * (5 * nt + mt)
                k.I('%s %s, %s, %s, %s' % (MF, vr(a), ar(sl + 4 * mt), ar(sl + 20 + 4 * nt), '0' if ks == 0 else vr(a)))
        if ks in (0, 5):
            k.stamp()
        if ks + NS < 12:
            issue(ks + NS)
        if ks == 5 and not final:
            for q in range(15):
                if q % 4 == 0:
                    k.I('s_mov_b32 s50, %d' % (table_off['G80F'] + q * 1024))
                k.I('buffer_load_dwordx4 %s, v8, %s, s50 offen offset:%d' % (vr(G80 + 4 * q), SRD_TAB, 1024 * (q % 4)))
    k.stamp()
    k.I('s_mul_i32 s46, s44, 20480')
    k.I('v_add_u32 v9, s46, v8')
    for q in range(20):
        k.I('ds_write_b128 v9, %s offset:%d' % (vr(ACC + 4 * q), 1024 * q))
    k.barrier()
    k.I('s_mul_i32 s46, s44, 5120')
    k.I('v_add_u32 v9, s46, v8')
    k.I('v_add_u32 v10, 40960, v9')
    for src in range(4):
        for mt in range(5):
            k.I('ds_read_b128 %s, v%d offset:%d' % (vr(ACC + 20 * src + 4 * mt), 9 if src < 2 else 10,
                                                    (src % 2) * 20480 + 1024 * mt))
    for q in range(10):
        k.I('v_pk_add_f32 %s, %s, %s' % (vr(ACC + 2 * q, 2), vr(ACC + 2 * q, 2), vr(ACC + 20 + 2 * q, 2)))
        k.I('v_pk_add_f32 %s, %s, %s' % (vr(ACC + 40 + 2 * q, 2), vr(ACC + 40 + 2 * q, 2), vr(ACC + 60 + 2 * q, 2)))
    for q in range(10):
        k.I('v_pk_add_f32 %s, %s, %s' % (vr(ACC + 2 * q, 2), vr(ACC + 2 * q, 2), vr(ACC + 40 + 2 * q, 2)))
    k.stamp()
    U = ACC + 20
    PK = ACC + 40
    for q in range(10):
        bf16_round2(k, ACC + 2 * q, ACC + 2 * q + 1, 10)
        k.I('v_lshlrev_b32 v%d, 16, v%d' % (U + 2 * q, X1 + q))
        k.I('v_and_b32 v%d, 0xffff0000, v%d' % (U + 2 * q + 1, X1 + q))
        k.I('v_pk_add_f32 %s, %s, %s' % (vr(ACC + 2 * q, 2), vr(ACC + 2 * q, 2), vr(U + 2 * q, 2)))
        k.I('v_cvt_pk_bf16_f32 v%d, v%d, v%d' % (PK + q, ACC + 2 * q, ACC + 2 * q + 1))
    if final:
        for mt in range(5):
            k.I('buffer_store_dwordx2 %s, v6, %s, 0 offen offset:%d' % (vr(PK + 2 * mt, 2), SRD_OUT, 32 * mt))
    else:
        k.I('v_lshlrev_b32 v7, 1, v6')
        k.I('s_lshr_b32 s51, s41, 1')
        k.I('s_mul_i32 s51, s51, %d' % (5 * 131072))
        k.I('s_and_b32 s50, s41, 1')
        k.I('s_lshl_b32 s50, s50, 3')
        k.I('s_add_u32 s51, s51, s50')
        for mt in range(5):
            k.I('s_add_u32 s50, s51, %d' % (G.WS_XP + mt * 131072))
            k.I('buffer_store_dwordx2 %s, v7, %s, s50 offen' % (vr(PK + 2 * mt, 2), SRD_WS))
        for q in range(10):
            k.I('v_lshlrev_b32 v%d, 16, v%d' % (ACC + 2 * q, PK + q))
            k.I('v_and_b32 v%d, 0xffff0000, v%d' % (ACC + 2 * q + 1, PK + q))
        k.I('v_lshlrev_b32 v7, 2, v5')
        k.I('v_lshl_add_u32 v7, v3, 17, v7')
        k.I('v_cmp_eq_u32 vcc, 0, v3')
        k.I('v_add_u32 v9, %d, v7' % (40 * 65536))
        k.I('v_cndmask_b32 v11, v7, v9, vcc')
        k.I('v_lshlrev_b32 v9, 3, v5')
        k.I('s_lshl_b32 s52, s41, 13')
        k.I('s_add_u32 s52, s52, %d' % G.WS_P)
        k.I('s_mov_b32 s53, %d' % G.WS_STB)
        fwd_epilogue(k, ACC, 176, lambda mo, t: vr(G80 + 4 * (3 * mo + t)), 7, 11, 9, 55, 52)
    k.stamp()
    k.wait_vm0()
    k.stamp_flush(4 if final else 3, 44, SRD_WS)
    k.label('L_%s_end' % k.name)
    k.I('s_endpgm')
    return k, 256, 81920


def gemm_kernels(ks, launches, cl):
    g1 = gen_g1(False)
    g1b = gen_g1(True)
    ks.append(g1[0])
    ks.append(g1b[0])
    launches += [(g1[0].name, g1[1], g1[2]), cl, (g1b[0].name, g1b[1], g1b[2])]
```

```python
import sys
import numpy as np
from asmlib import Kernel, pack_bf16, f32bits, emit_table

import os
S, D, F = 2048, 640, 1536
PREP_IN_K1 = os.environ.get('PREP_IN_K1', '0') == '1'
PI = np.pi

WS_W1F = 0x0
WS_W2FA = 0x200000
WS_W2FB = 0x400000
WS_WC = 0x600000
WS_P = 0x900000
WS_ST = 0xC00000
WS_STB = 0xC10000
WS_CNT = 0xC20000
WS_ZP = 0xD00000
WS_XP = 0x1000000
WS_X1P = 0x1300000
WS_X1N = 0x1600000
WS_H = 0x1900000
WS_HB = 0x2000000
WS_SIZE = 0x10000000

SRD_WS = 's[8:11]'
SRD_TAB = 's[12:15]'
SRD_A = 's[16:19]'
SRD_B = 's[20:23]'
SRD_C = 's[24:27]'
SRD_OUT = 's[28:31]'

tables = {}
table_off = {}


def add_table(name, words):
    tables[name] = np.asarray(words, dtype=np.uint32).reshape(-1)


def layout_tables():
    off = 0
    for n, w in tables.items():
        table_off[n] = off
        off += (len(w) * 4 + 255) // 256 * 256
    return off


def make_tables():
    T = np.zeros((5, 3, 64, 8))
    for mo in range(5):
        for t in range(3):
            for l in range(64):
                i, g = l % 16, l // 16
                n = 16 * mo + i
                k1, c = n // 2, n % 2
                for e in range(8):
                    mt, r = 2 * t + e // 4, e % 4
                    if mt >= 5:
                        continue
                    d1 = 16 * mt + 4 * g + r
                    if k1 == 0:
                        v = np.cos(PI * d1) if c == 0 else 0.0
                    else:
                        v = np.cos(2 * PI * k1 * d1 / 80) if c == 0 else -np.sin(2 * PI * k1 * d1 / 80)
                    T[mo, t, l, e] = v
    add_table('G80F', pack_bf16(T))
    T = np.zeros((41 * 8, 2, 8, 2))
    for k1 in range(41):
        for k2 in range(8):
            k = k1 + 80 * k2
            for d2 in range(8):
                th = 2 * PI * ((k * d2) % 640) / 640
                cr, ci = np.cos(th), -np.sin(th)
                if k1 == 0:
                    T[k1 * 8 + k2, 0, d2] = (cr, cr)
                    T[k1 * 8 + k2, 1, d2] = (ci, ci)
                else:
                    T[k1 * 8 + k2, 0, d2] = (cr, -ci)
                    T[k1 * 8 + k2, 1, d2] = (ci, cr)
    add_table('TZ', pack_bf16(T))
    T = np.zeros((2, 3, 64, 8))
    for tile in range(2):
        for l in range(64):
            i, g = l % 16, l // 16
            for e in range(8):
                a, b = 16 * tile + i, 8 * g + e
                th = 2 * PI * ((a * b) % 32) / 32
                T[tile, 0, l, e] = np.cos(th)
                T[tile, 1, l, e] = -np.sin(th)
                T[tile, 2, l, e] = np.sin(th)
    add_table('F32', pack_bf16(T))
    T = np.zeros((3, 4, 2, 64, 8))
    for mt in range(4):
        for t in range(2):
            for l in range(64):
                i, g = l % 16, l // 16
                for e in range(8):
                    a, b = 4 * i + mt, 16 * g + 4 * (e % 4) + 2 * t + e // 4
                    th = 2 * PI * ((a * b) % 64) / 64
                    T[0, mt, t, l, e] = np.cos(th)
                    T[1, mt, t, l, e] = -np.sin(th)
                    T[2, mt, t, l, e] = np.sin(th)
    add_table('F64', pack_bf16(T))
    T = np.zeros((2, 2, 4, 64, 4))
    for nt in range(2):
        for m in range(4):
            for l in range(64):
                j, g = l % 16, l // 16
                for r in range(4):
                    s2, k1p = 16 * g + 4 * r + m, 16 * nt + j
                    th = 2 * PI * (s2 * k1p) / 2048
                    T[nt, 0, m, l, r] = np.cos(th)
                    T[nt, 1, m, l, r] = -np.sin(th)
    add_table('TW', f32bits(T))
    T = np.zeros((22, 64, 2, 4))
    for k1 in range(41):
        for l in range(64):
            i, g = l % 16, l // 16
            d2, cp = i // 2, i % 2
            for e in range(4):
                k2, c = 2 * g + e // 2, e % 2
                ph = 2 * PI * (((k1 + 80 * k2) * d2) % 640) / 640
                if cp == 0:
                    v = np.cos(ph) if c == 0 else -np.sin(ph)
                else:
                    v = np.sin(ph) if c == 0 else np.cos(ph)
                T[k1 // 2, l, k1 % 2, e] = v
    add_table('TA', pack_bf16(T))
    T = np.zeros((5, 3, 64, 8))
    for mt in range(5):
        for t in range(3):
            for l in range(64):
                i, g = l % 16, l // 16
                d1 = 16 * mt + i
                for e in range(8):
                    k1, cp = 16 * t + 4 * g + e // 2, e % 2
                    if k1 > 40:
                        continue
                    th = 2 * PI * ((k1 * d1) % 80) / 80
                    if k1 in (0, 40):
                        v = np.cos(th) if cp == 0 else 0.0
                    else:
                        v = 2 * np.cos(th) if cp == 0 else -2 * np.sin(th)
                    T[mt, t, l, e] = v
    add_table('G80I', pack_bf16(T))


def prologue(k, need, early=None):
    k.I('s_load_dwordx2 s[4:5], s[0:1], 64')
    tmp = 32
    items = list(need.items())
    for n, (srd, (ko, nb)) in enumerate(items):
        k.I('s_load_dwordx2 s[%d:%d], s[0:1], %d' % (tmp + 2 * n, tmp + 2 * n + 1, ko))
    k.I('s_getpc_b64 s[6:7]')
    k.raw('    s_add_u32 s6, s6, tab_base@rel32@lo+4')
    k.raw('    s_addc_u32 s7, s7, tab_base@rel32@hi+12')
    k.I('s_mov_b32 s12, s6')
    k.I('s_and_b32 s13, s7, 0xffff')
    k.I('s_mov_b32 s14, %d' % TAB_BYTES)
    k.I('s_mov_b32 s15, 0x20000')
    if early is not None:
        early()
    k.wait_lgkm0()
    k.I('s_mov_b32 s8, s4')
    k.I('s_and_b32 s9, s5, 0xffff')
    k.I('s_mov_b32 s10, 0x%x' % WS_SIZE)
    k.I('s_mov_b32 s11, 0x20000')
    for n, (srd, (ko, nb)) in enumerate(items):
        b = int(srd[2:srd.index(':')])
        k.I('s_mov_b32 s%d, s%d' % (b, tmp + 2 * n))
        k.I('s_and_b32 s%d, s%d, 0xffff' % (b + 1, tmp + 2 * n + 1))
        k.I('s_mov_b32 s%d, %d' % (b + 2, nb))
        k.I('s_mov_b32 s%d, 0x20000' % (b + 3))


def xsum_g(k, reg, tmp):
    k.I('v_mov_b32 v%d, v%d' % (tmp, reg))
    k.I('v_permlane32_swap_b32 v%d, v%d' % (reg, tmp))
    k.I('v_add_f32 v%d, v%d, v%d' % (reg, reg, tmp))
    k.I('v_mov_b32 v%d, v%d' % (tmp, reg))
    k.I('v_permlane16_swap_b32 v%d, v%d' % (reg, tmp))
    k.I('v_add_f32 v%d, v%d, v%d' % (reg, reg, tmp))


def fwd_epilogue(k, X, T, G80, vP, vP0, vST, sbase, d2_soff_sgpr, statacc=None):
    sm, t1, mean, m2 = T, T + 1, T + 2, T + 3
    acc = T + 4
    B = T + 8
    Dm = T + 20
    k.I('v_pk_add_f32 v[%d:%d], v[%d:%d], v[%d:%d]' % (acc, acc + 1, X, X + 1, X + 2, X + 3))
    for q in range(2, 10):
        k.I('v_pk_add_f32 v[%d:%d], v[%d:%d], v[%d:%d]' % (acc, acc + 1, acc, acc + 1, X + 2 * q, X + 2 * q + 1))
    k.I('v_add_f32 v%d, v%d, v%d' % (sm, acc, acc + 1))
    xsum_g(k, sm, t1)
    k.I('v_mul_f32 v%d, 0x%x, v%d' % (mean, f32bits(1.0 / 80), sm))
    for q in range(10):
        k.I('v_pk_add_f32 v[%d:%d], v[%d:%d], v[%d:%d] op_sel_hi:[1,0] neg_lo:[0,1] neg_hi:[0,1]'
            % (X + 2 * q, X + 2 * q + 1, X + 2 * q, X + 2 * q + 1, mean, mean + 1))
    k.I('v_pk_mul_f32 v[%d:%d], v[%d:%d], v[%d:%d]' % (acc, acc + 1, X, X + 1, X, X + 1))
    for q in range(1, 10):
        k.I('v_pk_fma_f32 v[%d:%d], v[%d:%d], v[%d:%d], v[%d:%d]'
            % (acc, acc + 1, X + 2 * q, X + 2 * q + 1, X + 2 * q, X + 2 * q + 1, acc, acc + 1))
    k.I('v_add_f32 v%d, v%d, v%d' % (m2, acc, acc + 1))
    for q in range(10):
        k.I('v_cvt_pk_bf16_f32 v%d, v%d, v%d' % (B + q, X + 2 * q, X + 2 * q + 1))
    k.I('v_mov_b32 v%d, 0' % (B + 10))
    k.I('v_mov_b32 v%d, 0' % (B + 11))
    xsum_g(k, m2, t1)
    for mo in range(5):
        for t in range(3):
            c = '0' if t == 0 else 'v[%d:%d]' % (Dm + 4 * mo, Dm + 4 * mo + 3)
            k.I('v_mfma_f32_16x16x32_bf16 v[%d:%d], %s, v[%d:%d], %s'
                % (Dm + 4 * mo, Dm + 4 * mo + 3, G80(mo, t), B + 4 * t, B + 4 * t + 3, c))
    hi, lo = acc, acc + 1
    k.I('v_cvt_pk_bf16_f32 v%d, v%d, v%d' % (hi, sm, sm))
    k.I('v_and_b32 v%d, 0xffff0000, v%d' % (hi, hi))
    k.I('v_sub_f32 v%d, v%d, v%d' % (lo, sm, hi))
    k.I('v_cvt_pk_bf16_f32 v%d, v%d, v%d' % (hi, hi, lo))
    k.I('v_fmac_f32 v%d, v%d, v%d' % (m2, sm, mean))
    k.I('s_mov_b64 exec, 0xffff')
    k.I('buffer_store_dword v%d, v%d, %s, s%d offen' % (hi, vP, SRD_WS, d2_soff_sgpr))
    if statacc is None:
        k.I('buffer_atomic_add_f32 v%d, v%d, %s, s%d offen' % (sm, vST, SRD_WS, d2_soff_sgpr + 1))
        k.I('buffer_atomic_add_f32 v%d, v%d, %s, s%d offen offset:4' % (m2, vST, SRD_WS, d2_soff_sgpr + 1))
    k.I('s_mov_b64 exec, -1')
    if statacc is not None:
        k.I('v_add_f32 v%d, v%d, v%d' % (statacc, statacc, sm))
        k.I('v_add_f32 v%d, v%d, v%d' % (statacc + 1, statacc + 1, m2))
    for mo in range(5):
        for h in range(2):
            o = B + 2 * mo + h
            o = X + 2 * mo + h
            k.I('v_cvt_pk_bf16_f32 v%d, v%d, v%d' % (o, Dm + 4 * mo + 2 * h, Dm + 4 * mo + 2 * h + 1))
            k.I('s_add_u32 s%d, s%d, %d' % (sbase, d2_soff_sgpr, (8 * mo + h) * 65536))
            k.I('buffer_store_dword v%d, v%d, %s, s%d offen'
                % (o, vP0 if (mo == 0 and h == 0) else vP, SRD_WS, sbase))


def dma_table(k, tab_off, nchunks, lds_base, wave_s, vlane16, st):
    k.I('s_lshl_b32 s%d, s%d, 10' % (st, wave_s))
    k.I('s_add_u32 m0, s%d, %d' % (st, lds_base))
    k.I('s_add_u32 s%d, s%d, %d' % (st, st, tab_off))
    for i in range((nchunks + 3) // 4):
        if i:
            k.I('s_add_u32 m0, m0, 4096')
            k.I('s_add_u32 s%d, s%d, 4096' % (st, st))
        k.I('buffer_load_dwordx4 v%d, %s, s%d offen lds' % (vlane16, SRD_TAB, st))


def stub_kernel(name, main, sreg, value, target):
    k = Kernel(name)
    k.I('s_mov_b32 s%d, %d' % (sreg, value))
    k.I('s_branch %s' % target)
    k.main = main
    return k


def lane_ids(k, vj, vg, vw_s):
    k.I('v_and_b32 v%d, 15, v0' % vj)
    k.I('v_bfe_u32 v%d, v0, 4, 2' % vg)
    k.I('v_lshrrev_b32 v1, 6, v0')
    k.I('v_readfirstlane_b32 s%d, v1' % vw_s)


def gen_wprep(k, base):
    N1, N2 = 30, 30
    k.I('s_cmp_ge_u32 s2, %d' % (base + N1 + N2))
    k.I('s_cbranch_scc1 L_prep_end')
    prologue(k, {SRD_OUT: (32, D * F * 2), 's[40:43]': (40, F * D * 2)})
    SRD_W1, SRD_W2 = SRD_OUT, 's[40:43]'
    lane_ids(k, 2, 3, 44)
    k.I('v_and_b32 v4, 63, v0')
    k.I('v_lshlrev_b32 v8, 4, v4')
    k.I('s_mov_b32 s46, 0x05040100')
    k.I('s_mov_b32 s47, 0x07060302')
    k.I('s_lshl_b32 s59, s44, 14')
    k.I('v_lshrrev_b32 v9, 1, v2')
    k.I('v_lshlrev_b32 v9, 10, v9')
    k.I('v_and_b32 v10, 1, v2')
    k.I('v_lshl_add_u32 v9, v10, 7, v9')
    k.I('v_lshl_add_u32 v9, v3, 8, v9')
    k.I('v_add_u32 v9, s59, v9')
    k.I('v_add_u32 v10, s59, v8')

    def transpose8(R, O):
        for c in range(8):
            for kk in range(4):
                k.I('v_perm_b32 v%d, v%d, v%d, %s' % (O + 4 * c + kk, R + 4 * (2 * kk + 1) + c // 2,
                                                      R + 4 * (2 * kk) + c // 2, 's47' if c % 2 else 's46'))

    def via_lds(O, i, T):
        for c in range(8):
            k.I('ds_write_b128 v9, v[%d:%d] offset:%d' % (O + 4 * c, O + 4 * c + 3, 8192 * i + 16 * c))
        for q in range(8):
            k.I('ds_read_b128 v[%d:%d], v10 offset:%d' % (T + 4 * q, T + 4 * q + 3, 8192 * i + 1024 * q))
    k.I('s_cmp_ge_u32 s2, %d' % (base + N1))
    k.I('s_cbranch_scc1 L_prep_w2')
    k.I('s_sub_u32 s45, s2, %d' % base)
    k.I('s_lshl_b32 s45, s45, 2')
    k.I('s_add_u32 s45, s45, s44')
    k.I('s_lshl_b32 s45, s45, 1')
    k.I('v_mul_u32_u24 v5, %d, v3' % (32 * 3072))
    k.I('v_lshl_add_u32 v5, v2, 4, v5')
    for i in range(2):
        R = 16 + 32 * i
        k.I('s_add_u32 s56, s45, %d' % i)
        k.I('s_mul_i32 s57, s56, 43691')
        k.I('s_lshr_b32 s%d, s57, 19' % (60 + 2 * i))
        k.I('s_mul_i32 s58, s%d, 12' % (60 + 2 * i))
        k.I('s_sub_u32 s%d, s56, s58' % (61 + 2 * i))
        for e in range(8):
            k.I('s_lshl_b32 s50, s%d, 1' % (60 + 2 * i))
            k.I('s_add_u32 s50, s50, %d' % (e // 4))
            k.I('s_mul_i32 s51, s50, 13')
            k.I('s_lshr_b32 s51, s51, 6')
            k.I('s_mul_i32 s52, s51, 5')
            k.I('s_sub_u32 s52, s50, s52')
            k.I('s_lshl_b32 s52, s52, 7')
            k.I('s_add_u32 s52, s52, s51')
            k.I('s_add_u32 s52, s52, %d' % (8 * (e % 4)))
            k.I('s_mul_i32 s52, s52, 3072')
            k.I('s_lshl_b32 s53, s%d, 8' % (61 + 2 * i))
            k.I('s_add_u32 s52, s52, s53')
            k.I('buffer_load_dwordx4 v[%d:%d], v5, %s, s52 offen' % (R + 4 * e, R + 4 * e + 3, SRD_W1))
    for i in range(2):
        R, O, T = 16 + 32 * i, 80 + 32 * i, 144 + 32 * i
        transpose8(R, O)
        via_lds(O, i, T)
        k.I('s_mul_i32 s50, s%d, %d' % (61 + 2 * i, 8 * 20480))
        k.I('s_lshl_b32 s51, s%d, 10' % (60 + 2 * i))
        k.I('s_add_u32 s50, s50, s51')
        for q in range(8):
            k.I('s_add_u32 s51, s50, %d' % (WS_W1F + q * 20480))
            k.I('buffer_store_dwordx4 v[%d:%d], v8, %s, s51 offen' % (T + 4 * q, T + 4 * q + 3, SRD_WS))
    k.I('s_endpgm')
    k.label('L_prep_w2')
    k.I('s_sub_u32 s45, s2, %d' % (base + N1))
    k.I('s_lshl_b32 s45, s45, 2')
    k.I('s_add_u32 s45, s45, s44')
    k.I('s_lshl_b32 s45, s45, 1')
    k.I('v_mul_u32_u24 v5, 5120, v3')
    k.I('v_lshl_add_u32 v5, v2, 4, v5')
    for i in range(2):
        R = 16 + 32 * i
        k.I('s_add_u32 s56, s45, %d' % i)
        k.I('s_mul_i32 s57, s56, 52429')
        k.I('s_lshr_b32 s%d, s57, 18' % (60 + 2 * i))
        k.I('s_mul_i32 s58, s%d, 5' % (60 + 2 * i))
        k.I('s_sub_u32 s%d, s56, s58' % (61 + 2 * i))
        for e in range(8):
            k.I('s_lshl_b32 s50, s%d, 5' % (60 + 2 * i))
            k.I('s_add_u32 s50, s50, %d' % (16 * (e // 4) + e % 4))
            k.I('s_mul_i32 s50, s50, 1280')
            k.I('s_lshl_b32 s53, s%d, 8' % (61 + 2 * i))
            k.I('s_add_u32 s50, s50, s53')
            k.I('buffer_load_dwordx4 v[%d:%d], v5, %s, s50 offen' % (R + 4 * e, R + 4 * e + 3, SRD_W2))
    for i in range(2):
        R, O, T = 16 + 32 * i, 80 + 32 * i, 144 + 32 * i
        transpose8(R, O)
        via_lds(O, i, T)
        k.I('s_mul_i32 s50, s%d, 49152' % (61 + 2 * i))
        k.I('s_lshl_b32 s51, s%d, 10' % (60 + 2 * i))
        k.I('s_add_u32 s50, s50, s51')
        for c in range(8):
            k.I('s_add_u32 s52, s50, %d' % (WS_W2FA + c * 245760))
            k.I('buffer_store_dwordx4 v[%d:%d], v8, %s, s52 offen' % (O + 4 * c, O + 4 * c + 3, SRD_WS))
        k.I('s_mul_i32 s50, s%d, %d' % (61 + 2 * i, 8 * 49152))
        k.I('s_add_u32 s50, s50, s51')
        for q in range(8):
            k.I('s_add_u32 s52, s50, %d' % (WS_W2FB + q * 49152))
            k.I('buffer_store_dwordx4 v[%d:%d], v8, %s, s52 offen' % (T + 4 * q, T + 4 * q + 3, SRD_WS))
    k.label('L_prep_end')
    k.I('s_endpgm')
    return N1 + N2


def gen_k1():
    k = Kernel('k1_kernel')
    NX, NW = 128, 256
    k.I('s_cmp_ge_u32 s2, %d' % (NX + NW))
    k.I('s_cbranch_scc1 %s' % ('L_k1_prep' if PREP_IN_K1 else 'L_k1_end'))
    k.stamp()
    prologue(k, {SRD_A: (0, S * D * 2), SRD_B: (8, S * 321 * 2), SRD_C: (16, S * 321 * 2)})
    lane_ids(k, 2, 3, 44)
    k.I('s_mov_b32 s46, 0x05040100')
    k.I('s_mov_b32 s47, 0x07060302')
    k.I('s_cmp_ge_u32 s2, %d' % NX)
    k.I('s_cbranch_scc1 L_k1_w')
    k.I('s_lshl_b32 s45, s2, 4')
    k.I('v_add_u32 v4, s45, v2')
    XL = 512 + 16 * 1024
    R = 16
    k.I('s_mul_i32 s48, s2, 20480')
    k.I('v_lshlrev_b32 v5, 4, v0')
    for i in range(5):
        k.I('s_add_u32 s49, s48, %d' % (4096 * i))
        k.I('buffer_load_dwordx4 v[%d:%d], v5, %s, s49 offen' % (40 + 4 * i, 43 + 4 * i, SRD_A))
    k.I('v_and_b32 v6, 63, v0')
    k.I('v_lshlrev_b32 v6, 4, v6')
    dma_table(k, table_off['G80F'], 15, 512, 44, 6, 50)
    k.I('s_mov_b32 s48, 52429')
    for i in range(5):
        k.I('v_add_u32 v7, %d, v0' % (256 * i))
        k.I('v_mul_lo_u32 v8, v7, s48')
        k.I('v_lshrrev_b32 v8, 22, v8')
        k.I('v_lshlrev_b32 v7, 4, v7')
        k.I('v_lshl_add_u32 v7, v8, 4, v7')
        k.I('ds_write_b128 v7, v[%d:%d] offset:%d' % (40 + 4 * i, 43 + 4 * i, XL))
    k.wait_vm0()
    k.barrier()
    k.I('v_mul_u32_u24 v5, 1296, v2')
    k.I('v_lshl_add_u32 v5, v3, 6, v5')
    k.I('s_lshl_b32 s49, s44, 2')
    k.I('v_add_u32 v5, s49, v5')
    for mt in range(5):
        for r in range(4):
            k.I('ds_read_b32 v%d, v5 offset:%d' % (R + 4 * mt + r, XL + 256 * mt + 16 * r))
    for q in range(15):
        k.I('ds_read_b128 a[%d:%d], v6 offset:%d' % (4 * q, 4 * q + 3, 512 + 1024 * q))
    k.I('v_lshlrev_b32 v7, 2, v4')
    k.I('v_lshl_add_u32 v7, v3, 17, v7')
    k.I('v_mov_b32 v8, v7')
    k.I('v_cmp_eq_u32 vcc, 0, v3')
    k.I('v_add_u32 v9, %d, v7' % (40 * 65536))
    k.I('v_cndmask_b32 v8, v7, v9, vcc')
    k.I('v_lshlrev_b32 v9, 3, v4')
    k.I('v_mov_b32 v12, 0')
    k.I('v_mov_b32 v13, 0')
    k.I('v_lshlrev_b32 v10, 6, v4')
    k.I('v_lshl_add_u32 v10, v3, 4, v10')
    X, T, PK = 40, 64, 104
    k.I('s_mul_i32 s54, s44, %d' % (5 * 131072))
    k.I('s_add_u32 s54, s54, %d' % WS_XP)
    for mt in range(5):
        pk = PK + 4 * mt
        k.I('v_perm_b32 v%d, v%d, v%d, s46' % (pk, R + 4 * mt + 1, R + 4 * mt))
        k.I('v_perm_b32 v%d, v%d, v%d, s46' % (pk + 1, R + 4 * mt + 3, R + 4 * mt + 2))
        k.I('v_perm_b32 v%d, v%d, v%d, s47' % (pk + 2, R + 4 * mt + 1, R + 4 * mt))
        k.I('v_perm_b32 v%d, v%d, v%d, s47' % (pk + 3, R + 4 * mt + 3, R + 4 * mt + 2))
        k.I('s_add_u32 s55, s54, %d' % (mt * 131072))
        k.I('buffer_store_dwordx4 v[%d:%d], v10, %s, s55 offen' % (pk, pk + 3, SRD_WS))
    for e in range(2):
        k.I('s_lshl_b32 s51, s44, 1')
        k.I('s_add_u32 s51, s51, %d' % e)
        k.I('s_lshl_b32 s52, s51, 13')
        k.I('s_add_u32 s52, s52, %d' % WS_P)
        for q in range(20):
            if e == 0:
                k.I('v_lshlrev_b32 v%d, 16, v%d' % (X + q, R + q))
            else:
                k.I('v_and_b32 v%d, 0xffff0000, v%d' % (X + q, R + q))
        fwd_epilogue(k, X, T, lambda mo, t: 'a[%d:%d]' % (4 * (3 * mo + t), 4 * (3 * mo + t) + 3),
                     7, 8, 9, 55, 52, statacc=12)
    k.I('s_lshl_b32 s51, s44, 7')
    k.I('v_lshl_add_u32 v14, v2, 3, s51')
    k.I('s_mov_b64 exec, 0xffff')
    k.I('ds_write_b64 v14, v[12:13]')
    k.I('s_mov_b64 exec, -1')
    k.barrier()
    k.I('s_cmp_eq_u32 s44, 0')
    k.I('s_cbranch_scc0 L_k1_xdone')
    k.I('v_lshlrev_b32 v14, 3, v2')
    for w in range(4):
        k.I('ds_read_b64 v[%d:%d], v14 offset:%d' % (16 + 2 * w, 17 + 2 * w, 128 * w))
    k.I('v_pk_add_f32 v[16:17], v[16:17], v[18:19]')
    k.I('v_pk_add_f32 v[20:21], v[20:21], v[22:23]')
    k.I('v_pk_add_f32 v[16:17], v[16:17], v[20:21]')
    k.I('v_mov_b32 v18, 0')
    k.I('v_mov_b32 v19, 0')
    k.I('s_mov_b32 s51, %d' % WS_ST)
    k.I('s_mov_b32 s52, %d' % WS_STB)
    k.I('s_mov_b64 exec, 0xffff')
    k.I('buffer_store_dwordx2 v[16:17], v9, %s, s51 offen' % SRD_WS)
    k.I('buffer_store_dwordx2 v[18:19], v9, %s, s52 offen' % SRD_WS)
    k.I('s_mov_b64 exec, -1')
    k.label('L_k1_xdone')
    k.stamp()
    k.wait_vm0()
    k.stamp_flush(0, 44, SRD_WS)
    k.nstamp = 1
    k.I('s_endpgm')
    k.label('L_k1_w')
    k.I('s_sub_u32 s45, s2, %d' % NX)
    k.I('s_lshr_b32 s48, s45, 5')
    k.I('s_and_b32 s49, s45, 31')
    k.I('s_lshl_b32 s49, s49, 2')
    k.I('s_add_u32 s49, s49, s44')
    k.I('s_lshr_b32 s50, s49, 6')
    k.I('s_and_b32 s51, s49, 63')
    k.I('s_and_b32 s52, s51, 15')
    k.I('s_lshr_b32 s53, s51, 4')
    k.I('s_lshl_b32 s54, s50, 4')
    k.I('s_add_u32 s54, s54, s52')
    k.I('s_lshl_b32 s55, s53, 9')
    k.I('s_add_u32 s54, s54, s55')
    k.I('v_and_b32 v4, 63, v0')
    k.I('s_mul_i32 s55, s48, 80')
    k.I('v_add_u32 v5, s55, v4')
    k.I('v_sub_u32 v6, 640, v5')
    k.I('s_cmp_lt_u32 s48, 4')
    k.I('s_cselect_b32 s56, 0, -1')
    k.I('s_cselect_b32 s57, 0, 0x80000000')
    k.I('v_mov_b32 v7, s56')
    k.I('v_cmp_eq_u32 vcc, 0, v7')
    k.I('v_cndmask_b32 v5, v6, v5, vcc')
    k.I('v_lshlrev_b32 v5, 1, v5')
    RE, IM, RE2, IM2 = 16, 32, 48, 64
    for mt in range(4):
        for r in range(4):
            q = 4 * mt + r
            k.I('s_add_u32 s58, s54, %d' % (32 * (4 * r + mt)))
            k.I('s_sub_u32 s59, 0, s58')
            k.I('s_and_b32 s59, s59, 2047')
            k.I('s_cmp_lt_u32 s48, 4')
            k.I('s_cselect_b32 s60, s58, s59')
            k.I('s_mul_i32 s60, s60, 642')
            k.I('buffer_load_ushort v%d, v5, %s, s60 offen' % (RE + q, SRD_B))
            k.I('buffer_load_ushort v%d, v5, %s, s60 offen' % (IM + q, SRD_C))
    k.I('s_and_b32 s61, s48, 3')
    k.I('s_cmp_eq_u32 s61, 0')
    k.I('s_cbranch_scc0 L_k1_w_nosym')
    for mt in range(4):
        for r in range(4):
            q = 4 * mt + r
            k.I('s_add_u32 s58, s54, %d' % (32 * (4 * r + mt)))
            k.I('s_sub_u32 s59, 0, s58')
            k.I('s_and_b32 s59, s59, 2047')
            k.I('s_cmp_lt_u32 s48, 4')
            k.I('s_cselect_b32 s60, s59, s58')
            k.I('s_mul_i32 s60, s60, 642')
            k.I('buffer_load_ushort v%d, v5, %s, s60 offen' % (RE2 + q, SRD_B))
            k.I('buffer_load_ushort v%d, v5, %s, s60 offen' % (IM2 + q, SRD_C))
    k.wait_vm0()
    k.I('s_mov_b64 exec, 1')
    for q in range(16):
        k.I('v_lshlrev_b32 v8, 16, v%d' % (RE + q))
        k.I('v_lshlrev_b32 v9, 16, v%d' % (RE2 + q))
        k.I('v_add_f32 v8, v8, v9')
        k.I('v_mul_f32 v8, 0.5, v8')
        k.I('v_lshlrev_b32 v10, 16, v%d' % (IM + q))
        k.I('v_lshlrev_b32 v9, 16, v%d' % (IM2 + q))
        k.I('v_sub_f32 v10, v10, v9')
        k.I('v_mul_f32 v10, 0.5, v10')
        k.I('v_cvt_pk_bf16_f32 v8, v8, v10')
        k.I('v_and_b32 v%d, 0xffff, v8' % (RE + q))
        k.I('v_lshrrev_b32 v%d, 16, v8' % (IM + q))
    k.I('s_mov_b64 exec, -1')
    k.label('L_k1_w_nosym')
    k.wait_vm0()
    for q in range(16):
        k.I('v_lshl_or_b32 v%d, v%d, 16, v%d' % (RE + q, IM + q, RE + q))
        k.I('v_xor_b32 v%d, s57, v%d' % (RE + q, RE + q))
    k.I('v_lshlrev_b32 v6, 16, v4')
    k.I('s_lshl_b32 s58, s48, 13')
    k.I('s_lshl_b32 s59, s49, 6')
    k.I('s_add_u32 s58, s58, s59')
    k.I('s_add_u32 s58, s58, %d' % WS_WC)
    k.I('v_cmp_gt_u32 vcc, 41, v4')
    k.I('s_and_saveexec_b64 s[62:63], vcc')
    for mt in range(4):
        k.I('buffer_store_dwordx4 v[%d:%d], v6, %s, s58 offen offset:%d' % (RE + 4 * mt, RE + 4 * mt + 3, SRD_WS, 16 * mt))
    k.stamp()
    k.wait_vm0()
    k.stamp_flush(0, 44, SRD_WS)
    k.nstamp = 1
    k.I('s_endpgm')

    k.label('L_k1_end')
    k.I('s_endpgm')
    if PREP_IN_K1:
        k.label('L_k1_prep')
        k.vm, k.lg = [], []
        n = gen_wprep(k, NX + NW)
        return k, NX + NW + n, 65536
    return k, (NX + NW), 512 + 16 * 1024 + 16 * 1296


HEADER = '''; Kernarg layout for this problem (72 bytes, ptrs only, base s[0:1]):
'''


def build(kernels, launches):
    out = [HEADER.rstrip('\n')]
    for name, grid, lds in launches:
        out.append('; @launch kernel=%s grid=(%d,1,1) block=(256,1,1) lds=%d' % (name, grid, lds))
    out.append('.amdgcn_target "amdgcn-amd-amdhsa--gfx950"')
    out.append('.text')
    for k in kernels:
        out.append('.globl %s' % k.name)
        out.append('.p2align 8')
        out.append('.type %s,@function' % k.name)
        out.append('%s:' % k.name)
        out += k.out
    out.append('.section .rodata,"a"')
    for k in kernels:
        if getattr(k, 'main', None) is not None:
            k.maxv, k.maxa, k.maxs = k.main.maxv, k.main.maxa, k.main.maxs
        nv = k.maxv + 1
        acc_off = (nv + 3) // 4 * 4
        nfv = acc_off + (k.maxa + 1) if k.maxa >= 0 else nv
        out.append('.p2align 6')
        out.append('.amdhsa_kernel %s' % k.name)
        out.append('  .amdhsa_next_free_vgpr %d' % nfv)
        out.append('  .amdhsa_next_free_sgpr %d' % max(k.maxs + 1, 16))
        out.append('  .amdhsa_accum_offset %d' % acc_off)
        out.append('  .amdhsa_group_segment_fixed_size 0')
        out.append('  .amdhsa_kernarg_size 72')
        out.append('  .amdhsa_user_sgpr_count 2')
        out.append('  .amdhsa_user_sgpr_kernarg_segment_ptr 1')
        out.append('  .amdhsa_system_sgpr_workgroup_id_x 1')
        out.append('  .amdhsa_float_denorm_mode_32 3')
        out.append('  .amdhsa_float_denorm_mode_16_64 3')
        out.append('.end_amdhsa_kernel')
    out.append('.p2align 8')
    out.append('tab_base:')
    for n, w in tables.items():
        out += emit_table('tab_' + n, w)
    return '\n'.join(out) + '\n'


make_tables()
TAB_BYTES = layout_tables()

if __name__ == '__main__':
    if len(sys.argv) > 2 and sys.argv[2] in ('diag', 'real'):
        Kernel.DIAG = True
        Kernel.REAL = sys.argv[2] == 'real'
    ks, launches = [], []
    k, g, l = gen_k1()
    ks.append(k)
    launches.append((k.name, g, l))
    try:
        from gen2 import more_kernels
        more_kernels(ks, launches)
    except ImportError:
        pass
    path = sys.argv[1] if len(sys.argv) > 1 else 'interleave_layers__spectral_gfnet__dense_activation_silu__prompt.s'
    open(path, 'w').write(build(ks, launches))
    print('wrote', path)
```

```python
import copy
import os
import numpy as np
from asmlib import Kernel, f32bits
import gen as G
from gen import (prologue, lane_ids, xsum_g, fwd_epilogue, table_off, SRD_WS, SRD_TAB, SRD_A, SRD_B, SRD_C,
                 SRD_OUT, S, D, F)
from gen2 import vr, ar, bf16_round2, MF, MF16


def wg_map(k):
    k.I('s_cmp_ge_u32 s2, 256')
    k.I('s_cbranch_scc1 L_%s_end' % k.name)
    if os.environ.get('BADMAP', '0') == '1':
        k.I('s_lshr_b32 s40, s2, 3')
        k.I('s_and_b32 s41, s2, 7')
        return
    k.I('s_and_b32 s40, s2, 7')
    k.I('s_lshl_b32 s40, s40, 2')
    k.I('s_lshr_b32 s41, s2, 6')
    k.I('s_add_u32 s40, s40, s41')
    k.I('s_lshr_b32 s41, s2, 3')
    k.I('s_and_b32 s41, s41, 7')


def bcast(reg):
    if reg % 2 == 0:
        return vr(reg, 2), 0
    return vr(reg - 1, 2), 1


import os
PACE = int(os.environ.get('PACE', '12'))
PACE2 = int(os.environ.get('PACE2', '6'))
PACE3 = int(os.environ.get('PACE3', '10'))
SLEEP = int(os.environ.get('SLEEP', '2'))


def gen_g1(final):
    k = Kernel('g12b_kernel' if final else 'g12a_kernel')
    k.I('s_mov_b32 s60, %d' % (G.WS_STB if final else G.WS_ST))
    k.I('s_mov_b32 s65, %d' % (G.WS_W2FB if final else G.WS_W2FA))
    k.I('s_mov_b32 s66, %d' % (G.WS_HB if final else G.WS_H))
    V = 'b' if final else 'a'
    wg_map(k)
    k.stamp()
    REG = 26624
    TABL = 4 * REG
    RSL = TABL + 40 * 1024 + 3840
    assert (RSL + 256) % 4096 == 0
    assert table_off['G80I'] == table_off['TA'] + 22528

    def early():
        lane_ids(k, 2, 3, 44)
        k.I('v_and_b32 v4, 63, v0')
        k.I('v_lshlrev_b32 v8, 4, v4')
        G.dma_table(k, table_off['TA'], 37, TABL, 44, 8, 52)
    prologue(k, {SRD_OUT: (48, S * D * 2)}, early)
    dma_mark = k.mark()
    k.I('s_lshl_b32 s45, s40, 6')
    k.I('s_lshl_b32 s46, s44, 4')
    k.I('s_add_u32 s45, s45, s46')
    k.I('v_add_u32 v5, s45, v2')
    XF, ACC = 16, 96
    aZP, aTA, aG80 = 0, 84, 100
    k.I('v_lshlrev_b32 v7, 3, v5')
    k.I('s_mov_b32 s47, %d' % G.WS_ZP)
    k.I('buffer_load_dword v12, v7, %s, s60 offen' % SRD_WS)
    k.I('v_lshlrev_b32 v7, 4, v5')
    k.I('buffer_load_ushort v13, v7, %s, s47 offen' % SRD_WS)
    k.I('v_lshl_add_u32 v7, v3, 15, v7')
    for q in range(21):
        k.I('s_mov_b32 s47, %d' % (G.WS_ZP + q * 131072))
        k.I('buffer_load_dwordx4 %s, v7, %s, s47 offen' % (ar(aZP + 4 * q), SRD_WS))
    k.I('v_lshlrev_b32 v6, 6, v5')
    k.I('v_lshl_add_u32 v6, v3, 4, v6')
    x_issued = [0]

    def issue_x(upto):
        while x_issued[0] < min(upto, 20):
            q = x_issued[0]
            k.I('s_mov_b32 s47, %d' % (G.WS_XP + q * 131072))
            k.I('buffer_load_dwordx4 %s, v6, %s, s47 offen' % (vr(XF + 4 * q), SRD_WS))
            x_issued[0] += 1
    slots = [160 + 4 * i for i in range(24)] + [aZP + 4 * q for q in range(21)] + \
            [aTA + 4 * i for i in range(4)] + [aG80 + 4 * i for i in range(11)]
    w1reg = {}
    n = 0
    for t in range(20):
        for mt in range(3):
            w1reg[(t, mt)] = slots[n]
            n += 1
    k.I('s_mul_i32 s49, s41, 12')
    k.I('s_mul_i32 s50, s44, 3')
    k.I('s_add_u32 s49, s49, s50')
    k.I('s_and_b32 s53, s44, 1')
    k.I('s_add_u32 s50, s49, s53')
    k.I('s_add_u32 s51, s50, 1')
    k.I('s_lshl_b32 s54, s53, 1')
    k.I('s_sub_u32 s52, 2, s54')
    k.I('s_add_u32 s52, s52, s49')
    k.I('s_mov_b32 s56, s50')
    k.I('s_mov_b32 s57, s52')
    for mt in range(3):
        k.I('s_mul_i32 s%d, s%d, 20480' % (50 + mt, 50 + mt))
        k.I('s_add_u32 s%d, s%d, %d' % (50 + mt, 50 + mt, G.WS_W1F))
    w1_issued = [0]

    def issue_w1(upto):
        while w1_issued[0] < min(upto, 60):
            n = w1_issued[0]
            t, mt = n // 3, n % 3
            k.I('s_add_u32 s55, s%d, %d' % (50 + mt, (t // 4) * 4096))
            k.I('buffer_load_dwordx4 %s, v8, %s, s55 offen offset:%d' % (ar(w1reg[(t, mt)]), SRD_WS, (t % 4) * 1024))
            w1_issued[0] += 1
    k.stamp()
    k.I('v_lshlrev_b32 v9, 2, v3')
    k.I('v_sub_u32 v9, v2, v9')
    k.I('v_mov_b32 v14, 0x3f80')
    k.I('v_mov_b32 v15, 0x3f800000')
    k.I('v_cmp_eq_u32 vcc, 0, v9')
    k.I('v_cndmask_b32 v10, 0, v14, vcc')
    k.I('v_cmp_eq_u32 vcc, 1, v9')
    k.I('v_cndmask_b32 v10, v10, v15, vcc')
    k.I('v_cmp_eq_u32 vcc, 2, v9')
    k.I('v_cndmask_b32 v11, 0, v14, vcc')
    k.I('v_cmp_eq_u32 vcc, 3, v9')
    k.I('v_cndmask_b32 v11, v11, v15, vcc')
    k.I('s_mul_i32 s59, s44, %d' % REG)
    k.I('v_lshl_add_u32 v9, v3, 5, v2')
    k.I('v_mul_u32_u24 v9, 208, v9')
    k.I('v_add_u32 v9, s59, v9')
    k.I('v_add_u32 v4, %d, v8' % TABL)
    k.wait_mark(dma_mark)
    k.barrier()

    def rdTA(ch):
        for u in range(2):
            q = 2 * ch + u
            if q < 21:
                k.I('ds_read_b128 %s, v4 offset:%d' % (ar(aTA + 4 * (q % 4)), 1024 * q))
    rdTA(0)
    rdTA(1)
    k.I('v_lshlrev_b32 v13, 16, v13')
    k.I('v_fmac_f32 v13, 0x%x, v12' % f32bits(1.0 / 640))
    k.I('v_mov_b32 v14, v13')
    k.I('v_mov_b32 v15, v13')
    bf16_round2(k, 15, 13, 12)
    w1_cap = [24]

    def hook():
        if x_issued[0] < 20:
            issue_x(x_issued[0] + 1)
        elif w1_issued[0] < w1_cap[0]:
            issue_w1(w1_issued[0] + 1)
    k.pace_hook, k.pace_every = hook, PACE
    k.stamp()
    DT, QP = 96, 128

    def i1_mfma(ch):
        for u in range(4):
            k1 = 4 * ch + u
            if k1 <= 40:
                dt = DT + 4 * (k1 % 8)
                k.I('%s %s, %s, %s, 0' % (MF16, vr(dt), ar(aTA + 2 * (k1 % 8), 2), ar(aZP + 2 * k1, 2)))
    i1_mfma(0)
    for ch in range(12):
        qp = QP + 8 * (ch % 2)
        if ch + 1 < 11:
            i1_mfma(ch + 1)
        if ch + 2 < 11:
            rdTA(ch + 2)
        for u in range(4):
            k1 = 4 * ch + u
            if k1 <= 40:
                dt = DT + 4 * (k1 % 8)
                k.I('v_cvt_pk_bf16_f32 v%d, v%d, v%d' % (qp + u, dt, dt + 1))
                k.I('v_cvt_pk_bf16_f32 v%d, v%d, v%d' % (qp + 4 + u, dt + 2, dt + 3))
            else:
                k.I('v_mov_b32 v%d, 0' % (qp + u))
                k.I('v_mov_b32 v%d, 0' % (qp + 4 + u))
        k.I('ds_write_b128 v9, %s offset:%d' % (vr(qp), 16 * ch))
        k.I('ds_write_b128 v9, %s offset:%d' % (vr(qp + 4), 3328 + 16 * ch))
        if ch == 8:
            for q in range(15):
                k.I('ds_read_b128 %s, v4 offset:%d' % (ar(aG80 + 4 * q), 22528 + 1024 * q))
    k.stamp()
    k.wait_lgkm0()
    w1_cap[0] = 45
    CI = ACC + 4 * 39
    for r in range(4):
        k.I('v_sub_f32 v%d, 0, v15' % (CI + r))
    k.I('v_mul_u32_u24 v9, 208, v2')
    k.I('v_lshl_add_u32 v9, v3, 4, v9')
    k.I('v_add_u32 v9, s59, v9')
    k.I('v_add_u32 v12, s59, v8')
    GR = 4

    def bfrag(d2, t):
        if d2 % 2 == 0:
            return ar(84 + 4 * t)
        return [ar(96), vr(ACC + 4 * 37), vr(ACC + 4 * 38)][t] if d2 < 7 else [ar(96), vr(16), vr(20)][t]

    def rdQ(d2):
        for t in range(3):
            k.I('ds_read_b128 %s, v9 offset:%d' % (bfrag(d2, t), 3328 * d2 + 64 * t))
    xn_done = [0]

    def xn_upto(nq):
        while 2 * xn_done[0] + 1 < nq:
            t = xn_done[0]
            pk = PKX[t]
            for h in range(4):
                a = ACC + 8 * t + 2 * h
                k.I('v_cvt_pk_bf16_f32 v%d, v%d, v%d' % (pk + h, a, a + 1))
            k.I('ds_write_b128 v12, %s offset:%d' % (vr(pk), 1024 * t))
            k.I('%s %s, %s, %s, %s' % (MF, vr(GR), vr(pk), vr(pk), '0' if t == 0 else vr(GR)))
            xn_done[0] += 1
    PKX = {}
    for t in range(20):
        dnow = (2 * t + 1) // 5 + 1
        PKX[t] = ACC + 4 * (35 + t % 2) if dnow <= 6 else 24 + 4 * (t % 4)
    k.I('v_mov_b32 v13, v5')
    rdQ(0)
    for d2 in range(8):
        if d2 + 1 < 8:
            rdQ(d2 + 1)
        for t in range(3):
            for mt in range(5):
                a = ACC + 4 * (5 * d2 + mt)
                k.I('%s %s, %s, %s, %s' % (MF, vr(a), ar(aG80 + 4 * (3 * mt + t)), bfrag(d2, t), vr(CI) if t == 0 else vr(a)))
            if t == 0:
                xn_upto(5 * d2)
        issue_x(5 * (d2 // 2) + 5)
        for mt in range(5):
            a = ACC + 4 * (5 * d2 + mt)
            k.I('%s %s, v[10:11], %s, %s' % (MF16, vr(a), vr(XF + 4 * (5 * (d2 // 2) + mt) + 2 * (d2 % 2), 2), vr(a)))
    w1_cap[0] = 60
    k.pace_every = PACE2
    xn_upto(40)
    k.stamp()
    x1ops = ['s_mul_i32 s63, s41, 20']
    aX1 = 144

    def idx_add(r0, r1):
        return ('s_set_gpr_idx_on s63, 0x1', 'v_add_f32 v84, v%d, v15' % r0, 'v_add_f32 v85, v%d, v15' % r1,
                's_set_gpr_idx_off')
    for mt in range(5 if not final else 0):
        for h in range(2):
            x1ops += [idx_add(ACC + 4 * mt + 2 * h, ACC + 4 * mt + 2 * h + 1),
                      'v_cvt_pk_bf16_f32 v86, v84, v85', 'v_accvgpr_write_b32 a%d, v86' % (aX1 + 2 * mt + h)]
    if final:
        x1ops += ['s_mul_i32 s61, s41, 10', 's_lshr_b32 s62, s61, 4', 's_min_u32 s62, s62, 3',
                  's_lshl_b32 s63, s62, 2',
                  's_lshl_b32 s62, s62, 4', 's_sub_u32 s62, s62, s61',
                  'v_lshl_add_u32 v0, v3, 2, s62',
                  's_add_u32 s61, s59, 20480', 'v_mul_u32_u24 v1, 176, v2', 'v_add_u32 v1, s61, v1']
        for i in range(8):
            du = 16 * (i // 4) + i % 4
            for h in range(4):
                x1ops += [idx_add(ACC + 40 * h + i, ACC + 40 * h + 20 + i), 'v_cvt_pk_bf16_f32 v%d, v84, v85' % (88 + h)]
            x1ops += ['v_add_u32 v84, %d, v0' % du, 'v_lshl_add_u32 v85, v84, 4, v1',
                      ('v_cmp_gt_u32 vcc, 10, v84', 's_nop 1', 's_and_saveexec_b64 s[68:69], vcc',
                       'ds_write_b128 v85, v[88:91]', 's_mov_b64 exec, -1')]
        x1ops += ['v_lshl_add_u32 v1, v3, 3, v1']
        x1ops += [tuple(
                        ['ds_read_b64 a[%d:%d], v1 offset:%d' % (aX1 + 2 * mt, aX1 + 2 * mt + 1, 32 * mt) for mt in range(5)])]
    k.I('v_and_b32 v9, 3, v2')
    k.I('v_cmp_eq_u32 vcc, 1, v9')
    k.I('v_cndmask_b32 v4, v4, v5, vcc')
    k.I('v_cmp_eq_u32 vcc, 2, v9')
    k.I('v_cndmask_b32 v4, v4, v6, vcc')
    k.I('v_cmp_eq_u32 vcc, 3, v9')
    k.I('v_cndmask_b32 v4, v4, v7, vcc')
    k.I('v_sub_f32 v10, v14, v15')
    k.I('v_mul_f32 v12, 0x%x, v4' % f32bits(1.0 / 640))
    k.I('v_fma_f32 v12, -v10, v10, v12')
    bf16_round2(k, 11, 12, 13)
    k.I('v_add_f32 v12, 0x%x, v12' % f32bits(1e-5))
    bf16_round2(k, 11, 12, 13)
    k.I('v_sqrt_f32 v12, v12')
    bf16_round2(k, 11, 12, 13)
    k.I('v_rcp_f32 v12, v12')
    k.I('s_lshl_b32 s49, s44, 6')
    k.I('s_add_u32 s49, s49, %d' % RSL)
    k.I('v_lshl_add_u32 v13, v2, 2, s49')
    k.I('v_lshrrev_b32 v9, 2, v2')
    k.I('v_cmp_eq_u32 vcc, v9, v3')
    k.I('s_and_saveexec_b64 s[62:63], vcc')
    k.I('ds_write_b32 v13, v12')
    k.I('s_mov_b64 exec, -1')
    k.barrier()
    k.stamp()
    if not final:
        G.dma_table(k, table_off['G80F'], 15, TABL, 44, 8, 49)
    w2reg = {}
    for n in range(60):
        w2reg[(n // 5, n % 5)] = slots[n]
    k.I('s_mul_i32 s67, s41, %d' % (5 * 49152))
    k.I('s_mul_i32 s49, s44, %d' % (12 * 1024))
    k.I('s_add_u32 s67, s67, s49')
    k.I('s_add_u32 s67, s67, s65')
    w2_issued, w2_cap = [0], [0]

    def issue_w2(upto):
        while w2_issued[0] < min(upto, 60):
            n = w2_issued[0]
            ks, mt = n // 5, n % 5
            k.I('s_add_u32 s55, s67, %d' % (mt * 49152 + (ks // 4) * 4096))
            k.I('buffer_load_dwordx4 %s, v8, %s, s55 offen offset:%d' % (ar(w2reg[(ks, mt)]), SRD_WS, (ks % 4) * 1024))
            w2_issued[0] += 1

    def hook2():
        if w1_issued[0] < 60:
            issue_w1(w1_issued[0] + 1)
        elif w2_issued[0] < w2_cap[0]:
            issue_w2(w2_issued[0] + 1)
    k.pace_hook = hook2
    RSV = 92
    k.I('v_lshlrev_b32 v13, 2, v2')
    k.I('v_add_u32 v13, %d, v13' % RSL)
    for n2 in range(4):
        k.I('ds_read_b32 v%d, v13 offset:%d' % (RSV + n2, 64 * n2))
    A2, BB = 16, 64
    k.I('v_add_u32 v9, %d, v8' % (2 * REG))
    k.I('s_mov_b32 s58, 0x%x' % f32bits(-1.4426950408889634))
    k.I('s_lshl_b32 s45, s40, 2')
    k.I('s_mul_i32 s45, s45, 49152')
    k.I('s_add_u32 s45, s45, s66')
    k.I('s_lshr_b32 s46, s56, 1')
    k.I('s_lshl_b32 s46, s46, 10')
    k.I('s_add_u32 s46, s46, s45')
    k.I('s_lshr_b32 s48, s57, 1')
    k.I('s_lshl_b32 s48, s48, 10')
    k.I('s_add_u32 s48, s48, s45')
    EXL = RSL + 256
    k.I('s_lshl_b32 s49, s44, 11')
    k.I('s_add_u32 s49, s49, %d' % EXL)
    k.I('v_lshrrev_b32 v7, 1, v8')
    k.I('v_add_u32 v7, s49, v7')

    HO = 192

    def silu_ops(nt):
        ops = []
        for mt in range(3):
            for h in range(2):
                a = A2 + 4 * (3 * nt + mt) + 2 * h
                t0 = 176 + 4 * ((2 * mt + h) % 4)
                ops += ['v_mul_f32 v%d, v%d, v%d' % (a, a, RSV + nt),
                        'v_mul_f32 v%d, v%d, v%d' % (a + 1, a + 1, RSV + nt),
                        'v_cvt_pk_bf16_f32 v%d, v%d, v%d' % (t0, a, a + 1),
                        'v_lshlrev_b32 v%d, 16, v%d' % (a, t0),
                        'v_and_b32 v%d, 0xffff0000, v%d' % (a + 1, t0),
                        'v_mul_f32 v%d, s58, v%d' % (t0, a),
                        'v_mul_f32 v%d, s58, v%d' % (t0 + 1, a + 1),
                        'v_exp_f32 v%d, v%d' % (t0, t0),
                        'v_exp_f32 v%d, v%d' % (t0 + 1, t0 + 1),
                        'v_add_f32 v%d, 1.0, v%d' % (t0, t0),
                        'v_add_f32 v%d, 1.0, v%d' % (t0 + 1, t0 + 1),
                        'v_rcp_f32 v%d, v%d' % (t0, t0),
                        'v_rcp_f32 v%d, v%d' % (t0 + 1, t0 + 1),
                        'v_mul_f32 v%d, v%d, v%d' % (t0, t0, a),
                        'v_mul_f32 v%d, v%d, v%d' % (t0 + 1, t0 + 1, a + 1),
                        'v_cvt_pk_bf16_f32 v%d, v%d, v%d' % (HO + 8 * nt + 2 * mt + h, t0, t0 + 1)]
        ops += [('s_add_u32 s55, s46, %d' % (nt * 49152),
                 'buffer_store_dwordx4 %s, v8, %s, s55 offen sc1' % (vr(HO + 8 * nt), SRD_WS)),
                'ds_write_b64 v7, %s offset:%d' % (vr(HO + 8 * nt + 4, 2), 512 * nt)]
        return ops

    T1 = int(os.environ.get('T1', '15'))
    order = [(nt, t) for t in range(T1) for nt in range(4)] + [(nt, t) for nt in range(4) for t in range(T1, 20)]

    def rdB(i):
        nt, t = order[i]
        k.I('ds_read_b128 %s, v%d offset:%d' % (vr(BB + 4 * (i % 5)), 8 if nt < 2 else 9, (nt % 2) * REG + 1024 * t))
    for i in range(4):
        rdB(i)
    fill, fi = x1ops, 0
    for i, (nt, t) in enumerate(order):
        if i + 4 < 80:
            rdB(i + 4)
        if t == T1:
            while fi < len(fill):
                k.F(fill[fi])
                fi += 1
            fill, fi = (silu_ops(nt - 1) if nt else []), 0
        issue_w1(3 * t + 3)
        if t <= T1 and nt == 0:
            w2_cap[0] = 3 * t
            if w1_issued[0] == 60:
                k.pace_every = PACE3
        if t > T1 and nt == 3:
            w2_cap[0] = 3 * t
        for mt in range(3):
            a = A2 + 4 * (3 * nt + mt)
            k.I('%s %s, %s, %s, %s' % (MF, vr(a), ar(w1reg[(t, mt)]), vr(BB + 4 * (i % 5)), '0' if t == 0 else vr(a)))
            if t < T1:
                tgt = len(fill) * (3 * i + mt + 1) // (3 * 4 * T1 - 12)
                while fi < min(tgt, len(fill)):
                    k.F(fill[fi])
                    fi += 1
            if t >= T1:
                nm = 3 * (20 - T1)
                m = 3 * (t - T1) + mt + 1
                tgt = 0 if m < 4 else (len(fill) * (m - 3) + (nm - 4)) // (nm - 3)
                while fi < min(tgt, len(fill)):
                    k.F(fill[fi])
                    fi += 1
    while fi < len(fill):
        k.F(fill[fi])
        fi += 1
    assert w1_issued[0] == 60
    k.stamp()
    for op in silu_ops(3):
        k.F(op)
    k.pace_hook = None
    k.barrier()
    k.I('v_xor_b32 v7, 2048, v7')
    for nt in range(4):
        k.I('ds_read_b64 %s, v7 offset:%d' % (vr(HO + 8 * nt + 6, 2), 512 * nt))
    k.I('s_cmp_eq_u32 s53, 0')
    k.I('s_cselect_b64 exec, -1, 0')
    for nt in range(4):
        k.I('s_add_u32 s55, s48, %d' % (nt * 49152))
        k.I('buffer_store_dwordx4 %s, v8, %s, s55 offen sc1' % (vr(HO + 8 * nt + 4), SRD_WS))
    k.I('s_mov_b64 exec, -1')
    st_mark = k.mark()
    issue_w2(60)
    k.stamp()
    k.wait_mark(st_mark)
    k.I('s_barrier')
    k.I('s_lshl_b32 s49, s40, 8')
    k.I('s_add_u32 s49, s49, %d' % G.WS_CNT)
    k.I('v_mov_b32 v5, s49')
    k.I('v_mov_b32 v4, 1')
    k.I('s_cmp_eq_u32 s44, 0')
    k.I('s_cbranch_scc0 L_g12%s_go' % V)
    k.I('s_mov_b64 exec, 1')
    k.raw('    buffer_atomic_add v4, v5, %s, 0 offen' % SRD_WS)
    k.I('s_mov_b32 s49, 0')
    k.out.append('L_g12%s_poll:' % V)
    k.I('s_sleep %d' % SLEEP)
    k.raw('    buffer_load_dword v4, v5, %s, 0 offen sc1' % SRD_WS)
    k.I('s_waitcnt vmcnt(0)')
    k.I('v_readfirstlane_b32 s50, v4')
    k.I('s_add_u32 s49, s49, 1')
    k.I('s_cmp_ge_u32 s50, 8')
    k.I('s_cbranch_scc1 L_g12%s_go0' % V)
    k.I('s_cmp_lt_u32 s49, 0x80000')
    k.I('s_cbranch_scc1 L_g12%s_poll' % V)
    k.out.append('L_g12%s_go0:' % V)
    k.I('s_mov_b64 exec, -1')
    k.label('L_g12%s_go' % V)
    k.I('s_barrier')
    k.stamp()
    AC2, HR = 16, 96
    k.I('s_mul_i32 s47, s40, %d' % (4 * 49152))
    k.I('s_mul_i32 s49, s44, %d' % (12 * 1024))
    k.I('s_add_u32 s47, s47, s49')
    k.I('s_add_u32 s47, s47, s66')

    def issue_h(i):
        nt, ks = i // 12, i % 12
        k.I('s_add_u32 s55, s47, %d' % (nt * 49152 + (ks // 4) * 4096))
        k.I('buffer_load_dwordx4 %s, v8, %s, s55 offen offset:%d sc1' % (vr(HR + 4 * (i % 40)), SRD_WS, (ks % 4) * 1024))
    for i in range(40):
        issue_h(i)
    k.I('s_lshl_b32 s48, s40, 6')
    k.I('s_lshl_b32 s46, s44, 4')
    k.I('s_add_u32 s48, s48, s46')
    k.I('v_add_u32 v5, s48, v2')
    k.I('s_mov_b32 s48, 1280')
    k.I('v_mul_lo_u32 v6, v5, s48')
    k.I('v_lshl_add_u32 v6, v3, 3, v6')
    k.I('s_mul_i32 s49, s41, 160')
    k.I('v_add_u32 v6, s49, v6')
    k.I('s_mul_i32 s46, s44, 20480')
    k.I('v_add_u32 v9, s46, v8')
    for nt in range(4):
        for ks in range(12):
            i = 12 * nt + ks
            for mt in range(5):
                a = AC2 + 4 * (5 * nt + mt)
                k.I('%s %s, %s, %s, %s' % (MF, vr(a), ar(w2reg[(ks, mt)]), vr(HR + 4 * (i % 40)), '0' if ks == 0 else vr(a)))
            if i + 40 < 48:
                issue_h(i + 40)
            if nt > 0 and 2 <= ks < 7:
                q = 5 * (nt - 1) + ks - 2
                k.I('ds_write_b128 v9, %s offset:%d' % (vr(AC2 + 4 * q), 1024 * q))
    k.stamp()
    X1 = 96
    for q in range(15, 20):
        k.I('ds_write_b128 v9, %s offset:%d' % (vr(AC2 + 4 * q), 1024 * q))
    k.barrier()
    k.I('s_mul_i32 s46, s44, 5120')
    k.I('v_add_u32 v9, s46, v8')
    k.I('v_add_u32 v10, 40960, v9')
    for src in range(4):
        for mt in range(5):
            k.I('ds_read_b128 %s, v%d offset:%d' % (vr(AC2 + 20 * src + 4 * mt), 9 if src < 2 else 10,
                                                    (src % 2) * 20480 + 1024 * mt))
    G80 = 112
    k.I('v_add_u32 v10, %d, v8' % TABL)
    for q in range(15 if not final else 0):
        k.I('ds_read_b128 %s, v10 offset:%d' % (vr(G80 + 4 * q), 1024 * q))
    for q in range(10):
        k.I('v_pk_add_f32 %s, %s, %s' % (vr(AC2 + 2 * q, 2), vr(AC2 + 2 * q, 2), vr(AC2 + 20 + 2 * q, 2)))
        k.I('v_pk_add_f32 %s, %s, %s' % (vr(AC2 + 40 + 2 * q, 2), vr(AC2 + 40 + 2 * q, 2), vr(AC2 + 60 + 2 * q, 2)))
    for q in range(10):
        k.I('v_pk_add_f32 %s, %s, %s' % (vr(AC2 + 2 * q, 2), vr(AC2 + 2 * q, 2), vr(AC2 + 40 + 2 * q, 2)))
    k.stamp()
    k.wait_vm0()
    k.wait_lgkm0()
    for q in range(10):
        k.I('v_accvgpr_read_b32 v%d, a%d' % (X1 + q, aX1 + q))
    U = AC2 + 20
    PK = AC2 + 40
    for q in range(10):
        bf16_round2(k, AC2 + 2 * q, AC2 + 2 * q + 1, 10)
        k.I('v_lshlrev_b32 v%d, 16, v%d' % (U + 2 * q, X1 + q))
        k.I('v_and_b32 v%d, 0xffff0000, v%d' % (U + 2 * q + 1, X1 + q))
        k.I('v_pk_add_f32 %s, %s, %s' % (vr(AC2 + 2 * q, 2), vr(AC2 + 2 * q, 2), vr(U + 2 * q, 2)))
        k.I('v_cvt_pk_bf16_f32 v%d, v%d, v%d' % (PK + q, AC2 + 2 * q, AC2 + 2 * q + 1))
    if final:
        for mt in range(5):
            k.I('buffer_store_dwordx2 %s, v6, %s, 0 offen offset:%d' % (vr(PK + 2 * mt, 2), SRD_OUT, 32 * mt))
    else:
        k.I('v_lshlrev_b32 v7, 6, v5')
        k.I('v_lshl_add_u32 v7, v3, 4, v7')
        k.I('s_lshr_b32 s51, s41, 1')
        k.I('s_mul_i32 s51, s51, %d' % (5 * 131072))
        k.I('s_and_b32 s50, s41, 1')
        k.I('s_lshl_b32 s50, s50, 3')
        k.I('s_add_u32 s51, s51, s50')
        for mt in range(5):
            k.I('s_add_u32 s50, s51, %d' % (G.WS_XP + mt * 131072))
            k.I('buffer_store_dwordx2 %s, v7, %s, s50 offen' % (vr(PK + 2 * mt, 2), SRD_WS))
        for q in range(10):
            k.I('v_lshlrev_b32 v%d, 16, v%d' % (AC2 + 2 * q, PK + q))
            k.I('v_and_b32 v%d, 0xffff0000, v%d' % (AC2 + 2 * q + 1, PK + q))
        k.I('v_lshlrev_b32 v7, 2, v5')
        k.I('v_lshl_add_u32 v7, v3, 17, v7')
        k.I('v_cmp_eq_u32 vcc, 0, v3')
        k.I('v_add_u32 v9, %d, v7' % (40 * 65536))
        k.I('v_cndmask_b32 v11, v7, v9, vcc')
        k.I('v_lshlrev_b32 v9, 3, v5')
        k.I('s_lshl_b32 s52, s41, 13')
        k.I('s_add_u32 s52, s52, %d' % G.WS_P)
        k.I('s_mov_b32 s53, %d' % G.WS_STB)
        fwd_epilogue(k, AC2, 176, lambda mo, t: vr(G80 + 4 * (3 * mo + t)), 7, 11, 9, 55, 52)
    k.stamp()
    k.wait_vm0()
    k.stamp_flush(3 if final else 2, 44, SRD_WS)
    k.label('L_%s_end' % k.name)
    k.I('s_endpgm')
    return k, 256, RSL + 256 + 8192


def gen_g2(final):
    k = Kernel('g2b_kernel' if final else 'g2a_kernel')
    wg_map(k)
    k.stamp()
    prologue(k, {SRD_OUT: (48, S * D * 2)} if final else {})
    lane_ids(k, 2, 3, 44)
    k.I('v_and_b32 v4, 63, v0')
    k.I('v_lshlrev_b32 v8, 4, v4')
    ACC = 16
    k.I('s_mul_i32 s45, s41, %d' % (5 * 49152))
    k.I('s_mul_i32 s46, s44, %d' % (12 * 1024))
    k.I('s_add_u32 s45, s45, s46')
    k.I('s_add_u32 s45, s45, %d' % (G.WS_W2FB if final else G.WS_W2FA))
    k.I('s_mul_i32 s47, s40, %d' % (4 * 49152))
    k.I('s_add_u32 s47, s47, s46')
    k.I('s_add_u32 s47, s47, %d' % G.WS_H)
    NS = 7

    def issue(ks):
        sl = 36 * (ks % NS)
        for mt in range(5):
            k.I('s_add_u32 s55, s45, %d' % (mt * 49152 + (ks // 4) * 4096))
            k.I('buffer_load_dwordx4 %s, v8, %s, s55 offen offset:%d' % (ar(sl + 4 * mt), SRD_WS, (ks % 4) * 1024))
        for nt in range(4):
            k.I('s_add_u32 s55, s47, %d' % (nt * 49152 + (ks // 4) * 4096))
            k.I('buffer_load_dwordx4 %s, v8, %s, s55 offen offset:%d' % (ar(sl + 20 + 4 * nt), SRD_WS, (ks % 4) * 1024))
    for ks in range(NS - 1):
        issue(ks)
    k.I('s_lshl_b32 s48, s40, 6')
    k.I('s_lshl_b32 s46, s44, 4')
    k.I('s_add_u32 s48, s48, s46')
    k.I('v_add_u32 v5, s48, v2')
    X1 = 96
    G80 = 112
    if final:
        k.I('s_mov_b32 s48, 1280')
        k.I('v_mul_lo_u32 v6, v5, s48')
        k.I('v_lshl_add_u32 v6, v3, 3, v6')
        k.I('s_mul_i32 s49, s41, 160')
        k.I('v_add_u32 v6, s49, v6')
        k.I('s_mov_b32 s50, %d' % G.WS_X1N)
        for mt in range(5):
            k.I('buffer_load_dwordx2 %s, v6, %s, s50 offen offset:%d' % (vr(X1 + 2 * mt, 2), SRD_WS, 32 * mt))
    else:
        k.I('v_lshlrev_b32 v6, 5, v5')
        k.I('v_lshl_add_u32 v6, v3, 3, v6')
        k.I('s_mul_i32 s49, s41, %d' % (5 * 65536))
        for mt in range(5):
            k.I('s_add_u32 s50, s49, %d' % (G.WS_X1P + mt * 65536))
            k.I('buffer_load_dwordx2 %s, v6, %s, s50 offen' % (vr(X1 + 2 * mt, 2), SRD_WS))
    issue(NS - 1)
    k.stamp()
    for ks in range(12):
        sl = 36 * (ks % NS)
        for nt in range(4):
            for mt in range(5):
                a = ACC + 4 * (5 * nt + mt)
                k.I('%s %s, %s, %s, %s' % (MF, vr(a), ar(sl + 4 * mt), ar(sl + 20 + 4 * nt), '0' if ks == 0 else vr(a)))
        if ks in (0, 5):
            k.stamp()
        if ks + NS < 12:
            issue(ks + NS)
        if ks == 5 and not final:
            for q in range(15):
                if q % 4 == 0:
                    k.I('s_mov_b32 s50, %d' % (table_off['G80F'] + q * 1024))
                k.I('buffer_load_dwordx4 %s, v8, %s, s50 offen offset:%d' % (vr(G80 + 4 * q), SRD_TAB, 1024 * (q % 4)))
    k.stamp()
    k.I('s_mul_i32 s46, s44, 20480')
    k.I('v_add_u32 v9, s46, v8')
    for q in range(20):
        k.I('ds_write_b128 v9, %s offset:%d' % (vr(ACC + 4 * q), 1024 * q))
    k.barrier()
    k.I('s_mul_i32 s46, s44, 5120')
    k.I('v_add_u32 v9, s46, v8')
    k.I('v_add_u32 v10, 40960, v9')
    for src in range(4):
        for mt in range(5):
            k.I('ds_read_b128 %s, v%d offset:%d' % (vr(ACC + 20 * src + 4 * mt), 9 if src < 2 else 10,
                                                    (src % 2) * 20480 + 1024 * mt))
    for q in range(10):
        k.I('v_pk_add_f32 %s, %s, %s' % (vr(ACC + 2 * q, 2), vr(ACC + 2 * q, 2), vr(ACC + 20 + 2 * q, 2)))
        k.I('v_pk_add_f32 %s, %s, %s' % (vr(ACC + 40 + 2 * q, 2), vr(ACC + 40 + 2 * q, 2), vr(ACC + 60 + 2 * q, 2)))
    for q in range(10):
        k.I('v_pk_add_f32 %s, %s, %s' % (vr(ACC + 2 * q, 2), vr(ACC + 2 * q, 2), vr(ACC + 40 + 2 * q, 2)))
    k.stamp()
    U = ACC + 20
    PK = ACC + 40
    for q in range(10):
        bf16_round2(k, ACC + 2 * q, ACC + 2 * q + 1, 10)
        k.I('v_lshlrev_b32 v%d, 16, v%d' % (U + 2 * q, X1 + q))
        k.I('v_and_b32 v%d, 0xffff0000, v%d' % (U + 2 * q + 1, X1 + q))
        k.I('v_pk_add_f32 %s, %s, %s' % (vr(ACC + 2 * q, 2), vr(ACC + 2 * q, 2), vr(U + 2 * q, 2)))
        k.I('v_cvt_pk_bf16_f32 v%d, v%d, v%d' % (PK + q, ACC + 2 * q, ACC + 2 * q + 1))
    if final:
        for mt in range(5):
            k.I('buffer_store_dwordx2 %s, v6, %s, 0 offen offset:%d' % (vr(PK + 2 * mt, 2), SRD_OUT, 32 * mt))
    else:
        k.I('v_lshlrev_b32 v7, 1, v6')
        k.I('s_lshr_b32 s51, s41, 1')
        k.I('s_mul_i32 s51, s51, %d' % (5 * 131072))
        k.I('s_and_b32 s50, s41, 1')
        k.I('s_lshl_b32 s50, s50, 3')
        k.I('s_add_u32 s51, s51, s50')
        for mt in range(5):
            k.I('s_add_u32 s50, s51, %d' % (G.WS_XP + mt * 131072))
            k.I('buffer_store_dwordx2 %s, v7, %s, s50 offen' % (vr(PK + 2 * mt, 2), SRD_WS))
        for q in range(10):
            k.I('v_lshlrev_b32 v%d, 16, v%d' % (ACC + 2 * q, PK + q))
            k.I('v_and_b32 v%d, 0xffff0000, v%d' % (ACC + 2 * q + 1, PK + q))
        k.I('v_lshlrev_b32 v7, 2, v5')
        k.I('v_lshl_add_u32 v7, v3, 17, v7')
        k.I('v_cmp_eq_u32 vcc, 0, v3')
        k.I('v_add_u32 v9, %d, v7' % (40 * 65536))
        k.I('v_cndmask_b32 v11, v7, v9, vcc')
        k.I('v_lshlrev_b32 v9, 3, v5')
        k.I('s_lshl_b32 s52, s41, 13')
        k.I('s_add_u32 s52, s52, %d' % G.WS_P)
        k.I('s_mov_b32 s53, %d' % G.WS_STB)
        fwd_epilogue(k, ACC, 176, lambda mo, t: vr(G80 + 4 * (3 * mo + t)), 7, 11, 9, 55, 52)
    k.stamp()
    k.wait_vm0()
    k.stamp_flush(4 if final else 3, 44, SRD_WS)
    k.label('L_%s_end' % k.name)
    k.I('s_endpgm')
    return k, 256, 81920


def gemm_kernels(ks, launches, cl):
    g1 = gen_g1(False)
    g1b = gen_g1(True)
    ks.append(g1[0])
    ks.append(g1b[0])
    launches += [(g1[0].name, g1[1], g1[2]), cl, (g1b[0].name, g1b[1], g1b[2])]
```

```python
import copy
import os
import numpy as np
from asmlib import Kernel, f32bits
import gen as G
from gen import (prologue, lane_ids, xsum_g, fwd_epilogue, table_off, SRD_WS, SRD_TAB, SRD_A, SRD_B, SRD_C,
                 SRD_OUT, S, D, F)
from gen2 import vr, ar, bf16_round2, MF, MF16


def wg_map(k):
    k.I('s_cmp_ge_u32 s2, 256')
    k.I('s_cbranch_scc1 L_%s_end' % k.name)
    if os.environ.get('BADMAP', '0') == '2':
        k.I('s_and_b32 s42, s2, 7')
        k.I('s_lshr_b32 s43, s2, 3')
        k.I('s_lshr_b32 s40, s42, 1')
        k.I('s_lshl_b32 s40, s40, 3')
        k.I('s_lshr_b32 s41, s43, 2')
        k.I('s_add_u32 s40, s40, s41')
        k.I('s_and_b32 s41, s42, 1')
        k.I('s_lshl_b32 s41, s41, 2')
        k.I('s_and_b32 s43, s43, 3')
        k.I('s_add_u32 s41, s41, s43')
        return
    if os.environ.get('BADMAP', '0') == '1':
        k.I('s_lshr_b32 s40, s2, 3')
        k.I('s_and_b32 s41, s2, 7')
        return
    k.I('s_and_b32 s40, s2, 7')
    k.I('s_lshl_b32 s40, s40, 2')
    k.I('s_lshr_b32 s41, s2, 6')
    k.I('s_add_u32 s40, s40, s41')
    k.I('s_lshr_b32 s41, s2, 3')
    k.I('s_and_b32 s41, s41, 7')


def bcast(reg):
    if reg % 2 == 0:
        return vr(reg, 2), 0
    return vr(reg - 1, 2), 1


import os
PACE = int(os.environ.get('PACE', '12'))
PACE2 = int(os.environ.get('PACE2', '6'))
PACE3 = int(os.environ.get('PACE3', '10'))
SLEEP = int(os.environ.get('SLEEP', '2'))


def gen_g1(final):
    k = Kernel('g12b_kernel' if final else 'g12a_kernel')
    k.I('s_mov_b32 s60, %d' % (G.WS_STB if final else G.WS_ST))
    k.I('s_mov_b32 s65, %d' % (G.WS_W2FB if final else G.WS_W2FA))
    k.I('s_mov_b32 s66, %d' % (G.WS_HB if final else G.WS_H))
    V = 'b' if final else 'a'
    wg_map(k)
    k.stamp()
    REG = 26624
    TABL = 4 * REG
    RSL = TABL + 40 * 1024 + 3840
    assert (RSL + 256) % 4096 == 0
    assert table_off['G80I'] == table_off['TA'] + 22528

    def early():
        lane_ids(k, 2, 3, 44)
        k.I('v_and_b32 v4, 63, v0')
        k.I('v_lshlrev_b32 v8, 4, v4')
        G.dma_table(k, table_off['TA'], 37, TABL, 44, 8, 52)
    prologue(k, {SRD_OUT: (48, S * D * 2)}, early)
    dma_mark = k.mark()
    k.I('s_lshl_b32 s45, s40, 6')
    k.I('s_lshl_b32 s46, s44, 4')
    k.I('s_add_u32 s45, s45, s46')
    k.I('v_add_u32 v5, s45, v2')
    XF, ACC = 16, 96
    aZP, aTA, aG80 = 0, 84, 100
    k.I('v_lshlrev_b32 v7, 3, v5')
    k.I('s_mov_b32 s47, %d' % G.WS_ZP)
    k.I('buffer_load_dword v12, v7, %s, s60 offen' % SRD_WS)
    k.I('v_lshlrev_b32 v7, 4, v5')
    k.I('buffer_load_ushort v13, v7, %s, s47 offen' % SRD_WS)
    k.I('v_lshl_add_u32 v7, v3, 15, v7')
    for q in range(21):
        k.I('s_mov_b32 s47, %d' % (G.WS_ZP + q * 131072))
        k.I('buffer_load_dwordx4 %s, v7, %s, s47 offen' % (ar(aZP + 4 * q), SRD_WS))
    k.I('v_lshlrev_b32 v6, 6, v5')
    k.I('v_lshl_add_u32 v6, v3, 4, v6')
    x_issued = [0]

    def issue_x(upto):
        while x_issued[0] < min(upto, 20):
            q = x_issued[0]
            k.I('s_mov_b32 s47, %d' % (G.WS_XP + q * 131072))
            k.I('buffer_load_dwordx4 %s, v6, %s, s47 offen' % (vr(XF + 4 * q), SRD_WS))
            x_issued[0] += 1
    slots = [160 + 4 * i for i in range(24)] + [aZP + 4 * q for q in range(21)] + \
            [aTA + 4 * i for i in range(4)] + [aG80 + 4 * i for i in range(11)]
    w1reg = {}
    n = 0
    for t in range(20):
        for mt in range(3):
            w1reg[(t, mt)] = slots[n]
            n += 1
    k.I('s_mul_i32 s49, s41, 12')
    k.I('s_mul_i32 s50, s44, 3')
    k.I('s_add_u32 s49, s49, s50')
    k.I('s_and_b32 s53, s44, 1')
    k.I('s_add_u32 s50, s49, s53')
    k.I('s_add_u32 s51, s50, 1')
    k.I('s_lshl_b32 s54, s53, 1')
    k.I('s_sub_u32 s52, 2, s54')
    k.I('s_add_u32 s52, s52, s49')
    k.I('s_mov_b32 s56, s50')
    k.I('s_mov_b32 s57, s52')
    for mt in range(3):
        k.I('s_mul_i32 s%d, s%d, 20480' % (50 + mt, 50 + mt))
        k.I('s_add_u32 s%d, s%d, %d' % (50 + mt, 50 + mt, G.WS_W1F))
    w1_issued = [0]

    def issue_w1(upto):
        while w1_issued[0] < min(upto, 60):
            n = w1_issued[0]
            t, mt = n // 3, n % 3
            k.I('s_add_u32 s55, s%d, %d' % (50 + mt, (t // 4) * 4096))
            k.I('buffer_load_dwordx4 %s, v8, %s, s55 offen offset:%d' % (ar(w1reg[(t, mt)]), SRD_WS, (t % 4) * 1024))
            w1_issued[0] += 1
    k.stamp()
    k.I('v_lshlrev_b32 v9, 2, v3')
    k.I('v_sub_u32 v9, v2, v9')
    k.I('v_mov_b32 v14, 0x3f80')
    k.I('v_mov_b32 v15, 0x3f800000')
    k.I('v_cmp_eq_u32 vcc, 0, v9')
    k.I('v_cndmask_b32 v10, 0, v14, vcc')
    k.I('v_cmp_eq_u32 vcc, 1, v9')
    k.I('v_cndmask_b32 v10, v10, v15, vcc')
    k.I('v_cmp_eq_u32 vcc, 2, v9')
    k.I('v_cndmask_b32 v11, 0, v14, vcc')
    k.I('v_cmp_eq_u32 vcc, 3, v9')
    k.I('v_cndmask_b32 v11, v11, v15, vcc')
    k.I('s_mul_i32 s59, s44, %d' % REG)
    k.I('v_lshl_add_u32 v9, v3, 5, v2')
    k.I('v_mul_u32_u24 v9, 208, v9')
    k.I('v_add_u32 v9, s59, v9')
    k.I('v_add_u32 v4, %d, v8' % TABL)
    k.wait_mark(dma_mark)
    k.barrier()

    def rdTA(ch):
        for u in range(2):
            q = 2 * ch + u
            if q < 21:
                k.I('ds_read_b128 %s, v4 offset:%d' % (ar(aTA + 4 * (q % 4)), 1024 * q))
    rdTA(0)
    rdTA(1)
    k.I('v_lshlrev_b32 v13, 16, v13')
    k.I('v_fmac_f32 v13, 0x%x, v12' % f32bits(1.0 / 640))
    k.I('v_mov_b32 v14, v13')
    k.I('v_mov_b32 v15, v13')
    bf16_round2(k, 15, 13, 12)
    w1_cap = [24]

    def hook():
        if x_issued[0] < 20:
            issue_x(x_issued[0] + 1)
        elif w1_issued[0] < w1_cap[0]:
            issue_w1(w1_issued[0] + 1)
    k.pace_hook, k.pace_every = hook, PACE
    k.stamp()
    DT, QP = 96, 128

    def i1_mfma(ch):
        for u in range(4):
            k1 = 4 * ch + u
            if k1 <= 40:
                dt = DT + 4 * (k1 % 8)
                k.I('%s %s, %s, %s, 0' % (MF16, vr(dt), ar(aTA + 2 * (k1 % 8), 2), ar(aZP + 2 * k1, 2)))
    i1_mfma(0)
    for ch in range(12):
        qp = QP + 8 * (ch % 2)
        if ch + 1 < 11:
            i1_mfma(ch + 1)
        if ch + 2 < 11:
            rdTA(ch + 2)
        for u in range(4):
            k1 = 4 * ch + u
            if k1 <= 40:
                dt = DT + 4 * (k1 % 8)
                k.I('v_cvt_pk_bf16_f32 v%d, v%d, v%d' % (qp + u, dt, dt + 1))
                k.I('v_cvt_pk_bf16_f32 v%d, v%d, v%d' % (qp + 4 + u, dt + 2, dt + 3))
            else:
                k.I('v_mov_b32 v%d, 0' % (qp + u))
                k.I('v_mov_b32 v%d, 0' % (qp + 4 + u))
        k.I('ds_write_b128 v9, %s offset:%d' % (vr(qp), 16 * ch))
        k.I('ds_write_b128 v9, %s offset:%d' % (vr(qp + 4), 3328 + 16 * ch))
        if ch == 8:
            for q in range(15):
                k.I('ds_read_b128 %s, v4 offset:%d' % (ar(aG80 + 4 * q), 22528 + 1024 * q))
    k.stamp()
    k.wait_lgkm0()
    w1_cap[0] = 45
    CI = ACC + 4 * 39
    for r in range(4):
        k.I('v_sub_f32 v%d, 0, v15' % (CI + r))
    k.I('v_mul_u32_u24 v9, 208, v2')
    k.I('v_lshl_add_u32 v9, v3, 4, v9')
    k.I('v_add_u32 v9, s59, v9')
    k.I('v_add_u32 v12, s59, v8')
    GR = 4

    def bfrag(d2, t):
        if d2 % 2 == 0:
            return ar(84 + 4 * t)
        return [ar(96), vr(ACC + 4 * 37), vr(ACC + 4 * 38)][t] if d2 < 7 else [ar(96), vr(16), vr(20)][t]

    def rdQ(d2):
        for t in range(3):
            k.I('ds_read_b128 %s, v9 offset:%d' % (bfrag(d2, t), 3328 * d2 + 64 * t))
    xn_done = [0]

    def xn_upto(nq):
        while 2 * xn_done[0] + 1 < nq:
            t = xn_done[0]
            pk = PKX[t]
            for h in range(4):
                a = ACC + 8 * t + 2 * h
                k.I('v_cvt_pk_bf16_f32 v%d, v%d, v%d' % (pk + h, a, a + 1))
            k.I('ds_write_b128 v12, %s offset:%d' % (vr(pk), 1024 * t))
            k.I('%s %s, %s, %s, %s' % (MF, vr(GR), vr(pk), vr(pk), '0' if t == 0 else vr(GR)))
            xn_done[0] += 1
    PKX = {}
    for t in range(20):
        dnow = (2 * t + 1) // 5 + 1
        PKX[t] = ACC + 4 * (35 + t % 2) if dnow <= 6 else 24 + 4 * (t % 4)
    k.I('v_mov_b32 v13, v5')
    rdQ(0)
    for d2 in range(8):
        if d2 + 1 < 8:
            rdQ(d2 + 1)
        for t in range(3):
            for mt in range(5):
                a = ACC + 4 * (5 * d2 + mt)
                k.I('%s %s, %s, %s, %s' % (MF, vr(a), ar(aG80 + 4 * (3 * mt + t)), bfrag(d2, t), vr(CI) if t == 0 else vr(a)))
            if t == 0:
                xn_upto(5 * d2)
        issue_x(5 * (d2 // 2) + 5)
        for mt in range(5):
            a = ACC + 4 * (5 * d2 + mt)
            k.I('%s %s, v[10:11], %s, %s' % (MF16, vr(a), vr(XF + 4 * (5 * (d2 // 2) + mt) + 2 * (d2 % 2), 2), vr(a)))
    w1_cap[0] = 60
    k.pace_every = PACE2
    xn_upto(40)
    k.stamp()
    x1ops = ['s_mul_i32 s63, s41, 20']
    aX1 = 144

    def idx_add(r0, r1):
        return ('s_set_gpr_idx_on s63, 0x1', 'v_add_f32 v84, v%d, v15' % r0, 'v_add_f32 v85, v%d, v15' % r1,
                's_set_gpr_idx_off')
    for mt in range(5 if not final else 0):
        for h in range(2):
            x1ops += [idx_add(ACC + 4 * mt + 2 * h, ACC + 4 * mt + 2 * h + 1),
                      'v_cvt_pk_bf16_f32 v86, v84, v85', 'v_accvgpr_write_b32 a%d, v86' % (aX1 + 2 * mt + h)]
    if final:
        x1ops += ['s_mul_i32 s61, s41, 10', 's_lshr_b32 s62, s61, 4', 's_min_u32 s62, s62, 3',
                  's_lshl_b32 s63, s62, 2',
                  's_lshl_b32 s62, s62, 4', 's_sub_u32 s62, s62, s61',
                  'v_lshl_add_u32 v0, v3, 2, s62',
                  's_add_u32 s61, s59, 20480', 'v_mul_u32_u24 v1, 176, v2', 'v_add_u32 v1, s61, v1']
        for i in range(8):
            du = 16 * (i // 4) + i % 4
            for h in range(4):
                x1ops += [idx_add(ACC + 40 * h + i, ACC + 40 * h + 20 + i), 'v_cvt_pk_bf16_f32 v%d, v84, v85' % (88 + h)]
            x1ops += ['v_add_u32 v84, %d, v0' % du, 'v_lshl_add_u32 v85, v84, 4, v1',
                      ('v_cmp_gt_u32 vcc, 10, v84', 's_nop 1', 's_and_saveexec_b64 s[68:69], vcc',
                       'ds_write_b128 v85, v[88:91]', 's_mov_b64 exec, -1')]
        x1ops += ['v_lshl_add_u32 v1, v3, 3, v1']
        x1ops += [tuple(
                        ['ds_read_b64 a[%d:%d], v1 offset:%d' % (aX1 + 2 * mt, aX1 + 2 * mt + 1, 32 * mt) for mt in range(5)])]
    k.I('v_and_b32 v9, 3, v2')
    k.I('v_cmp_eq_u32 vcc, 1, v9')
    k.I('v_cndmask_b32 v4, v4, v5, vcc')
    k.I('v_cmp_eq_u32 vcc, 2, v9')
    k.I('v_cndmask_b32 v4, v4, v6, vcc')
    k.I('v_cmp_eq_u32 vcc, 3, v9')
    k.I('v_cndmask_b32 v4, v4, v7, vcc')
    k.I('v_sub_f32 v10, v14, v15')
    k.I('v_mul_f32 v12, 0x%x, v4' % f32bits(1.0 / 640))
    k.I('v_fma_f32 v12, -v10, v10, v12')
    bf16_round2(k, 11, 12, 13)
    k.I('v_add_f32 v12, 0x%x, v12' % f32bits(1e-5))
    bf16_round2(k, 11, 12, 13)
    k.I('v_sqrt_f32 v12, v12')
    bf16_round2(k, 11, 12, 13)
    k.I('v_rcp_f32 v12, v12')
    k.I('s_lshl_b32 s49, s44, 6')
    k.I('s_add_u32 s49, s49, %d' % RSL)
    k.I('v_lshl_add_u32 v13, v2, 2, s49')
    k.I('v_lshrrev_b32 v9, 2, v2')
    k.I('v_cmp_eq_u32 vcc, v9, v3')
    k.I('s_and_saveexec_b64 s[62:63], vcc')
    k.I('ds_write_b32 v13, v12')
    k.I('s_mov_b64 exec, -1')
    k.barrier()
    k.stamp()
    if not final:
        G.dma_table(k, table_off['G80F'], 15, TABL, 44, 8, 49)
    w2reg = {}
    for n in range(60):
        w2reg[(n // 5, n % 5)] = slots[n]
    k.I('s_mul_i32 s67, s41, %d' % (5 * 49152))
    k.I('s_mul_i32 s49, s44, %d' % (12 * 1024))
    k.I('s_add_u32 s67, s67, s49')
    k.I('s_add_u32 s67, s67, s65')
    w2_issued, w2_cap = [0], [0]

    def issue_w2(upto):
        while w2_issued[0] < min(upto, 60):
            n = w2_issued[0]
            ks, mt = n // 5, n % 5
            k.I('s_add_u32 s55, s67, %d' % (mt * 49152 + (ks // 4) * 4096))
            k.I('buffer_load_dwordx4 %s, v8, %s, s55 offen offset:%d' % (ar(w2reg[(ks, mt)]), SRD_WS, (ks % 4) * 1024))
            w2_issued[0] += 1

    def hook2():
        if w1_issued[0] < 60:
            issue_w1(w1_issued[0] + 1)
        elif w2_issued[0] < w2_cap[0]:
            issue_w2(w2_issued[0] + 1)
    k.pace_hook = hook2
    RSV = 92
    k.I('v_lshlrev_b32 v13, 2, v2')
    k.I('v_add_u32 v13, %d, v13' % RSL)
    for n2 in range(4):
        k.I('ds_read_b32 v%d, v13 offset:%d' % (RSV + n2, 64 * n2))
    A2, BB = 16, 64
    k.I('v_add_u32 v9, %d, v8' % (2 * REG))
    k.I('s_mov_b32 s58, 0x%x' % f32bits(-1.4426950408889634))
    k.I('s_lshl_b32 s45, s40, 2')
    k.I('s_mul_i32 s45, s45, 49152')
    k.I('s_add_u32 s45, s45, s66')
    k.I('s_lshr_b32 s46, s56, 1')
    k.I('s_lshl_b32 s46, s46, 10')
    k.I('s_add_u32 s46, s46, s45')
    k.I('s_lshr_b32 s48, s57, 1')
    k.I('s_lshl_b32 s48, s48, 10')
    k.I('s_add_u32 s48, s48, s45')
    EXL = RSL + 256
    k.I('s_lshl_b32 s49, s44, 11')
    k.I('s_add_u32 s49, s49, %d' % EXL)
    k.I('v_lshrrev_b32 v7, 1, v8')
    k.I('v_add_u32 v7, s49, v7')

    HO = 192

    def silu_ops(nt):
        ops = []
        for mt in range(3):
            for h in range(2):
                a = A2 + 4 * (3 * nt + mt) + 2 * h
                t0 = 176 + 4 * ((2 * mt + h) % 4)
                ops += ['v_mul_f32 v%d, v%d, v%d' % (a, a, RSV + nt),
                        'v_mul_f32 v%d, v%d, v%d' % (a + 1, a + 1, RSV + nt),
                        'v_cvt_pk_bf16_f32 v%d, v%d, v%d' % (t0, a, a + 1),
                        'v_lshlrev_b32 v%d, 16, v%d' % (a, t0),
                        'v_and_b32 v%d, 0xffff0000, v%d' % (a + 1, t0),
                        'v_mul_f32 v%d, s58, v%d' % (t0, a),
                        'v_mul_f32 v%d, s58, v%d' % (t0 + 1, a + 1),
                        'v_exp_f32 v%d, v%d' % (t0, t0),
                        'v_exp_f32 v%d, v%d' % (t0 + 1, t0 + 1),
                        'v_add_f32 v%d, 1.0, v%d' % (t0, t0),
                        'v_add_f32 v%d, 1.0, v%d' % (t0 + 1, t0 + 1),
                        'v_rcp_f32 v%d, v%d' % (t0, t0),
                        'v_rcp_f32 v%d, v%d' % (t0 + 1, t0 + 1),
                        'v_mul_f32 v%d, v%d, v%d' % (t0, t0, a),
                        'v_mul_f32 v%d, v%d, v%d' % (t0 + 1, t0 + 1, a + 1),
                        'v_cvt_pk_bf16_f32 v%d, v%d, v%d' % (HO + 8 * nt + 2 * mt + h, t0, t0 + 1)]
        ops += [('s_add_u32 s55, s46, %d' % (nt * 49152),
                 'buffer_store_dwordx4 %s, v8, %s, s55 offen sc1' % (vr(HO + 8 * nt), SRD_WS)),
                'ds_write_b64 v7, %s offset:%d' % (vr(HO + 8 * nt + 4, 2), 512 * nt)]
        return ops

    T1 = int(os.environ.get('T1', '15'))
    order = [(nt, t) for t in range(T1) for nt in range(4)] + [(nt, t) for nt in range(4) for t in range(T1, 20)]

    def rdB(i):
        nt, t = order[i]
        k.I('ds_read_b128 %s, v%d offset:%d' % (vr(BB + 4 * (i % 5)), 8 if nt < 2 else 9, (nt % 2) * REG + 1024 * t))
    for i in range(4):
        rdB(i)
    fill, fi = x1ops, 0
    for i, (nt, t) in enumerate(order):
        if i + 4 < 80:
            rdB(i + 4)
        if t == T1:
            while fi < len(fill):
                k.F(fill[fi])
                fi += 1
            fill, fi = (silu_ops(nt - 1) if nt else []), 0
        issue_w1(3 * t + 3)
        if t <= T1 and nt == 0:
            w2_cap[0] = 3 * t
            if w1_issued[0] == 60:
                k.pace_every = PACE3
        if t > T1 and nt == 3:
            w2_cap[0] = 3 * t
        for mt in range(3):
            a = A2 + 4 * (3 * nt + mt)
            k.I('%s %s, %s, %s, %s' % (MF, vr(a), ar(w1reg[(t, mt)]), vr(BB + 4 * (i % 5)), '0' if t == 0 else vr(a)))
            if t < T1:
                tgt = len(fill) * (3 * i + mt + 1) // (3 * 4 * T1 - 12)
                while fi < min(tgt, len(fill)):
                    k.F(fill[fi])
                    fi += 1
            if t >= T1:
                nm = 3 * (20 - T1)
                m = 3 * (t - T1) + mt + 1
                tgt = 0 if m < 4 else (len(fill) * (m - 3) + (nm - 4)) // (nm - 3)
                while fi < min(tgt, len(fill)):
                    k.F(fill[fi])
                    fi += 1
    while fi < len(fill):
        k.F(fill[fi])
        fi += 1
    assert w1_issued[0] == 60
    k.stamp()
    for op in silu_ops(3):
        k.F(op)
    k.pace_hook = None
    k.barrier()
    k.I('v_xor_b32 v7, 2048, v7')
    for nt in range(4):
        k.I('ds_read_b64 %s, v7 offset:%d' % (vr(HO + 8 * nt + 6, 2), 512 * nt))
    k.I('s_cmp_eq_u32 s53, 0')
    k.I('s_cselect_b64 exec, -1, 0')
    for nt in range(4):
        k.I('s_add_u32 s55, s48, %d' % (nt * 49152))
        k.I('buffer_store_dwordx4 %s, v8, %s, s55 offen sc1' % (vr(HO + 8 * nt + 4), SRD_WS))
    k.I('s_mov_b64 exec, -1')
    st_mark = k.mark()
    issue_w2(60)
    k.stamp()
    k.wait_mark(st_mark)
    k.I('s_barrier')
    k.I('s_lshl_b32 s49, s40, 8')
    k.I('s_add_u32 s49, s49, %d' % G.WS_CNT)
    k.I('v_mov_b32 v5, s49')
    k.I('v_mov_b32 v4, 1')
    k.I('s_cmp_eq_u32 s44, 0')
    k.I('s_cbranch_scc0 L_g12%s_go' % V)
    k.I('s_mov_b64 exec, 1')
    k.raw('    buffer_atomic_add v4, v5, %s, 0 offen' % SRD_WS)
    k.I('s_mov_b32 s49, 0')
    k.out.append('L_g12%s_poll:' % V)
    k.I('s_sleep %d' % SLEEP)
    k.raw('    buffer_load_dword v4, v5, %s, 0 offen sc1' % SRD_WS)
    k.I('s_waitcnt vmcnt(0)')
    k.I('v_readfirstlane_b32 s50, v4')
    k.I('s_add_u32 s49, s49, 1')
    k.I('s_cmp_ge_u32 s50, 8')
    k.I('s_cbranch_scc1 L_g12%s_go0' % V)
    k.I('s_cmp_lt_u32 s49, 0x80000')
    k.I('s_cbranch_scc1 L_g12%s_poll' % V)
    k.out.append('L_g12%s_go0:' % V)
    k.I('s_mov_b64 exec, -1')
    k.label('L_g12%s_go' % V)
    k.I('s_barrier')
    k.stamp()
    AC2, HR = 16, 96
    k.I('s_mul_i32 s47, s40, %d' % (4 * 49152))
    k.I('s_mul_i32 s49, s44, %d' % (12 * 1024))
    k.I('s_add_u32 s47, s47, s49')
    k.I('s_add_u32 s47, s47, s66')

    def issue_h(i):
        nt, ks = i // 12, i % 12
        k.I('s_add_u32 s55, s47, %d' % (nt * 49152 + (ks // 4) * 4096))
        k.I('buffer_load_dwordx4 %s, v8, %s, s55 offen offset:%d sc1' % (vr(HR + 4 * (i % 40)), SRD_WS, (ks % 4) * 1024))
    for i in range(40):
        issue_h(i)
    k.I('s_lshl_b32 s48, s40, 6')
    k.I('s_lshl_b32 s46, s44, 4')
    k.I('s_add_u32 s48, s48, s46')
    k.I('v_add_u32 v5, s48, v2')
    k.I('s_mov_b32 s48, 1280')
    k.I('v_mul_lo_u32 v6, v5, s48')
    k.I('v_lshl_add_u32 v6, v3, 3, v6')
    k.I('s_mul_i32 s49, s41, 160')
    k.I('v_add_u32 v6, s49, v6')
    k.I('s_mul_i32 s46, s44, 20480')
    k.I('v_add_u32 v9, s46, v8')
    for nt in range(4):
        for ks in range(12):
            i = 12 * nt + ks
            for mt in range(5):
                a = AC2 + 4 * (5 * nt + mt)
                k.I('%s %s, %s, %s, %s' % (MF, vr(a), ar(w2reg[(ks, mt)]), vr(HR + 4 * (i % 40)), '0' if ks == 0 else vr(a)))
            if i + 40 < 48:
                issue_h(i + 40)
            if nt > 0 and 2 <= ks < 7:
                q = 5 * (nt - 1) + ks - 2
                k.I('ds_write_b128 v9, %s offset:%d' % (vr(AC2 + 4 * q), 1024 * q))
    k.stamp()
    X1 = 96
    for q in range(15, 20):
        k.I('ds_write_b128 v9, %s offset:%d' % (vr(AC2 + 4 * q), 1024 * q))
    k.barrier()
    k.I('s_mul_i32 s46, s44, 5120')
    k.I('v_add_u32 v9, s46, v8')
    k.I('v_add_u32 v10, 40960, v9')
    for src in range(4):
        for mt in range(5):
            k.I('ds_read_b128 %s, v%d offset:%d' % (vr(AC2 + 20 * src + 4 * mt), 9 if src < 2 else 10,
                                                    (src % 2) * 20480 + 1024 * mt))
    G80 = 112
    k.I('v_add_u32 v10, %d, v8' % TABL)
    for q in range(15 if not final else 0):
        k.I('ds_read_b128 %s, v10 offset:%d' % (vr(G80 + 4 * q), 1024 * q))
    for q in range(10):
        k.I('v_pk_add_f32 %s, %s, %s' % (vr(AC2 + 2 * q, 2), vr(AC2 + 2 * q, 2), vr(AC2 + 20 + 2 * q, 2)))
        k.I('v_pk_add_f32 %s, %s, %s' % (vr(AC2 + 40 + 2 * q, 2), vr(AC2 + 40 + 2 * q, 2), vr(AC2 + 60 + 2 * q, 2)))
    for q in range(10):
        k.I('v_pk_add_f32 %s, %s, %s' % (vr(AC2 + 2 * q, 2), vr(AC2 + 2 * q, 2), vr(AC2 + 40 + 2 * q, 2)))
    k.stamp()
    k.wait_vm0()
    k.wait_lgkm0()
    for q in range(10):
        k.I('v_accvgpr_read_b32 v%d, a%d' % (X1 + q, aX1 + q))
    U = AC2 + 20
    PK = AC2 + 40
    for q in range(10):
        bf16_round2(k, AC2 + 2 * q, AC2 + 2 * q + 1, 10)
        k.I('v_lshlrev_b32 v%d, 16, v%d' % (U + 2 * q, X1 + q))
        k.I('v_and_b32 v%d, 0xffff0000, v%d' % (U + 2 * q + 1, X1 + q))
        k.I('v_pk_add_f32 %s, %s, %s' % (vr(AC2 + 2 * q, 2), vr(AC2 + 2 * q, 2), vr(U + 2 * q, 2)))
        k.I('v_cvt_pk_bf16_f32 v%d, v%d, v%d' % (PK + q, AC2 + 2 * q, AC2 + 2 * q + 1))
    if final:
        for mt in range(5):
            k.I('buffer_store_dwordx2 %s, v6, %s, 0 offen offset:%d' % (vr(PK + 2 * mt, 2), SRD_OUT, 32 * mt))
    else:
        k.I('v_lshlrev_b32 v7, 6, v5')
        k.I('v_lshl_add_u32 v7, v3, 4, v7')
        k.I('s_lshr_b32 s51, s41, 1')
        k.I('s_mul_i32 s51, s51, %d' % (5 * 131072))
        k.I('s_and_b32 s50, s41, 1')
        k.I('s_lshl_b32 s50, s50, 3')
        k.I('s_add_u32 s51, s51, s50')
        for mt in range(5):
            k.I('s_add_u32 s50, s51, %d' % (G.WS_XP + mt * 131072))
            k.I('buffer_store_dwordx2 %s, v7, %s, s50 offen' % (vr(PK + 2 * mt, 2), SRD_WS))
        for q in range(10):
            k.I('v_lshlrev_b32 v%d, 16, v%d' % (AC2 + 2 * q, PK + q))
            k.I('v_and_b32 v%d, 0xffff0000, v%d' % (AC2 + 2 * q + 1, PK + q))
        k.I('v_lshlrev_b32 v7, 2, v5')
        k.I('v_lshl_add_u32 v7, v3, 17, v7')
        k.I('v_cmp_eq_u32 vcc, 0, v3')
        k.I('v_add_u32 v9, %d, v7' % (40 * 65536))
        k.I('v_cndmask_b32 v11, v7, v9, vcc')
        k.I('v_lshlrev_b32 v9, 3, v5')
        k.I('s_lshl_b32 s52, s41, 13')
        k.I('s_add_u32 s52, s52, %d' % G.WS_P)
        k.I('s_mov_b32 s53, %d' % G.WS_STB)
        fwd_epilogue(k, AC2, 176, lambda mo, t: vr(G80 + 4 * (3 * mo + t)), 7, 11, 9, 55, 52)
    k.stamp()
    k.wait_vm0()
    k.stamp_flush(3 if final else 2, 44, SRD_WS)
    k.label('L_%s_end' % k.name)
    k.I('s_endpgm')
    return k, 256, RSL + 256 + 8192


def gen_g2(final):
    k = Kernel('g2b_kernel' if final else 'g2a_kernel')
    wg_map(k)
    k.stamp()
    prologue(k, {SRD_OUT: (48, S * D * 2)} if final else {})
    lane_ids(k, 2, 3, 44)
    k.I('v_and_b32 v4, 63, v0')
    k.I('v_lshlrev_b32 v8, 4, v4')
    ACC = 16
    k.I('s_mul_i32 s45, s41, %d' % (5 * 49152))
    k.I('s_mul_i32 s46, s44, %d' % (12 * 1024))
    k.I('s_add_u32 s45, s45, s46')
    k.I('s_add_u32 s45, s45, %d' % (G.WS_W2FB if final else G.WS_W2FA))
    k.I('s_mul_i32 s47, s40, %d' % (4 * 49152))
    k.I('s_add_u32 s47, s47, s46')
    k.I('s_add_u32 s47, s47, %d' % G.WS_H)
    NS = 7

    def issue(ks):
        sl = 36 * (ks % NS)
        for mt in range(5):
            k.I('s_add_u32 s55, s45, %d' % (mt * 49152 + (ks // 4) * 4096))
            k.I('buffer_load_dwordx4 %s, v8, %s, s55 offen offset:%d' % (ar(sl + 4 * mt), SRD_WS, (ks % 4) * 1024))
        for nt in range(4):
            k.I('s_add_u32 s55, s47, %d' % (nt * 49152 + (ks // 4) * 4096))
            k.I('buffer_load_dwordx4 %s, v8, %s, s55 offen offset:%d' % (ar(sl + 20 + 4 * nt), SRD_WS, (ks % 4) * 1024))
    for ks in range(NS - 1):
        issue(ks)
    k.I('s_lshl_b32 s48, s40, 6')
    k.I('s_lshl_b32 s46, s44, 4')
    k.I('s_add_u32 s48, s48, s46')
    k.I('v_add_u32 v5, s48, v2')
    X1 = 96
    G80 = 112
    if final:
        k.I('s_mov_b32 s48, 1280')
        k.I('v_mul_lo_u32 v6, v5, s48')
        k.I('v_lshl_add_u32 v6, v3, 3, v6')
        k.I('s_mul_i32 s49, s41, 160')
        k.I('v_add_u32 v6, s49, v6')
        k.I('s_mov_b32 s50, %d' % G.WS_X1N)
        for mt in range(5):
            k.I('buffer_load_dwordx2 %s, v6, %s, s50 offen offset:%d' % (vr(X1 + 2 * mt, 2), SRD_WS, 32 * mt))
    else:
        k.I('v_lshlrev_b32 v6, 5, v5')
        k.I('v_lshl_add_u32 v6, v3, 3, v6')
        k.I('s_mul_i32 s49, s41, %d' % (5 * 65536))
        for mt in range(5):
            k.I('s_add_u32 s50, s49, %d' % (G.WS_X1P + mt * 65536))
            k.I('buffer_load_dwordx2 %s, v6, %s, s50 offen' % (vr(X1 + 2 * mt, 2), SRD_WS))
    issue(NS - 1)
    k.stamp()
    for ks in range(12):
        sl = 36 * (ks % NS)
        for nt in range(4):
            for mt in range(5):
                a = ACC + 4 * (5 * nt + mt)
                k.I('%s %s, %s, %s, %s' % (MF, vr(a), ar(sl + 4 * mt), ar(sl + 20 + 4 * nt), '0' if ks == 0 else vr(a)))
        if ks in (0, 5):
            k.stamp()
        if ks + NS < 12:
            issue(ks + NS)
        if ks == 5 and not final:
            for q in range(15):
                if q % 4 == 0:
                    k.I('s_mov_b32 s50, %d' % (table_off['G80F'] + q * 1024))
                k.I('buffer_load_dwordx4 %s, v8, %s, s50 offen offset:%d' % (vr(G80 + 4 * q), SRD_TAB, 1024 * (q % 4)))
    k.stamp()
    k.I('s_mul_i32 s46, s44, 20480')
    k.I('v_add_u32 v9, s46, v8')
    for q in range(20):
        k.I('ds_write_b128 v9, %s offset:%d' % (vr(ACC + 4 * q), 1024 * q))
    k.barrier()
    k.I('s_mul_i32 s46, s44, 5120')
    k.I('v_add_u32 v9, s46, v8')
    k.I('v_add_u32 v10, 40960, v9')
    for src in range(4):
        for mt in range(5):
            k.I('ds_read_b128 %s, v%d offset:%d' % (vr(ACC + 20 * src + 4 * mt), 9 if src < 2 else 10,
                                                    (src % 2) * 20480 + 1024 * mt))
    for q in range(10):
        k.I('v_pk_add_f32 %s, %s, %s' % (vr(ACC + 2 * q, 2), vr(ACC + 2 * q, 2), vr(ACC + 20 + 2 * q, 2)))
        k.I('v_pk_add_f32 %s, %s, %s' % (vr(ACC + 40 + 2 * q, 2), vr(ACC + 40 + 2 * q, 2), vr(ACC + 60 + 2 * q, 2)))
    for q in range(10):
        k.I('v_pk_add_f32 %s, %s, %s' % (vr(ACC + 2 * q, 2), vr(ACC + 2 * q, 2), vr(ACC + 40 + 2 * q, 2)))
    k.stamp()
    U = ACC + 20
    PK = ACC + 40
    for q in range(10):
        bf16_round2(k, ACC + 2 * q, ACC + 2 * q + 1, 10)
        k.I('v_lshlrev_b32 v%d, 16, v%d' % (U + 2 * q, X1 + q))
        k.I('v_and_b32 v%d, 0xffff0000, v%d' % (U + 2 * q + 1, X1 + q))
        k.I('v_pk_add_f32 %s, %s, %s' % (vr(ACC + 2 * q, 2), vr(ACC + 2 * q, 2), vr(U + 2 * q, 2)))
        k.I('v_cvt_pk_bf16_f32 v%d, v%d, v%d' % (PK + q, ACC + 2 * q, ACC + 2 * q + 1))
    if final:
        for mt in range(5):
            k.I('buffer_store_dwordx2 %s, v6, %s, 0 offen offset:%d' % (vr(PK + 2 * mt, 2), SRD_OUT, 32 * mt))
    else:
        k.I('v_lshlrev_b32 v7, 1, v6')
        k.I('s_lshr_b32 s51, s41, 1')
        k.I('s_mul_i32 s51, s51, %d' % (5 * 131072))
        k.I('s_and_b32 s50, s41, 1')
        k.I('s_lshl_b32 s50, s50, 3')
        k.I('s_add_u32 s51, s51, s50')
        for mt in range(5):
            k.I('s_add_u32 s50, s51, %d' % (G.WS_XP + mt * 131072))
            k.I('buffer_store_dwordx2 %s, v7, %s, s50 offen' % (vr(PK + 2 * mt, 2), SRD_WS))
        for q in range(10):
            k.I('v_lshlrev_b32 v%d, 16, v%d' % (ACC + 2 * q, PK + q))
            k.I('v_and_b32 v%d, 0xffff0000, v%d' % (ACC + 2 * q + 1, PK + q))
        k.I('v_lshlrev_b32 v7, 2, v5')
        k.I('v_lshl_add_u32 v7, v3, 17, v7')
        k.I('v_cmp_eq_u32 vcc, 0, v3')
        k.I('v_add_u32 v9, %d, v7' % (40 * 65536))
        k.I('v_cndmask_b32 v11, v7, v9, vcc')
        k.I('v_lshlrev_b32 v9, 3, v5')
        k.I('s_lshl_b32 s52, s41, 13')
        k.I('s_add_u32 s52, s52, %d' % G.WS_P)
        k.I('s_mov_b32 s53, %d' % G.WS_STB)
        fwd_epilogue(k, ACC, 176, lambda mo, t: vr(G80 + 4 * (3 * mo + t)), 7, 11, 9, 55, 52)
    k.stamp()
    k.wait_vm0()
    k.stamp_flush(4 if final else 3, 44, SRD_WS)
    k.label('L_%s_end' % k.name)
    k.I('s_endpgm')
    return k, 256, 81920


def gemm_kernels(ks, launches, cl):
    g1 = gen_g1(False)
    g1b = gen_g1(True)
    ks.append(g1[0])
    ks.append(g1b[0])
    launches += [(g1[0].name, g1[1], g1[2]), cl, (g1b[0].name, g1b[1], g1b[2])]
```

```python
import re
import numpy as np

NV = 512
A0 = 512
S0 = 1024
VCC = S0 + 106
EXEC = S0 + 126
SCC = 2000

_reg_re = re.compile(r'^(-|\|)?(abs\()?([vas])(\d+|\[(\d+):(\d+)\])\)?\|?$')


def regs_of(tok):
    tok = tok.strip()
    if tok == 'vcc':
        return [VCC, VCC + 1]
    if tok == 'exec':
        return [EXEC, EXEC + 1]
    if tok == 'm0':
        return [S0 + 124]
    m = _reg_re.match(tok)
    if not m:
        return []
    f = m.group(3)
    base = {'v': 0, 'a': A0, 's': S0}[f]
    if m.group(5) is not None:
        lo, hi = int(m.group(5)), int(m.group(6))
    else:
        lo = hi = int(m.group(4))
    return list(range(base + lo, base + hi + 1))


def split_ops(s):
    out, depth, cur = [], 0, ''
    for ch in s:
        if ch in '[(':
            depth += 1
        if ch in '])':
            depth -= 1
        if ch == ',' and depth == 0:
            out.append(cur.strip())
            cur = ''
        else:
            cur += ch
    if cur.strip():
        out.append(cur.strip())
    return out


TRANS = ('v_exp_f32', 'v_log_f32', 'v_rcp_f32', 'v_rsq_f32', 'v_sqrt_f32', 'v_sin_f32', 'v_cos_f32',
         'v_rcp_iflag_f32')


class Ins:
    __slots__ = ('text', 'mn', 'cls', 'rd', 'wr', 'mfma_a', 'mfma_b', 'mfma_c', 'passes', 'store_data',
                 'ws', 'is_trans', 'dpp', 'wide_store')


def parse(text):
    t = text.split(';')[0].strip()
    parts = t.split(None, 1)
    mn = parts[0]
    rest = parts[1] if len(parts) > 1 else ''
    ops = split_ops(rest)
    if ops:
        last = ops[-1].split()
        ops[-1] = last[0]
        mods = ' '.join(last[1:])
    else:
        mods = ''
    I = Ins()
    I.text = text
    I.mn = mn
    I.rd, I.wr = [], []
    I.mfma_a = I.mfma_b = I.mfma_c = ()
    I.passes = 0
    I.store_data = ()
    I.ws = 1
    I.is_trans = False
    I.dpp = False
    I.wide_store = False
    base = mn.replace('_e32', '').replace('_e64', '')
    if mn.startswith('v_mfma'):
        I.cls = 'mfma'
        I.wr = regs_of(ops[0])
        I.mfma_a, I.mfma_b, I.mfma_c = regs_of(ops[1]), regs_of(ops[2]), regs_of(ops[3])
        I.rd = list(I.mfma_a) + list(I.mfma_b) + list(I.mfma_c)
        I.passes = 8 if '32x32' in mn else 4
    elif mn.startswith('v_'):
        I.cls = 'valu'
        I.is_trans = base in TRANS
        if base.startswith('v_cmp'):
            I.wr = regs_of(ops[0])
            I.rd = [r for o in ops[1:] for r in regs_of(o)]
        elif base in ('v_readfirstlane_b32', 'v_readlane_b32'):
            I.wr = regs_of(ops[0])
            I.rd = [r for o in ops[1:] for r in regs_of(o)]
        elif base.startswith('v_permlane') and 'swap' in base:
            I.wr = regs_of(ops[0]) + regs_of(ops[1])
            I.rd = regs_of(ops[0]) + regs_of(ops[1])
        elif base in ('v_add_co_u32', 'v_sub_co_u32', 'v_addc_co_u32', 'v_subb_co_u32'):
            I.wr = regs_of(ops[0]) + regs_of(ops[1])
            I.rd = [r for o in ops[2:] for r in regs_of(o)]
        else:
            I.wr = regs_of(ops[0])
            I.rd = [r for o in ops[1:] for r in regs_of(o)]
            if base == 'v_movrels_b32':
                I.rd += list(range(96, 256)) + [S0 + 124]
            if base in ('v_fmac_f32', 'v_pk_fmac_f32', 'v_dot2c_f32_bf16', 'v_writelane_b32'):
                I.rd += I.wr
            if base == 'v_cndmask_b32' and len(ops) == 3:
                I.rd += [VCC, VCC + 1]
        if 'row_' in mods or 'quad_perm' in mods or 'wave_' in mods or 'dpp' in mn:
            I.dpp = True
    elif mn.startswith('buffer_load') and ' lds' in (' ' + mods + ' '):
        I.cls = 'vmem_store'
        I.rd = [r for o in ops for r in regs_of(o)] + [S0 + 124]
    elif mn.startswith('buffer_load') or mn.startswith('global_load'):
        I.cls = 'vmem_load'
        I.wr = regs_of(ops[0])
        I.rd = [r for o in ops[1:] for r in regs_of(o)]
    elif mn.startswith('buffer_store'):
        I.cls = 'vmem_store'
        I.store_data = regs_of(ops[0])
        I.rd = [r for o in ops for r in regs_of(o)]
        I.wide_store = mn.endswith('x3') or mn.endswith('x4')
    elif mn.startswith('global_store'):
        I.cls = 'vmem_store'
        I.store_data = regs_of(ops[1])
        I.rd = [r for o in ops for r in regs_of(o)]
        I.wide_store = mn.endswith('x3') or mn.endswith('x4')
    elif mn.startswith('buffer_atomic') or mn.startswith('global_atomic'):
        I.cls = 'vmem_store'
        I.rd = [r for o in ops for r in regs_of(o)]
    elif mn.startswith('ds_read') or mn.startswith('ds_bpermute') or mn.startswith('ds_swizzle') \
            or mn.startswith('ds_permute'):
        I.cls = 'ds_load'
        I.wr = regs_of(ops[0])
        I.rd = [r for o in ops[1:] for r in regs_of(o)]
    elif mn.startswith('ds_write'):
        I.cls = 'ds_store'
        I.rd = [r for o in ops for r in regs_of(o)]
    elif mn.startswith('s_load') or mn.startswith('s_buffer_load') or mn in ('s_memtime', 's_memrealtime'):
        I.cls = 'smem'
        I.wr = regs_of(ops[0])
        I.rd = [r for o in ops[1:] for r in regs_of(o)]
    elif mn == 's_nop':
        I.cls = 'nop'
        I.ws = int(ops[0], 0) + 1
    elif mn.startswith('s_'):
        I.cls = 'salu'
        if mn == 's_set_gpr_idx_on':
            I.rd = regs_of(ops[0])
            I.wr = [S0 + 124]
        elif mn in ('s_set_gpr_idx_off', 's_waitcnt', 's_barrier', 's_endpgm', 's_branch', 's_setprio', 's_sleep') or \
                mn.startswith('s_cbranch'):
            pass
        elif mn.startswith('s_cmp') or mn.startswith('s_bitcmp'):
            I.rd = [r for o in ops for r in regs_of(o)]
        else:
            I.wr = regs_of(ops[0])
            I.rd = [r for o in ops[1:] for r in regs_of(o)]
            if 'saveexec' in mn:
                I.wr += [EXEC, EXEC + 1]
    else:
        raise ValueError('unknown instruction ' + text)
    return I


class Kernel:
    def __init__(self, name):
        self.name = name
        self.out = []
        self.hist = []
        self.vm = []
        self.lg = []
        self.maxv = 0
        self.maxa = -1
        self.maxs = 0
        self.nlabel = 0
        self.vmtotal = 0

    def raw(self, text):
        self.out.append(text)

    def comment(self, text):
        self.out.append('    ; ' + text)

    def _emit(self, I):
        self.out.append('    ' + I.text)
        self.hist.append(I)
        if len(self.hist) > 24:
            self.hist.pop(0)

    def _need(self, I):
        need = 0
        dist = 0
        rd = set(I.rd)
        wr = set(I.wr)
        for P in reversed(self.hist):
            pw = set(P.wr)
            req = 0
            if P.cls == 'valu':
                vw = {r for r in pw if r < S0}
                sw = {r for r in pw if r >= S0}
                if I.cls == 'mfma' and vw & rd:
                    req = max(req, 2)
                if I.cls == 'valu':
                    if sw & rd:
                        req = max(req, 4 if I.mn.startswith(('v_readlane', 'v_writelane')) else 2)
                    if vw & rd:
                        if I.mn.startswith(('v_readfirstlane', 'v_readlane')):
                            req = max(req, 1)
                        if I.dpp or I.mn.startswith('v_permlane'):
                            req = max(req, 2)
                        if P.is_trans and not I.is_trans:
                            req = max(req, 1)
                        if P.is_trans:
                            req = max(req, 1)
                if I.cls in ('vmem_load', 'vmem_store') and sw & rd:
                    req = max(req, 5)
                if I.cls in ('salu', 'smem') and sw & rd:
                    req = max(req, 1)
            elif P.cls == 'mfma':
                p8 = P.passes == 8
                if I.cls == 'mfma':
                    if pw & (set(I.mfma_a) | set(I.mfma_b)):
                        req = max(req, 12 if p8 else 8)
                    c = set(I.mfma_c)
                    if pw & c:
                        if list(I.mfma_c) == list(P.wr) and I.passes == P.passes and I.mn == P.mn:
                            pass
                        else:
                            req = max(req, 10 if p8 else 6)
                    if pw & wr and not (pw & c):
                        req = max(req, 12 if p8 else 8)
                else:
                    if pw & (rd | wr):
                        req = max(req, 12 if p8 else 8)
                    if I.cls == 'valu' and set(P.mfma_c) & wr:
                        req = max(req, 7 if p8 else 3)
                    if I.cls in ('vmem_load', 'ds_load') and set(P.mfma_c) & wr:
                        req = max(req, 7 if p8 else 3)
            elif P.cls == 'salu':
                if (S0 + 124) in pw and (S0 + 124) in rd and I.cls in ('vmem_store', 'valu'):
                    req = max(req, 1)
            elif P.cls == 'vmem_store' and P.wide_store:
                if set(P.store_data) & wr:
                    req = max(req, 2)
            if req > dist:
                need = max(need, req - dist)
            dist += P.ws
            if dist > 20:
                break
        return need

    def _waits(self, I):
        touched = set(I.rd) | set(I.wr)
        vm_n = None
        for idx, dst in enumerate(self.vm):
            if dst & touched:
                vm_n = len(self.vm) - 1 - idx
        lg_n = None
        for idx, dst in enumerate(self.lg):
            if dst & touched:
                lg_n = len(self.lg) - 1 - idx
        if vm_n is not None or lg_n is not None:
            s = 's_waitcnt'
            if vm_n is not None:
                vm_n = min(vm_n, 63)
                s += ' vmcnt(%d)' % vm_n
                self.vm = self.vm[len(self.vm) - vm_n:] if vm_n else []
            if lg_n is not None:
                lg_n = min(lg_n, 15)
                s += ' lgkmcnt(%d)' % lg_n
                self.lg = self.lg[len(self.lg) - lg_n:] if lg_n else []
            self._emit(parse(s))

    def I(self, text):
        self._I(text)
        t = text.strip()
        if 'saveexec' in t or (t.startswith('s_mov_b64 exec') and not t.endswith('-1')) or t.startswith('s_cselect_b64 exec'):
            self._masked = True
        elif t.startswith('s_mov_b64 exec') and t.endswith('-1'):
            self._masked = False
        if getattr(self, '_masked', False):
            return
        hook = getattr(self, 'pace_hook', None)
        if hook is not None and not getattr(self, '_in_hook', False):
            self._pc = getattr(self, '_pc', 0) + (2 if text.lstrip().startswith('v_mfma') else 1)
            if self._pc >= self.pace_every:
                self._pc = 0
                self._in_hook = True
                hook()
                self._in_hook = False

    def F(self, op):
        if isinstance(op, str):
            self.I(op)
        else:
            for t in op:
                self._I(t)

    def _I(self, text):
        I = parse(text)
        for r in I.rd + I.wr:
            if r < 256:
                self.maxv = max(self.maxv, r)
            elif A0 <= r < A0 + 256:
                self.maxa = max(self.maxa, r - A0)
            elif S0 <= r < S0 + 102:
                self.maxs = max(self.maxs, r - S0)
            elif r < A0:
                raise ValueError('vgpr out of range: ' + text)
        self._waits(I)
        n = self._need(I)
        while n > 0:
            k = min(n, 16)
            self._emit(parse('s_nop %d' % (k - 1)))
            n -= k
        self._emit(I)
        if I.cls == 'vmem_load':
            self.vm.append(set(I.wr))
            self.vmtotal += 1
        elif I.cls == 'vmem_store':
            self.vm.append(set())
            self.vmtotal += 1
        elif I.cls == 'ds_load':
            self.lg.append(set(I.wr))
        elif I.cls == 'ds_store':
            self.lg.append(set())
        elif I.cls == 'smem':
            self.lg.append(set(I.wr))
        if I.mn == 's_waitcnt':
            m = re.search(r'vmcnt\((\d+)\)', text)
            if m:
                n = int(m.group(1))
                self.vm = self.vm[len(self.vm) - n:] if n else []
            m = re.search(r'lgkmcnt\((\d+)\)', text)
            if m:
                n = int(m.group(1))
                self.lg = self.lg[len(self.lg) - n:] if n else []

    def mark(self):
        return self.vmtotal

    def wait_mark(self, mark):
        n = self.vmtotal - mark
        self.I('s_waitcnt vmcnt(%d)' % min(n, 63))

    def wait_lgkm0(self):
        self.I('s_waitcnt lgkmcnt(0)')

    def wait_vm0(self):
        self.I('s_waitcnt vmcnt(0)')

    def barrier(self):
        self.I('s_waitcnt lgkmcnt(0)')
        self.I('s_barrier')

    def label(self, name):
        self.I('s_nop 15')
        self.out.append(name + ':')

    def flush_hazards(self):
        self.I('s_nop 15')

    DIAG = False
    REAL = False
    DIAG_WS = 0x8000000

    def stamp(self):
        if not Kernel.DIAG:
            return
        n = getattr(self, 'nstamp', 0)
        self.nstamp = n + 1
        self.I('%s s[%d:%d]' % ('s_memrealtime' if Kernel.REAL else 's_memtime', 72 + 2 * n, 73 + 2 * n))
        self.I('s_waitcnt lgkmcnt(0)')

    def stamp_flush(self, kidx, wave_sgpr, srd):
        if not Kernel.DIAG:
            return
        self.stamp()
        n = self.nstamp
        self.I('s_lshl_b32 s70, s2, %d' % getattr(self, 'lgw', 2))
        self.I('s_add_u32 s70, s70, s%d' % wave_sgpr)
        self.I('s_lshl_b32 s70, s70, 7')
        self.I('s_add_u32 s70, s70, 0x%x' % (Kernel.DIAG_WS + kidx * 0x80000))
        self.I('s_mov_b64 exec, 1')
        self.I('v_mov_b32 v1, 0')
        for i in range(n):
            self.I('v_mov_b32 v0, s%d' % (72 + 2 * i))
            self.I('buffer_store_dword v0, v1, %s, s70 offen offset:%d' % (srd, 4 * i))
        self.I('s_mov_b64 exec, -1')

    def newlabel(self, p='L'):
        self.nlabel += 1
        return '%s_%s_%d' % (p, self.name, self.nlabel)


def f2bf(x):
    x = np.asarray(x, dtype=np.float32)
    u = x.view(np.uint32).astype(np.uint64)
    r = ((u + 0x7FFF + ((u >> 16) & 1)) >> 16)
    return r.astype(np.uint16)


def pack_bf16(vals):
    h = f2bf(vals).astype(np.uint32)
    return h[..., 0::2] | (h[..., 1::2] << 16)


def f32bits(x):
    return np.asarray(x, dtype=np.float32).view(np.uint32)


def emit_table(name, words):
    words = np.asarray(words, dtype=np.uint32).reshape(-1)
    lines = ['.p2align 8', name + ':']
    for i in range(0, len(words), 8):
        lines.append('.long ' + ','.join('0x%x' % w for w in words[i:i + 8]))
    return lines
```

```python
import copy
import os
import numpy as np
from asmlib import Kernel, f32bits
import gen as G
from gen import (prologue, lane_ids, xsum_g, fwd_epilogue, table_off, SRD_WS, SRD_TAB, SRD_A, SRD_B, SRD_C,
                 SRD_OUT, S, D, F)
from gen2 import vr, ar, bf16_round2, MF, MF16


def wg_map(k):
    k.I('s_cmp_ge_u32 s2, 256')
    k.I('s_cbranch_scc1 L_%s_end' % k.name)
    if os.environ.get('BADMAP', '0') == '2':
        k.I('s_and_b32 s42, s2, 7')
        k.I('s_lshr_b32 s43, s2, 3')
        k.I('s_lshr_b32 s40, s42, 1')
        k.I('s_lshl_b32 s40, s40, 3')
        k.I('s_lshr_b32 s41, s43, 2')
        k.I('s_add_u32 s40, s40, s41')
        k.I('s_and_b32 s41, s42, 1')
        k.I('s_lshl_b32 s41, s41, 2')
        k.I('s_and_b32 s43, s43, 3')
        k.I('s_add_u32 s41, s41, s43')
        return
    if os.environ.get('BADMAP', '0') == '1':
        k.I('s_lshr_b32 s40, s2, 3')
        k.I('s_and_b32 s41, s2, 7')
        return
    k.I('s_and_b32 s40, s2, 7')
    k.I('s_lshl_b32 s40, s40, 2')
    k.I('s_lshr_b32 s41, s2, 6')
    k.I('s_add_u32 s40, s40, s41')
    k.I('s_lshr_b32 s41, s2, 3')
    k.I('s_and_b32 s41, s41, 7')


def bcast(reg):
    if reg % 2 == 0:
        return vr(reg, 2), 0
    return vr(reg - 1, 2), 1


import os
PACE = int(os.environ.get('PACE', '12'))
PACE2 = int(os.environ.get('PACE2', '6'))
PACE3 = int(os.environ.get('PACE3', '10'))
SLEEP = int(os.environ.get('SLEEP', '2'))


def gen_g1(final):
    k = Kernel('g12b_kernel' if final else 'g12a_kernel')
    k.I('s_mov_b32 s60, %d' % (G.WS_STB if final else G.WS_ST))
    k.I('s_mov_b32 s65, %d' % (G.WS_W2FB if final else G.WS_W2FA))
    k.I('s_mov_b32 s66, %d' % (G.WS_HB if final else G.WS_H))
    V = 'b' if final else 'a'
    wg_map(k)
    k.stamp()
    REG = 26624
    TABL = 4 * REG
    RSL = TABL + 40 * 1024 + 3840
    assert (RSL + 256) % 4096 == 0
    assert table_off['G80I'] == table_off['TA'] + 22528

    def early():
        lane_ids(k, 2, 3, 44)
        k.I('v_and_b32 v4, 63, v0')
        k.I('v_lshlrev_b32 v8, 4, v4')
        G.dma_table(k, table_off['TA'], 37, TABL, 44, 8, 52)
    prologue(k, {SRD_OUT: (48, S * D * 2)}, early)
    dma_mark = k.mark()
    k.I('s_lshl_b32 s45, s40, 6')
    k.I('s_lshl_b32 s46, s44, 4')
    k.I('s_add_u32 s45, s45, s46')
    k.I('v_add_u32 v5, s45, v2')
    XF, ACC = 16, 96
    aZP, aTA, aG80 = 0, 84, 100
    k.I('v_lshlrev_b32 v7, 3, v5')
    k.I('s_mov_b32 s47, %d' % G.WS_ZP)
    k.I('buffer_load_dword v12, v7, %s, s60 offen' % SRD_WS)
    k.I('v_lshlrev_b32 v7, 4, v5')
    k.I('buffer_load_ushort v13, v7, %s, s47 offen' % SRD_WS)
    k.I('v_lshl_add_u32 v7, v3, 15, v7')
    for q in range(21):
        k.I('s_mov_b32 s47, %d' % (G.WS_ZP + q * 131072))
        k.I('buffer_load_dwordx4 %s, v7, %s, s47 offen' % (ar(aZP + 4 * q), SRD_WS))
    k.I('v_lshlrev_b32 v6, 6, v5')
    k.I('v_lshl_add_u32 v6, v3, 4, v6')
    x_issued = [0]

    def issue_x(upto):
        while x_issued[0] < min(upto, 20):
            q = x_issued[0]
            k.I('s_mov_b32 s47, %d' % (G.WS_XP + q * 131072))
            k.I('buffer_load_dwordx4 %s, v6, %s, s47 offen' % (vr(XF + 4 * q), SRD_WS))
            x_issued[0] += 1
    slots = [160 + 4 * i for i in range(24)] + [aZP + 4 * q for q in range(21)] + \
            [aTA + 4 * i for i in range(4)] + [aG80 + 4 * i for i in range(11)]
    w1reg = {}
    n = 0
    for t in range(20):
        for mt in range(3):
            w1reg[(t, mt)] = slots[n]
            n += 1
    k.I('s_mul_i32 s49, s41, 12')
    k.I('s_mul_i32 s50, s44, 3')
    k.I('s_add_u32 s49, s49, s50')
    k.I('s_and_b32 s53, s44, 1')
    k.I('s_add_u32 s50, s49, s53')
    k.I('s_add_u32 s51, s50, 1')
    k.I('s_lshl_b32 s54, s53, 1')
    k.I('s_sub_u32 s52, 2, s54')
    k.I('s_add_u32 s52, s52, s49')
    k.I('s_mov_b32 s56, s50')
    k.I('s_mov_b32 s57, s52')
    for mt in range(3):
        k.I('s_mul_i32 s%d, s%d, 20480' % (50 + mt, 50 + mt))
        k.I('s_add_u32 s%d, s%d, %d' % (50 + mt, 50 + mt, G.WS_W1F))
    w1_issued = [0]

    def issue_w1(upto):
        while w1_issued[0] < min(upto, 60):
            n = w1_issued[0]
            t, mt = n // 3, n % 3
            k.I('s_add_u32 s55, s%d, %d' % (50 + mt, (t // 4) * 4096))
            k.I('buffer_load_dwordx4 %s, v8, %s, s55 offen offset:%d' % (ar(w1reg[(t, mt)]), SRD_WS, (t % 4) * 1024))
            w1_issued[0] += 1
    k.stamp()
    k.I('v_lshlrev_b32 v9, 2, v3')
    k.I('v_sub_u32 v9, v2, v9')
    k.I('v_mov_b32 v14, 0x3f80')
    k.I('v_mov_b32 v15, 0x3f800000')
    k.I('v_cmp_eq_u32 vcc, 0, v9')
    k.I('v_cndmask_b32 v10, 0, v14, vcc')
    k.I('v_cmp_eq_u32 vcc, 1, v9')
    k.I('v_cndmask_b32 v10, v10, v15, vcc')
    k.I('v_cmp_eq_u32 vcc, 2, v9')
    k.I('v_cndmask_b32 v11, 0, v14, vcc')
    k.I('v_cmp_eq_u32 vcc, 3, v9')
    k.I('v_cndmask_b32 v11, v11, v15, vcc')
    k.I('s_mul_i32 s59, s44, %d' % REG)
    k.I('v_lshl_add_u32 v9, v3, 5, v2')
    k.I('v_mul_u32_u24 v9, 208, v9')
    k.I('v_add_u32 v9, s59, v9')
    k.I('v_add_u32 v4, %d, v8' % TABL)
    k.wait_mark(dma_mark)
    k.barrier()

    def rdTA(ch):
        for u in range(2):
            q = 2 * ch + u
            if q < 21:
                k.I('ds_read_b128 %s, v4 offset:%d' % (ar(aTA + 4 * (q % 4)), 1024 * q))
    rdTA(0)
    rdTA(1)
    k.I('v_lshlrev_b32 v13, 16, v13')
    k.I('v_fmac_f32 v13, 0x%x, v12' % f32bits(1.0 / 640))
    k.I('v_mov_b32 v14, v13')
    k.I('v_mov_b32 v15, v13')
    bf16_round2(k, 15, 13, 12)
    w1_cap = [24]

    def hook():
        if x_issued[0] < 20:
            issue_x(x_issued[0] + 1)
        elif w1_issued[0] < w1_cap[0]:
            issue_w1(w1_issued[0] + 1)
    k.pace_hook, k.pace_every = hook, PACE
    k.stamp()
    DT, QP = 96, 128

    def i1_mfma(ch):
        for u in range(4):
            k1 = 4 * ch + u
            if k1 <= 40:
                dt = DT + 4 * (k1 % 8)
                k.I('%s %s, %s, %s, 0' % (MF16, vr(dt), ar(aTA + 2 * (k1 % 8), 2), ar(aZP + 2 * k1, 2)))
    i1_mfma(0)
    for ch in range(12):
        qp = QP + 8 * (ch % 2)
        if ch + 1 < 11:
            i1_mfma(ch + 1)
        if ch + 2 < 11:
            rdTA(ch + 2)
        for u in range(4):
            k1 = 4 * ch + u
            if k1 <= 40:
                dt = DT + 4 * (k1 % 8)
                k.I('v_cvt_pk_bf16_f32 v%d, v%d, v%d' % (qp + u, dt, dt + 1))
                k.I('v_cvt_pk_bf16_f32 v%d, v%d, v%d' % (qp + 4 + u, dt + 2, dt + 3))
            else:
                k.I('v_mov_b32 v%d, 0' % (qp + u))
                k.I('v_mov_b32 v%d, 0' % (qp + 4 + u))
        k.I('ds_write_b128 v9, %s offset:%d' % (vr(qp), 16 * ch))
        k.I('ds_write_b128 v9, %s offset:%d' % (vr(qp + 4), 3328 + 16 * ch))
        if ch == 8:
            for q in range(15):
                k.I('ds_read_b128 %s, v4 offset:%d' % (ar(aG80 + 4 * q), 22528 + 1024 * q))
    k.stamp()
    k.wait_lgkm0()
    w1_cap[0] = 45
    CI = ACC + 4 * 39
    for r in range(4):
        k.I('v_sub_f32 v%d, 0, v15' % (CI + r))
    k.I('v_mul_u32_u24 v9, 208, v2')
    k.I('v_lshl_add_u32 v9, v3, 4, v9')
    k.I('v_add_u32 v9, s59, v9')
    k.I('v_add_u32 v12, s59, v8')
    GR = 4

    def bfrag(d2, t):
        if d2 % 2 == 0:
            return ar(84 + 4 * t)
        return [ar(96), vr(ACC + 4 * 37), vr(ACC + 4 * 38)][t] if d2 < 7 else [ar(96), vr(16), vr(20)][t]

    def rdQ(d2):
        for t in range(3):
            k.I('ds_read_b128 %s, v9 offset:%d' % (bfrag(d2, t), 3328 * d2 + 64 * t))
    xn_done = [0]

    def xn_upto(nq):
        while 2 * xn_done[0] + 1 < nq:
            t = xn_done[0]
            pk = PKX[t]
            for h in range(4):
                a = ACC + 8 * t + 2 * h
                k.I('v_cvt_pk_bf16_f32 v%d, v%d, v%d' % (pk + h, a, a + 1))
            k.I('ds_write_b128 v12, %s offset:%d' % (vr(pk), 1024 * t))
            k.I('%s %s, %s, %s, %s' % (MF, vr(GR), vr(pk), vr(pk), '0' if t == 0 else vr(GR)))
            xn_done[0] += 1
    PKX = {}
    for t in range(20):
        dnow = (2 * t + 1) // 5 + 1
        PKX[t] = ACC + 4 * (35 + t % 2) if dnow <= 6 else 24 + 4 * (t % 4)
    k.I('v_mov_b32 v13, v5')
    rdQ(0)
    for d2 in range(8):
        if d2 + 1 < 8:
            rdQ(d2 + 1)
        for t in range(3):
            for mt in range(5):
                a = ACC + 4 * (5 * d2 + mt)
                k.I('%s %s, %s, %s, %s' % (MF, vr(a), ar(aG80 + 4 * (3 * mt + t)), bfrag(d2, t), vr(CI) if t == 0 else vr(a)))
            if t == 0:
                xn_upto(5 * d2)
        issue_x(5 * (d2 // 2) + 5)
        for mt in range(5):
            a = ACC + 4 * (5 * d2 + mt)
            k.I('%s %s, v[10:11], %s, %s' % (MF16, vr(a), vr(XF + 4 * (5 * (d2 // 2) + mt) + 2 * (d2 % 2), 2), vr(a)))
    w1_cap[0] = 60
    k.pace_every = PACE2
    xn_upto(40)
    k.stamp()
    x1ops = ['s_mul_i32 s63, s41, 20']
    aX1 = 144

    def idx_add(r0, r1):
        return ('s_set_gpr_idx_on s63, 0x1', 'v_add_f32 v84, v%d, v15' % r0, 'v_add_f32 v85, v%d, v15' % r1,
                's_set_gpr_idx_off')
    for mt in range(5 if not final else 0):
        for h in range(2):
            x1ops += [idx_add(ACC + 4 * mt + 2 * h, ACC + 4 * mt + 2 * h + 1),
                      'v_cvt_pk_bf16_f32 v86, v84, v85', 'v_accvgpr_write_b32 a%d, v86' % (aX1 + 2 * mt + h)]
    if final:
        x1ops += ['s_mul_i32 s61, s41, 10', 's_lshr_b32 s62, s61, 4', 's_min_u32 s62, s62, 3',
                  's_lshl_b32 s63, s62, 2',
                  's_lshl_b32 s62, s62, 4', 's_sub_u32 s62, s62, s61',
                  'v_lshl_add_u32 v0, v3, 2, s62',
                  's_add_u32 s61, s59, 20480', 'v_mul_u32_u24 v1, 176, v2', 'v_add_u32 v1, s61, v1']
        for i in range(8):
            du = 16 * (i // 4) + i % 4
            for h in range(4):
                x1ops += [idx_add(ACC + 40 * h + i, ACC + 40 * h + 20 + i), 'v_cvt_pk_bf16_f32 v%d, v84, v85' % (88 + h)]
            x1ops += ['v_add_u32 v84, %d, v0' % du, 'v_lshl_add_u32 v85, v84, 4, v1',
                      ('v_cmp_gt_u32 vcc, 10, v84', 's_nop 1', 's_and_saveexec_b64 s[68:69], vcc',
                       'ds_write_b128 v85, v[88:91]', 's_mov_b64 exec, -1')]
        x1ops += ['v_lshl_add_u32 v1, v3, 3, v1']
        x1ops += [tuple(
                        ['ds_read_b64 a[%d:%d], v1 offset:%d' % (aX1 + 2 * mt, aX1 + 2 * mt + 1, 32 * mt) for mt in range(5)])]
    k.I('v_and_b32 v9, 3, v2')
    k.I('v_cmp_eq_u32 vcc, 1, v9')
    k.I('v_cndmask_b32 v4, v4, v5, vcc')
    k.I('v_cmp_eq_u32 vcc, 2, v9')
    k.I('v_cndmask_b32 v4, v4, v6, vcc')
    k.I('v_cmp_eq_u32 vcc, 3, v9')
    k.I('v_cndmask_b32 v4, v4, v7, vcc')
    k.I('v_sub_f32 v10, v14, v15')
    k.I('v_mul_f32 v12, 0x%x, v4' % f32bits(1.0 / 640))
    k.I('v_fma_f32 v12, -v10, v10, v12')
    bf16_round2(k, 11, 12, 13)
    k.I('v_add_f32 v12, 0x%x, v12' % f32bits(1e-5))
    bf16_round2(k, 11, 12, 13)
    k.I('v_sqrt_f32 v12, v12')
    bf16_round2(k, 11, 12, 13)
    k.I('v_rcp_f32 v12, v12')
    k.I('s_lshl_b32 s49, s44, 6')
    k.I('s_add_u32 s49, s49, %d' % RSL)
    k.I('v_lshl_add_u32 v13, v2, 2, s49')
    k.I('v_lshrrev_b32 v9, 2, v2')
    k.F(('v_cmp_eq_u32 vcc, v9, v3', 's_and_saveexec_b64 s[62:63], vcc', 'ds_write_b32 v13, v12',
         's_mov_b64 exec, -1'))
    k.barrier()
    k.stamp()
    if not final:
        G.dma_table(k, table_off['G80F'], 15, TABL, 44, 8, 49)
    w2reg = {}
    for n in range(60):
        w2reg[(n // 5, n % 5)] = slots[n]
    k.I('s_mul_i32 s67, s41, %d' % (5 * 49152))
    k.I('s_mul_i32 s49, s44, %d' % (12 * 1024))
    k.I('s_add_u32 s67, s67, s49')
    k.I('s_add_u32 s67, s67, s65')
    w2_issued, w2_cap = [0], [0]

    def issue_w2(upto):
        while w2_issued[0] < min(upto, 60):
            n = w2_issued[0]
            ks, mt = n // 5, n % 5
            k.I('s_add_u32 s55, s67, %d' % (mt * 49152 + (ks // 4) * 4096))
            k.I('buffer_load_dwordx4 %s, v8, %s, s55 offen offset:%d' % (ar(w2reg[(ks, mt)]), SRD_WS, (ks % 4) * 1024))
            w2_issued[0] += 1

    def hook2():
        if w1_issued[0] < 60:
            issue_w1(w1_issued[0] + 1)
        elif w2_issued[0] < w2_cap[0]:
            issue_w2(w2_issued[0] + 1)
    k.pace_hook = hook2
    RSV = 92
    k.I('v_lshlrev_b32 v13, 2, v2')
    k.I('v_add_u32 v13, %d, v13' % RSL)
    for n2 in range(4):
        k.I('ds_read_b32 v%d, v13 offset:%d' % (RSV + n2, 64 * n2))
    A2, BB = 16, 64
    k.I('v_add_u32 v9, %d, v8' % (2 * REG))
    k.I('s_mov_b32 s58, 0x%x' % f32bits(-1.4426950408889634))
    k.I('s_lshl_b32 s45, s40, 2')
    k.I('s_mul_i32 s45, s45, 49152')
    k.I('s_add_u32 s45, s45, s66')
    k.I('s_lshr_b32 s46, s56, 1')
    k.I('s_lshl_b32 s46, s46, 10')
    k.I('s_add_u32 s46, s46, s45')
    k.I('s_lshr_b32 s48, s57, 1')
    k.I('s_lshl_b32 s48, s48, 10')
    k.I('s_add_u32 s48, s48, s45')
    EXL = RSL + 256
    k.I('s_lshl_b32 s49, s44, 11')
    k.I('s_add_u32 s49, s49, %d' % EXL)
    k.I('v_lshrrev_b32 v7, 1, v8')
    k.I('v_add_u32 v7, s49, v7')

    HO = 192

    def silu_ops(nt):
        ops = []
        for mt in range(3):
            for h in range(2):
                a = A2 + 4 * (3 * nt + mt) + 2 * h
                t0 = 176 + 4 * ((2 * mt + h) % 4)
                ops += ['v_mul_f32 v%d, v%d, v%d' % (a, a, RSV + nt),
                        'v_mul_f32 v%d, v%d, v%d' % (a + 1, a + 1, RSV + nt),
                        'v_cvt_pk_bf16_f32 v%d, v%d, v%d' % (t0, a, a + 1),
                        'v_lshlrev_b32 v%d, 16, v%d' % (a, t0),
                        'v_and_b32 v%d, 0xffff0000, v%d' % (a + 1, t0),
                        'v_mul_f32 v%d, s58, v%d' % (t0, a),
                        'v_mul_f32 v%d, s58, v%d' % (t0 + 1, a + 1),
                        'v_exp_f32 v%d, v%d' % (t0, t0),
                        'v_exp_f32 v%d, v%d' % (t0 + 1, t0 + 1),
                        'v_add_f32 v%d, 1.0, v%d' % (t0, t0),
                        'v_add_f32 v%d, 1.0, v%d' % (t0 + 1, t0 + 1),
                        'v_rcp_f32 v%d, v%d' % (t0, t0),
                        'v_rcp_f32 v%d, v%d' % (t0 + 1, t0 + 1),
                        'v_mul_f32 v%d, v%d, v%d' % (t0, t0, a),
                        'v_mul_f32 v%d, v%d, v%d' % (t0 + 1, t0 + 1, a + 1),
                        'v_cvt_pk_bf16_f32 v%d, v%d, v%d' % (HO + 8 * nt + 2 * mt + h, t0, t0 + 1)]
        ops += [('s_add_u32 s55, s46, %d' % (nt * 49152),
                 'buffer_store_dwordx4 %s, v8, %s, s55 offen sc1' % (vr(HO + 8 * nt), SRD_WS)),
                'ds_write_b64 v7, %s offset:%d' % (vr(HO + 8 * nt + 4, 2), 512 * nt)]
        return ops

    T1 = int(os.environ.get('T1', '15'))
    order = [(nt, t) for t in range(T1) for nt in range(4)] + [(nt, t) for nt in range(4) for t in range(T1, 20)]

    def rdB(i):
        nt, t = order[i]
        k.I('ds_read_b128 %s, v%d offset:%d' % (vr(BB + 4 * (i % 5)), 8 if nt < 2 else 9, (nt % 2) * REG + 1024 * t))
    for i in range(4):
        rdB(i)
    fill, fi = x1ops, 0
    for i, (nt, t) in enumerate(order):
        if i + 4 < 80:
            rdB(i + 4)
        if t == T1:
            while fi < len(fill):
                k.F(fill[fi])
                fi += 1
            fill, fi = (silu_ops(nt - 1) if nt else []), 0
        issue_w1(3 * t + 3)
        if t <= T1 and nt == 0:
            w2_cap[0] = 3 * t
            if w1_issued[0] == 60:
                k.pace_every = PACE3
        if t > T1 and nt == 3:
            w2_cap[0] = 3 * t
        for mt in range(3):
            a = A2 + 4 * (3 * nt + mt)
            k.I('%s %s, %s, %s, %s' % (MF, vr(a), ar(w1reg[(t, mt)]), vr(BB + 4 * (i % 5)), '0' if t == 0 else vr(a)))
            if t < T1:
                tgt = len(fill) * (3 * i + mt + 1) // (3 * 4 * T1 - 12)
                while fi < min(tgt, len(fill)):
                    k.F(fill[fi])
                    fi += 1
            if t >= T1:
                nm = 3 * (20 - T1)
                m = 3 * (t - T1) + mt + 1
                tgt = 0 if m < 4 else (len(fill) * (m - 3) + (nm - 4)) // (nm - 3)
                while fi < min(tgt, len(fill)):
                    k.F(fill[fi])
                    fi += 1
    while fi < len(fill):
        k.F(fill[fi])
        fi += 1
    assert w1_issued[0] == 60
    k.stamp()
    for op in silu_ops(3):
        k.F(op)
    k.pace_hook = None
    k.barrier()
    k.I('v_xor_b32 v7, 2048, v7')
    for nt in range(4):
        k.I('ds_read_b64 %s, v7 offset:%d' % (vr(HO + 8 * nt + 6, 2), 512 * nt))
    k.I('s_cmp_eq_u32 s53, 0')
    k.I('s_cselect_b64 exec, -1, 0')
    for nt in range(4):
        k.I('s_add_u32 s55, s48, %d' % (nt * 49152))
        k.I('buffer_store_dwordx4 %s, v8, %s, s55 offen sc1' % (vr(HO + 8 * nt + 4), SRD_WS))
    k.I('s_mov_b64 exec, -1')
    st_mark = k.mark()
    issue_w2(60)
    k.stamp()
    k.wait_mark(st_mark)
    k.I('s_barrier')
    k.I('s_lshl_b32 s49, s40, 8')
    k.I('s_add_u32 s49, s49, %d' % G.WS_CNT)
    k.I('v_mov_b32 v5, s49')
    k.I('v_mov_b32 v4, 1')
    k.I('s_cmp_eq_u32 s44, 0')
    k.I('s_cbranch_scc0 L_g12%s_go' % V)
    k.I('s_mov_b64 exec, 1')
    k.raw('    buffer_atomic_add v4, v5, %s, 0 offen' % SRD_WS)
    k.I('s_mov_b32 s49, 0')
    k.out.append('L_g12%s_poll:' % V)
    k.I('s_sleep %d' % SLEEP)
    k.raw('    buffer_load_dword v4, v5, %s, 0 offen sc1' % SRD_WS)
    k.I('s_waitcnt vmcnt(0)')
    k.I('v_readfirstlane_b32 s50, v4')
    k.I('s_add_u32 s49, s49, 1')
    k.I('s_cmp_ge_u32 s50, 8')
    k.I('s_cbranch_scc1 L_g12%s_go0' % V)
    k.I('s_cmp_lt_u32 s49, 0x80000')
    k.I('s_cbranch_scc1 L_g12%s_poll' % V)
    k.out.append('L_g12%s_go0:' % V)
    k.I('s_mov_b64 exec, -1')
    k.label('L_g12%s_go' % V)
    k.I('s_barrier')
    k.stamp()
    AC2, HR = 16, 96
    k.I('s_mul_i32 s47, s40, %d' % (4 * 49152))
    k.I('s_mul_i32 s49, s44, %d' % (12 * 1024))
    k.I('s_add_u32 s47, s47, s49')
    k.I('s_add_u32 s47, s47, s66')

    def issue_h(i):
        nt, ks = i // 12, i % 12
        k.I('s_add_u32 s55, s47, %d' % (nt * 49152 + (ks // 4) * 4096))
        k.I('buffer_load_dwordx4 %s, v8, %s, s55 offen offset:%d sc1' % (vr(HR + 4 * (i % 40)), SRD_WS, (ks % 4) * 1024))
    for i in range(40):
        issue_h(i)
    k.I('s_lshl_b32 s48, s40, 6')
    k.I('s_lshl_b32 s46, s44, 4')
    k.I('s_add_u32 s48, s48, s46')
    k.I('v_add_u32 v5, s48, v2')
    k.I('s_mov_b32 s48, 1280')
    k.I('v_mul_lo_u32 v6, v5, s48')
    k.I('v_lshl_add_u32 v6, v3, 3, v6')
    k.I('s_mul_i32 s49, s41, 160')
    k.I('v_add_u32 v6, s49, v6')
    k.I('s_mul_i32 s46, s44, 20480')
    k.I('v_add_u32 v9, s46, v8')
    for nt in range(4):
        for ks in range(12):
            i = 12 * nt + ks
            for mt in range(5):
                a = AC2 + 4 * (5 * nt + mt)
                k.I('%s %s, %s, %s, %s' % (MF, vr(a), ar(w2reg[(ks, mt)]), vr(HR + 4 * (i % 40)), '0' if ks == 0 else vr(a)))
            if i + 40 < 48:
                issue_h(i + 40)
            if nt > 0 and 2 <= ks < 7:
                q = 5 * (nt - 1) + ks - 2
                k.I('ds_write_b128 v9, %s offset:%d' % (vr(AC2 + 4 * q), 1024 * q))
    k.stamp()
    X1 = 96
    for q in range(15, 20):
        k.I('ds_write_b128 v9, %s offset:%d' % (vr(AC2 + 4 * q), 1024 * q))
    k.barrier()
    k.I('s_mul_i32 s46, s44, 5120')
    k.I('v_add_u32 v9, s46, v8')
    k.I('v_add_u32 v10, 40960, v9')
    for src in range(4):
        for mt in range(5):
            k.I('ds_read_b128 %s, v%d offset:%d' % (vr(AC2 + 20 * src + 4 * mt), 9 if src < 2 else 10,
                                                    (src % 2) * 20480 + 1024 * mt))
    G80 = 112
    k.I('v_add_u32 v10, %d, v8' % TABL)
    for q in range(15 if not final else 0):
        k.I('ds_read_b128 %s, v10 offset:%d' % (vr(G80 + 4 * q), 1024 * q))
    for q in range(10):
        k.I('v_pk_add_f32 %s, %s, %s' % (vr(AC2 + 2 * q, 2), vr(AC2 + 2 * q, 2), vr(AC2 + 20 + 2 * q, 2)))
        k.I('v_pk_add_f32 %s, %s, %s' % (vr(AC2 + 40 + 2 * q, 2), vr(AC2 + 40 + 2 * q, 2), vr(AC2 + 60 + 2 * q, 2)))
    for q in range(10):
        k.I('v_pk_add_f32 %s, %s, %s' % (vr(AC2 + 2 * q, 2), vr(AC2 + 2 * q, 2), vr(AC2 + 40 + 2 * q, 2)))
    k.stamp()
    k.wait_vm0()
    k.wait_lgkm0()
    for q in range(10):
        k.I('v_accvgpr_read_b32 v%d, a%d' % (X1 + q, aX1 + q))
    U = AC2 + 20
    PK = AC2 + 40
    for q in range(10):
        bf16_round2(k, AC2 + 2 * q, AC2 + 2 * q + 1, 10)
        k.I('v_lshlrev_b32 v%d, 16, v%d' % (U + 2 * q, X1 + q))
        k.I('v_and_b32 v%d, 0xffff0000, v%d' % (U + 2 * q + 1, X1 + q))
        k.I('v_pk_add_f32 %s, %s, %s' % (vr(AC2 + 2 * q, 2), vr(AC2 + 2 * q, 2), vr(U + 2 * q, 2)))
        k.I('v_cvt_pk_bf16_f32 v%d, v%d, v%d' % (PK + q, AC2 + 2 * q, AC2 + 2 * q + 1))
    if final:
        for mt in range(5):
            k.I('buffer_store_dwordx2 %s, v6, %s, 0 offen offset:%d' % (vr(PK + 2 * mt, 2), SRD_OUT, 32 * mt))
    else:
        k.I('v_lshlrev_b32 v7, 6, v5')
        k.I('v_lshl_add_u32 v7, v3, 4, v7')
        k.I('s_lshr_b32 s51, s41, 1')
        k.I('s_mul_i32 s51, s51, %d' % (5 * 131072))
        k.I('s_and_b32 s50, s41, 1')
        k.I('s_lshl_b32 s50, s50, 3')
        k.I('s_add_u32 s51, s51, s50')
        for mt in range(5):
            k.I('s_add_u32 s50, s51, %d' % (G.WS_XP + mt * 131072))
            k.I('buffer_store_dwordx2 %s, v7, %s, s50 offen' % (vr(PK + 2 * mt, 2), SRD_WS))
        for q in range(10):
            k.I('v_lshlrev_b32 v%d, 16, v%d' % (AC2 + 2 * q, PK + q))
            k.I('v_and_b32 v%d, 0xffff0000, v%d' % (AC2 + 2 * q + 1, PK + q))
        k.I('v_lshlrev_b32 v7, 2, v5')
        k.I('v_lshl_add_u32 v7, v3, 17, v7')
        k.I('v_cmp_eq_u32 vcc, 0, v3')
        k.I('v_add_u32 v9, %d, v7' % (40 * 65536))
        k.I('v_cndmask_b32 v11, v7, v9, vcc')
        k.I('v_lshlrev_b32 v9, 3, v5')
        k.I('s_lshl_b32 s52, s41, 13')
        k.I('s_add_u32 s52, s52, %d' % G.WS_P)
        k.I('s_mov_b32 s53, %d' % G.WS_STB)
        fwd_epilogue(k, AC2, 176, lambda mo, t: vr(G80 + 4 * (3 * mo + t)), 7, 11, 9, 55, 52)
    k.stamp()
    k.wait_vm0()
    k.stamp_flush(3 if final else 2, 44, SRD_WS)
    k.label('L_%s_end' % k.name)
    k.I('s_endpgm')
    return k, 256, RSL + 256 + 8192


def gen_g2(final):
    k = Kernel('g2b_kernel' if final else 'g2a_kernel')
    wg_map(k)
    k.stamp()
    prologue(k, {SRD_OUT: (48, S * D * 2)} if final else {})
    lane_ids(k, 2, 3, 44)
    k.I('v_and_b32 v4, 63, v0')
    k.I('v_lshlrev_b32 v8, 4, v4')
    ACC = 16
    k.I('s_mul_i32 s45, s41, %d' % (5 * 49152))
    k.I('s_mul_i32 s46, s44, %d' % (12 * 1024))
    k.I('s_add_u32 s45, s45, s46')
    k.I('s_add_u32 s45, s45, %d' % (G.WS_W2FB if final else G.WS_W2FA))
    k.I('s_mul_i32 s47, s40, %d' % (4 * 49152))
    k.I('s_add_u32 s47, s47, s46')
    k.I('s_add_u32 s47, s47, %d' % G.WS_H)
    NS = 7

    def issue(ks):
        sl = 36 * (ks % NS)
        for mt in range(5):
            k.I('s_add_u32 s55, s45, %d' % (mt * 49152 + (ks // 4) * 4096))
            k.I('buffer_load_dwordx4 %s, v8, %s, s55 offen offset:%d' % (ar(sl + 4 * mt), SRD_WS, (ks % 4) * 1024))
        for nt in range(4):
            k.I('s_add_u32 s55, s47, %d' % (nt * 49152 + (ks // 4) * 4096))
            k.I('buffer_load_dwordx4 %s, v8, %s, s55 offen offset:%d' % (ar(sl + 20 + 4 * nt), SRD_WS, (ks % 4) * 1024))
    for ks in range(NS - 1):
        issue(ks)
    k.I('s_lshl_b32 s48, s40, 6')
    k.I('s_lshl_b32 s46, s44, 4')
    k.I('s_add_u32 s48, s48, s46')
    k.I('v_add_u32 v5, s48, v2')
    X1 = 96
    G80 = 112
    if final:
        k.I('s_mov_b32 s48, 1280')
        k.I('v_mul_lo_u32 v6, v5, s48')
        k.I('v_lshl_add_u32 v6, v3, 3, v6')
        k.I('s_mul_i32 s49, s41, 160')
        k.I('v_add_u32 v6, s49, v6')
        k.I('s_mov_b32 s50, %d' % G.WS_X1N)
        for mt in range(5):
            k.I('buffer_load_dwordx2 %s, v6, %s, s50 offen offset:%d' % (vr(X1 + 2 * mt, 2), SRD_WS, 32 * mt))
    else:
        k.I('v_lshlrev_b32 v6, 5, v5')
        k.I('v_lshl_add_u32 v6, v3, 3, v6')
        k.I('s_mul_i32 s49, s41, %d' % (5 * 65536))
        for mt in range(5):
            k.I('s_add_u32 s50, s49, %d' % (G.WS_X1P + mt * 65536))
            k.I('buffer_load_dwordx2 %s, v6, %s, s50 offen' % (vr(X1 + 2 * mt, 2), SRD_WS))
    issue(NS - 1)
    k.stamp()
    for ks in range(12):
        sl = 36 * (ks % NS)
        for nt in range(4):
            for mt in range(5):
                a = ACC + 4 * (5 * nt + mt)
                k.I('%s %s, %s, %s, %s' % (MF, vr(a), ar(sl + 4 * mt), ar(sl + 20 + 4 * nt), '0' if ks == 0 else vr(a)))
        if ks in (0, 5):
            k.stamp()
        if ks + NS < 12:
            issue(ks + NS)
        if ks == 5 and not final:
            for q in range(15):
                if q % 4 == 0:
                    k.I('s_mov_b32 s50, %d' % (table_off['G80F'] + q * 1024))
                k.I('buffer_load_dwordx4 %s, v8, %s, s50 offen offset:%d' % (vr(G80 + 4 * q), SRD_TAB, 1024 * (q % 4)))
    k.stamp()
    k.I('s_mul_i32 s46, s44, 20480')
    k.I('v_add_u32 v9, s46, v8')
    for q in range(20):
        k.I('ds_write_b128 v9, %s offset:%d' % (vr(ACC + 4 * q), 1024 * q))
    k.barrier()
    k.I('s_mul_i32 s46, s44, 5120')
    k.I('v_add_u32 v9, s46, v8')
    k.I('v_add_u32 v10, 40960, v9')
    for src in range(4):
        for mt in range(5):
            k.I('ds_read_b128 %s, v%d offset:%d' % (vr(ACC + 20 * src + 4 * mt), 9 if src < 2 else 10,
                                                    (src % 2) * 20480 + 1024 * mt))
    for q in range(10):
        k.I('v_pk_add_f32 %s, %s, %s' % (vr(ACC + 2 * q, 2), vr(ACC + 2 * q, 2), vr(ACC + 20 + 2 * q, 2)))
        k.I('v_pk_add_f32 %s, %s, %s' % (vr(ACC + 40 + 2 * q, 2), vr(ACC + 40 + 2 * q, 2), vr(ACC + 60 + 2 * q, 2)))
    for q in range(10):
        k.I('v_pk_add_f32 %s, %s, %s' % (vr(ACC + 2 * q, 2), vr(ACC + 2 * q, 2), vr(ACC + 40 + 2 * q, 2)))
    k.stamp()
    U = ACC + 20
    PK = ACC + 40
    for q in range(10):
        bf16_round2(k, ACC + 2 * q, ACC + 2 * q + 1, 10)
        k.I('v_lshlrev_b32 v%d, 16, v%d' % (U + 2 * q, X1 + q))
        k.I('v_and_b32 v%d, 0xffff0000, v%d' % (U + 2 * q + 1, X1 + q))
        k.I('v_pk_add_f32 %s, %s, %s' % (vr(ACC + 2 * q, 2), vr(ACC + 2 * q, 2), vr(U + 2 * q, 2)))
        k.I('v_cvt_pk_bf16_f32 v%d, v%d, v%d' % (PK + q, ACC + 2 * q, ACC + 2 * q + 1))
    if final:
        for mt in range(5):
            k.I('buffer_store_dwordx2 %s, v6, %s, 0 offen offset:%d' % (vr(PK + 2 * mt, 2), SRD_OUT, 32 * mt))
    else:
        k.I('v_lshlrev_b32 v7, 1, v6')
        k.I('s_lshr_b32 s51, s41, 1')
        k.I('s_mul_i32 s51, s51, %d' % (5 * 131072))
        k.I('s_and_b32 s50, s41, 1')
        k.I('s_lshl_b32 s50, s50, 3')
        k.I('s_add_u32 s51, s51, s50')
        for mt in range(5):
            k.I('s_add_u32 s50, s51, %d' % (G.WS_XP + mt * 131072))
            k.I('buffer_store_dwordx2 %s, v7, %s, s50 offen' % (vr(PK + 2 * mt, 2), SRD_WS))
        for q in range(10):
            k.I('v_lshlrev_b32 v%d, 16, v%d' % (ACC + 2 * q, PK + q))
            k.I('v_and_b32 v%d, 0xffff0000, v%d' % (ACC + 2 * q + 1, PK + q))
        k.I('v_lshlrev_b32 v7, 2, v5')
        k.I('v_lshl_add_u32 v7, v3, 17, v7')
        k.I('v_cmp_eq_u32 vcc, 0, v3')
        k.I('v_add_u32 v9, %d, v7' % (40 * 65536))
        k.I('v_cndmask_b32 v11, v7, v9, vcc')
        k.I('v_lshlrev_b32 v9, 3, v5')
        k.I('s_lshl_b32 s52, s41, 13')
        k.I('s_add_u32 s52, s52, %d' % G.WS_P)
        k.I('s_mov_b32 s53, %d' % G.WS_STB)
        fwd_epilogue(k, ACC, 176, lambda mo, t: vr(G80 + 4 * (3 * mo + t)), 7, 11, 9, 55, 52)
    k.stamp()
    k.wait_vm0()
    k.stamp_flush(4 if final else 3, 44, SRD_WS)
    k.label('L_%s_end' % k.name)
    k.I('s_endpgm')
    return k, 256, 81920


def gemm_kernels(ks, launches, cl):
    g1 = gen_g1(False)
    g1b = gen_g1(True)
    ks.append(g1[0])
    ks.append(g1b[0])
    launches += [(g1[0].name, g1[1], g1[2]), cl, (g1b[0].name, g1b[1], g1b[2])]
```

```python
import sys
import numpy as np
from asmlib import Kernel, pack_bf16, f32bits, emit_table

import os
S, D, F = 2048, 640, 1536
PREP_IN_K1 = os.environ.get('PREP_IN_K1', '0') == '1'
TOUCH = os.environ.get('TOUCH', '0') == '1'
PI = np.pi

WS_W1F = 0x0
WS_W2FA = 0x200000
WS_W2FB = 0x400000
WS_WC = 0x600000
WS_P = 0x900000
WS_ST = 0xC00000
WS_STB = 0xC10000
WS_CNT = 0xC20000
WS_ZP = 0xD00000
WS_XP = 0x1000000
WS_X1P = 0x1300000
WS_X1N = 0x1600000
WS_H = 0x1900000
WS_HB = 0x2000000
WS_SIZE = 0x10000000

SRD_WS = 's[8:11]'
SRD_TAB = 's[12:15]'
SRD_A = 's[16:19]'
SRD_B = 's[20:23]'
SRD_C = 's[24:27]'
SRD_OUT = 's[28:31]'

tables = {}
table_off = {}


def add_table(name, words):
    tables[name] = np.asarray(words, dtype=np.uint32).reshape(-1)


def layout_tables():
    off = 0
    for n, w in tables.items():
        table_off[n] = off
        off += (len(w) * 4 + 255) // 256 * 256
    return off


def make_tables():
    T = np.zeros((5, 3, 64, 8))
    for mo in range(5):
        for t in range(3):
            for l in range(64):
                i, g = l % 16, l // 16
                n = 16 * mo + i
                k1, c = n // 2, n % 2
                for e in range(8):
                    mt, r = 2 * t + e // 4, e % 4
                    if mt >= 5:
                        continue
                    d1 = 16 * mt + 4 * g + r
                    if k1 == 0:
                        v = np.cos(PI * d1) if c == 0 else 0.0
                    else:
                        v = np.cos(2 * PI * k1 * d1 / 80) if c == 0 else -np.sin(2 * PI * k1 * d1 / 80)
                    T[mo, t, l, e] = v
    add_table('G80F', pack_bf16(T))
    T = np.zeros((41 * 8, 2, 8, 2))
    for k1 in range(41):
        for k2 in range(8):
            k = k1 + 80 * k2
            for d2 in range(8):
                th = 2 * PI * ((k * d2) % 640) / 640
                cr, ci = np.cos(th), -np.sin(th)
                if k1 == 0:
                    T[k1 * 8 + k2, 0, d2] = (cr, cr)
                    T[k1 * 8 + k2, 1, d2] = (ci, ci)
                else:
                    T[k1 * 8 + k2, 0, d2] = (cr, -ci)
                    T[k1 * 8 + k2, 1, d2] = (ci, cr)
    add_table('TZ', pack_bf16(T))
    T = np.zeros((2, 3, 64, 8))
    for tile in range(2):
        for l in range(64):
            i, g = l % 16, l // 16
            for e in range(8):
                a, b = 16 * tile + i, 8 * g + e
                th = 2 * PI * ((a * b) % 32) / 32
                T[tile, 0, l, e] = np.cos(th)
                T[tile, 1, l, e] = -np.sin(th)
                T[tile, 2, l, e] = np.sin(th)
    add_table('F32', pack_bf16(T))
    T = np.zeros((3, 4, 2, 64, 8))
    for mt in range(4):
        for t in range(2):
            for l in range(64):
                i, g = l % 16, l // 16
                for e in range(8):
                    a, b = 4 * i + mt, 16 * g + 4 * (e % 4) + 2 * t + e // 4
                    th = 2 * PI * ((a * b) % 64) / 64
                    T[0, mt, t, l, e] = np.cos(th)
                    T[1, mt, t, l, e] = -np.sin(th)
                    T[2, mt, t, l, e] = np.sin(th)
    add_table('F64', pack_bf16(T))
    T = np.zeros((2, 2, 4, 64, 4))
    for nt in range(2):
        for m in range(4):
            for l in range(64):
                j, g = l % 16, l // 16
                for r in range(4):
                    s2, k1p = 16 * g + 4 * r + m, 16 * nt + j
                    th = 2 * PI * (s2 * k1p) / 2048
                    T[nt, 0, m, l, r] = np.cos(th)
                    T[nt, 1, m, l, r] = -np.sin(th)
    add_table('TW', f32bits(T))
    T = np.zeros((22, 64, 2, 4))
    for k1 in range(41):
        for l in range(64):
            i, g = l % 16, l // 16
            d2, cp = i // 2, i % 2
            for e in range(4):
                k2, c = 2 * g + e // 2, e % 2
                ph = 2 * PI * (((k1 + 80 * k2) * d2) % 640) / 640
                if cp == 0:
                    v = np.cos(ph) if c == 0 else -np.sin(ph)
                else:
                    v = np.sin(ph) if c == 0 else np.cos(ph)
                T[k1 // 2, l, k1 % 2, e] = v
    add_table('TA', pack_bf16(T))
    T = np.zeros((5, 3, 64, 8))
    for mt in range(5):
        for t in range(3):
            for l in range(64):
                i, g = l % 16, l // 16
                d1 = 16 * mt + i
                for e in range(8):
                    k1, cp = 16 * t + 4 * g + e // 2, e % 2
                    if k1 > 40:
                        continue
                    th = 2 * PI * ((k1 * d1) % 80) / 80
                    if k1 in (0, 40):
                        v = np.cos(th) if cp == 0 else 0.0
                    else:
                        v = 2 * np.cos(th) if cp == 0 else -2 * np.sin(th)
                    T[mt, t, l, e] = v
    add_table('G80I', pack_bf16(T))


def prologue(k, need, early=None):
    k.I('s_load_dwordx2 s[4:5], s[0:1], 64')
    tmp = 32
    items = list(need.items())
    for n, (srd, (ko, nb)) in enumerate(items):
        k.I('s_load_dwordx2 s[%d:%d], s[0:1], %d' % (tmp + 2 * n, tmp + 2 * n + 1, ko))
    k.I('s_getpc_b64 s[6:7]')
    k.raw('    s_add_u32 s6, s6, tab_base@rel32@lo+4')
    k.raw('    s_addc_u32 s7, s7, tab_base@rel32@hi+12')
    k.I('s_mov_b32 s12, s6')
    k.I('s_and_b32 s13, s7, 0xffff')
    k.I('s_mov_b32 s14, %d' % TAB_BYTES)
    k.I('s_mov_b32 s15, 0x20000')
    if early is not None:
        early()
    k.wait_lgkm0()
    k.I('s_mov_b32 s8, s4')
    k.I('s_and_b32 s9, s5, 0xffff')
    k.I('s_mov_b32 s10, 0x%x' % WS_SIZE)
    k.I('s_mov_b32 s11, 0x20000')
    for n, (srd, (ko, nb)) in enumerate(items):
        b = int(srd[2:srd.index(':')])
        k.I('s_mov_b32 s%d, s%d' % (b, tmp + 2 * n))
        k.I('s_and_b32 s%d, s%d, 0xffff' % (b + 1, tmp + 2 * n + 1))
        k.I('s_mov_b32 s%d, %d' % (b + 2, nb))
        k.I('s_mov_b32 s%d, 0x20000' % (b + 3))


def xsum_g(k, reg, tmp):
    k.I('v_mov_b32 v%d, v%d' % (tmp, reg))
    k.I('v_permlane32_swap_b32 v%d, v%d' % (reg, tmp))
    k.I('v_add_f32 v%d, v%d, v%d' % (reg, reg, tmp))
    k.I('v_mov_b32 v%d, v%d' % (tmp, reg))
    k.I('v_permlane16_swap_b32 v%d, v%d' % (reg, tmp))
    k.I('v_add_f32 v%d, v%d, v%d' % (reg, reg, tmp))


def fwd_epilogue(k, X, T, G80, vP, vP0, vST, sbase, d2_soff_sgpr, statacc=None):
    sm, t1, mean, m2 = T, T + 1, T + 2, T + 3
    acc = T + 4
    B = T + 8
    Dm = T + 20
    k.I('v_pk_add_f32 v[%d:%d], v[%d:%d], v[%d:%d]' % (acc, acc + 1, X, X + 1, X + 2, X + 3))
    for q in range(2, 10):
        k.I('v_pk_add_f32 v[%d:%d], v[%d:%d], v[%d:%d]' % (acc, acc + 1, acc, acc + 1, X + 2 * q, X + 2 * q + 1))
    k.I('v_add_f32 v%d, v%d, v%d' % (sm, acc, acc + 1))
    xsum_g(k, sm, t1)
    k.I('v_mul_f32 v%d, 0x%x, v%d' % (mean, f32bits(1.0 / 80), sm))
    for q in range(10):
        k.I('v_pk_add_f32 v[%d:%d], v[%d:%d], v[%d:%d] op_sel_hi:[1,0] neg_lo:[0,1] neg_hi:[0,1]'
            % (X + 2 * q, X + 2 * q + 1, X + 2 * q, X + 2 * q + 1, mean, mean + 1))
    k.I('v_pk_mul_f32 v[%d:%d], v[%d:%d], v[%d:%d]' % (acc, acc + 1, X, X + 1, X, X + 1))
    for q in range(1, 10):
        k.I('v_pk_fma_f32 v[%d:%d], v[%d:%d], v[%d:%d], v[%d:%d]'
            % (acc, acc + 1, X + 2 * q, X + 2 * q + 1, X + 2 * q, X + 2 * q + 1, acc, acc + 1))
    k.I('v_add_f32 v%d, v%d, v%d' % (m2, acc, acc + 1))
    for q in range(10):
        k.I('v_cvt_pk_bf16_f32 v%d, v%d, v%d' % (B + q, X + 2 * q, X + 2 * q + 1))
    k.I('v_mov_b32 v%d, 0' % (B + 10))
    k.I('v_mov_b32 v%d, 0' % (B + 11))
    xsum_g(k, m2, t1)
    for mo in range(5):
        for t in range(3):
            c = '0' if t == 0 else 'v[%d:%d]' % (Dm + 4 * mo, Dm + 4 * mo + 3)
            k.I('v_mfma_f32_16x16x32_bf16 v[%d:%d], %s, v[%d:%d], %s'
                % (Dm + 4 * mo, Dm + 4 * mo + 3, G80(mo, t), B + 4 * t, B + 4 * t + 3, c))
    hi, lo = acc, acc + 1
    k.I('v_cvt_pk_bf16_f32 v%d, v%d, v%d' % (hi, sm, sm))
    k.I('v_and_b32 v%d, 0xffff0000, v%d' % (hi, hi))
    k.I('v_sub_f32 v%d, v%d, v%d' % (lo, sm, hi))
    k.I('v_cvt_pk_bf16_f32 v%d, v%d, v%d' % (hi, hi, lo))
    k.I('v_fmac_f32 v%d, v%d, v%d' % (m2, sm, mean))
    k.I('s_mov_b64 exec, 0xffff')
    k.I('buffer_store_dword v%d, v%d, %s, s%d offen' % (hi, vP, SRD_WS, d2_soff_sgpr))
    if statacc is None:
        k.I('buffer_atomic_add_f32 v%d, v%d, %s, s%d offen' % (sm, vST, SRD_WS, d2_soff_sgpr + 1))
        k.I('buffer_atomic_add_f32 v%d, v%d, %s, s%d offen offset:4' % (m2, vST, SRD_WS, d2_soff_sgpr + 1))
    k.I('s_mov_b64 exec, -1')
    if statacc is not None:
        k.I('v_add_f32 v%d, v%d, v%d' % (statacc, statacc, sm))
        k.I('v_add_f32 v%d, v%d, v%d' % (statacc + 1, statacc + 1, m2))
    for mo in range(5):
        for h in range(2):
            o = B + 2 * mo + h
            o = X + 2 * mo + h
            k.I('v_cvt_pk_bf16_f32 v%d, v%d, v%d' % (o, Dm + 4 * mo + 2 * h, Dm + 4 * mo + 2 * h + 1))
            k.I('s_add_u32 s%d, s%d, %d' % (sbase, d2_soff_sgpr, (8 * mo + h) * 65536))
            k.I('buffer_store_dword v%d, v%d, %s, s%d offen'
                % (o, vP0 if (mo == 0 and h == 0) else vP, SRD_WS, sbase))


def dma_table(k, tab_off, nchunks, lds_base, wave_s, vlane16, st):
    k.I('s_lshl_b32 s%d, s%d, 10' % (st, wave_s))
    k.I('s_add_u32 m0, s%d, %d' % (st, lds_base))
    k.I('s_add_u32 s%d, s%d, %d' % (st, st, tab_off))
    for i in range((nchunks + 3) // 4):
        if i:
            k.I('s_add_u32 m0, m0, 4096')
            k.I('s_add_u32 s%d, s%d, 4096' % (st, st))
        k.I('buffer_load_dwordx4 v%d, %s, s%d offen lds' % (vlane16, SRD_TAB, st))


def stub_kernel(name, main, sreg, value, target):
    k = Kernel(name)
    k.I('s_mov_b32 s%d, %d' % (sreg, value))
    k.I('s_branch %s' % target)
    k.main = main
    return k


def lane_ids(k, vj, vg, vw_s):
    k.I('v_and_b32 v%d, 15, v0' % vj)
    k.I('v_bfe_u32 v%d, v0, 4, 2' % vg)
    k.I('v_lshrrev_b32 v1, 6, v0')
    k.I('v_readfirstlane_b32 s%d, v1' % vw_s)


def gen_wprep(k, base):
    N1, N2 = 30, 30
    k.I('s_cmp_ge_u32 s2, %d' % (base + N1 + N2))
    k.I('s_cbranch_scc1 L_prep_end')
    prologue(k, {SRD_OUT: (32, D * F * 2), 's[40:43]': (40, F * D * 2)})
    SRD_W1, SRD_W2 = SRD_OUT, 's[40:43]'
    lane_ids(k, 2, 3, 44)
    k.I('v_and_b32 v4, 63, v0')
    k.I('v_lshlrev_b32 v8, 4, v4')
    k.I('s_mov_b32 s46, 0x05040100')
    k.I('s_mov_b32 s47, 0x07060302')
    k.I('s_lshl_b32 s59, s44, 14')
    k.I('v_lshrrev_b32 v9, 1, v2')
    k.I('v_lshlrev_b32 v9, 10, v9')
    k.I('v_and_b32 v10, 1, v2')
    k.I('v_lshl_add_u32 v9, v10, 7, v9')
    k.I('v_lshl_add_u32 v9, v3, 8, v9')
    k.I('v_add_u32 v9, s59, v9')
    k.I('v_add_u32 v10, s59, v8')

    def transpose8(R, O):
        for c in range(8):
            for kk in range(4):
                k.I('v_perm_b32 v%d, v%d, v%d, %s' % (O + 4 * c + kk, R + 4 * (2 * kk + 1) + c // 2,
                                                      R + 4 * (2 * kk) + c // 2, 's47' if c % 2 else 's46'))

    def via_lds(O, i, T):
        for c in range(8):
            k.I('ds_write_b128 v9, v[%d:%d] offset:%d' % (O + 4 * c, O + 4 * c + 3, 8192 * i + 16 * c))
        for q in range(8):
            k.I('ds_read_b128 v[%d:%d], v10 offset:%d' % (T + 4 * q, T + 4 * q + 3, 8192 * i + 1024 * q))
    k.I('s_cmp_ge_u32 s2, %d' % (base + N1))
    k.I('s_cbranch_scc1 L_prep_w2')
    k.I('s_sub_u32 s45, s2, %d' % base)
    k.I('s_lshl_b32 s45, s45, 2')
    k.I('s_add_u32 s45, s45, s44')
    k.I('s_lshl_b32 s45, s45, 1')
    k.I('v_mul_u32_u24 v5, %d, v3' % (32 * 3072))
    k.I('v_lshl_add_u32 v5, v2, 4, v5')
    for i in range(2):
        R = 16 + 32 * i
        k.I('s_add_u32 s56, s45, %d' % i)
        k.I('s_mul_i32 s57, s56, 43691')
        k.I('s_lshr_b32 s%d, s57, 19' % (60 + 2 * i))
        k.I('s_mul_i32 s58, s%d, 12' % (60 + 2 * i))
        k.I('s_sub_u32 s%d, s56, s58' % (61 + 2 * i))
        for e in range(8):
            k.I('s_lshl_b32 s50, s%d, 1' % (60 + 2 * i))
            k.I('s_add_u32 s50, s50, %d' % (e // 4))
            k.I('s_mul_i32 s51, s50, 13')
            k.I('s_lshr_b32 s51, s51, 6')
            k.I('s_mul_i32 s52, s51, 5')
            k.I('s_sub_u32 s52, s50, s52')
            k.I('s_lshl_b32 s52, s52, 7')
            k.I('s_add_u32 s52, s52, s51')
            k.I('s_add_u32 s52, s52, %d' % (8 * (e % 4)))
            k.I('s_mul_i32 s52, s52, 3072')
            k.I('s_lshl_b32 s53, s%d, 8' % (61 + 2 * i))
            k.I('s_add_u32 s52, s52, s53')
            k.I('buffer_load_dwordx4 v[%d:%d], v5, %s, s52 offen' % (R + 4 * e, R + 4 * e + 3, SRD_W1))
    for i in range(2):
        R, O, T = 16 + 32 * i, 80 + 32 * i, 144 + 32 * i
        transpose8(R, O)
        via_lds(O, i, T)
        k.I('s_mul_i32 s50, s%d, %d' % (61 + 2 * i, 8 * 20480))
        k.I('s_lshl_b32 s51, s%d, 10' % (60 + 2 * i))
        k.I('s_add_u32 s50, s50, s51')
        for q in range(8):
            k.I('s_add_u32 s51, s50, %d' % (WS_W1F + q * 20480))
            k.I('buffer_store_dwordx4 v[%d:%d], v8, %s, s51 offen' % (T + 4 * q, T + 4 * q + 3, SRD_WS))
    k.I('s_endpgm')
    k.label('L_prep_w2')
    k.I('s_sub_u32 s45, s2, %d' % (base + N1))
    k.I('s_lshl_b32 s45, s45, 2')
    k.I('s_add_u32 s45, s45, s44')
    k.I('s_lshl_b32 s45, s45, 1')
    k.I('v_mul_u32_u24 v5, 5120, v3')
    k.I('v_lshl_add_u32 v5, v2, 4, v5')
    for i in range(2):
        R = 16 + 32 * i
        k.I('s_add_u32 s56, s45, %d' % i)
        k.I('s_mul_i32 s57, s56, 52429')
        k.I('s_lshr_b32 s%d, s57, 18' % (60 + 2 * i))
        k.I('s_mul_i32 s58, s%d, 5' % (60 + 2 * i))
        k.I('s_sub_u32 s%d, s56, s58' % (61 + 2 * i))
        for e in range(8):
            k.I('s_lshl_b32 s50, s%d, 5' % (60 + 2 * i))
            k.I('s_add_u32 s50, s50, %d' % (16 * (e // 4) + e % 4))
            k.I('s_mul_i32 s50, s50, 1280')
            k.I('s_lshl_b32 s53, s%d, 8' % (61 + 2 * i))
            k.I('s_add_u32 s50, s50, s53')
            k.I('buffer_load_dwordx4 v[%d:%d], v5, %s, s50 offen' % (R + 4 * e, R + 4 * e + 3, SRD_W2))
    for i in range(2):
        R, O, T = 16 + 32 * i, 80 + 32 * i, 144 + 32 * i
        transpose8(R, O)
        via_lds(O, i, T)
        k.I('s_mul_i32 s50, s%d, 49152' % (61 + 2 * i))
        k.I('s_lshl_b32 s51, s%d, 10' % (60 + 2 * i))
        k.I('s_add_u32 s50, s50, s51')
        for c in range(8):
            k.I('s_add_u32 s52, s50, %d' % (WS_W2FA + c * 245760))
            k.I('buffer_store_dwordx4 v[%d:%d], v8, %s, s52 offen' % (O + 4 * c, O + 4 * c + 3, SRD_WS))
        k.I('s_mul_i32 s50, s%d, %d' % (61 + 2 * i, 8 * 49152))
        k.I('s_add_u32 s50, s50, s51')
        for q in range(8):
            k.I('s_add_u32 s52, s50, %d' % (WS_W2FB + q * 49152))
            k.I('buffer_store_dwordx4 v[%d:%d], v8, %s, s52 offen' % (T + 4 * q, T + 4 * q + 3, SRD_WS))
    k.label('L_prep_end')
    k.I('s_endpgm')
    return N1 + N2


def gen_k1():
    k = Kernel('k1_kernel')
    NX, NW = 128, 256
    k.I('s_cmp_ge_u32 s2, %d' % (NX + NW))
    k.I('s_cbranch_scc1 %s' % ('L_k1_touch' if TOUCH else ('L_k1_prep' if PREP_IN_K1 else 'L_k1_end')))
    k.stamp()
    prologue(k, {SRD_A: (0, S * D * 2), SRD_B: (8, S * 321 * 2), SRD_C: (16, S * 321 * 2)})
    lane_ids(k, 2, 3, 44)
    k.I('s_mov_b32 s46, 0x05040100')
    k.I('s_mov_b32 s47, 0x07060302')
    k.I('s_cmp_ge_u32 s2, %d' % NX)
    k.I('s_cbranch_scc1 L_k1_w')
    k.I('s_lshl_b32 s45, s2, 4')
    k.I('v_add_u32 v4, s45, v2')
    XL = 512 + 16 * 1024
    R = 16
    k.I('s_mul_i32 s48, s2, 20480')
    k.I('v_lshlrev_b32 v5, 4, v0')
    for i in range(5):
        k.I('s_add_u32 s49, s48, %d' % (4096 * i))
        k.I('buffer_load_dwordx4 v[%d:%d], v5, %s, s49 offen' % (40 + 4 * i, 43 + 4 * i, SRD_A))
    k.I('v_and_b32 v6, 63, v0')
    k.I('v_lshlrev_b32 v6, 4, v6')
    dma_table(k, table_off['G80F'], 15, 512, 44, 6, 50)
    k.I('s_mov_b32 s48, 52429')
    for i in range(5):
        k.I('v_add_u32 v7, %d, v0' % (256 * i))
        k.I('v_mul_lo_u32 v8, v7, s48')
        k.I('v_lshrrev_b32 v8, 22, v8')
        k.I('v_lshlrev_b32 v7, 4, v7')
        k.I('v_lshl_add_u32 v7, v8, 4, v7')
        k.I('ds_write_b128 v7, v[%d:%d] offset:%d' % (40 + 4 * i, 43 + 4 * i, XL))
    k.wait_vm0()
    k.barrier()
    k.I('v_mul_u32_u24 v5, 1296, v2')
    k.I('v_lshl_add_u32 v5, v3, 6, v5')
    k.I('s_lshl_b32 s49, s44, 2')
    k.I('v_add_u32 v5, s49, v5')
    for mt in range(5):
        for r in range(4):
            k.I('ds_read_b32 v%d, v5 offset:%d' % (R + 4 * mt + r, XL + 256 * mt + 16 * r))
    for q in range(15):
        k.I('ds_read_b128 a[%d:%d], v6 offset:%d' % (4 * q, 4 * q + 3, 512 + 1024 * q))
    k.I('v_lshlrev_b32 v7, 2, v4')
    k.I('v_lshl_add_u32 v7, v3, 17, v7')
    k.I('v_mov_b32 v8, v7')
    k.I('v_cmp_eq_u32 vcc, 0, v3')
    k.I('v_add_u32 v9, %d, v7' % (40 * 65536))
    k.I('v_cndmask_b32 v8, v7, v9, vcc')
    k.I('v_lshlrev_b32 v9, 3, v4')
    k.I('v_mov_b32 v12, 0')
    k.I('v_mov_b32 v13, 0')
    k.I('v_lshlrev_b32 v10, 6, v4')
    k.I('v_lshl_add_u32 v10, v3, 4, v10')
    X, T, PK = 40, 64, 104
    k.I('s_mul_i32 s54, s44, %d' % (5 * 131072))
    k.I('s_add_u32 s54, s54, %d' % WS_XP)
    for mt in range(5):
        pk = PK + 4 * mt
        k.I('v_perm_b32 v%d, v%d, v%d, s46' % (pk, R + 4 * mt + 1, R + 4 * mt))
        k.I('v_perm_b32 v%d, v%d, v%d, s46' % (pk + 1, R + 4 * mt + 3, R + 4 * mt + 2))
        k.I('v_perm_b32 v%d, v%d, v%d, s47' % (pk + 2, R + 4 * mt + 1, R + 4 * mt))
        k.I('v_perm_b32 v%d, v%d, v%d, s47' % (pk + 3, R + 4 * mt + 3, R + 4 * mt + 2))
        k.I('s_add_u32 s55, s54, %d' % (mt * 131072))
        k.I('buffer_store_dwordx4 v[%d:%d], v10, %s, s55 offen' % (pk, pk + 3, SRD_WS))
    for e in range(2):
        k.I('s_lshl_b32 s51, s44, 1')
        k.I('s_add_u32 s51, s51, %d' % e)
        k.I('s_lshl_b32 s52, s51, 13')
        k.I('s_add_u32 s52, s52, %d' % WS_P)
        for q in range(20):
            if e == 0:
                k.I('v_lshlrev_b32 v%d, 16, v%d' % (X + q, R + q))
            else:
                k.I('v_and_b32 v%d, 0xffff0000, v%d' % (X + q, R + q))
        fwd_epilogue(k, X, T, lambda mo, t: 'a[%d:%d]' % (4 * (3 * mo + t), 4 * (3 * mo + t) + 3),
                     7, 8, 9, 55, 52, statacc=12)
    k.I('s_lshl_b32 s51, s44, 7')
    k.I('v_lshl_add_u32 v14, v2, 3, s51')
    k.I('s_mov_b64 exec, 0xffff')
    k.I('ds_write_b64 v14, v[12:13]')
    k.I('s_mov_b64 exec, -1')
    k.barrier()
    k.I('s_cmp_eq_u32 s44, 0')
    k.I('s_cbranch_scc0 L_k1_xdone')
    k.I('v_lshlrev_b32 v14, 3, v2')
    for w in range(4):
        k.I('ds_read_b64 v[%d:%d], v14 offset:%d' % (16 + 2 * w, 17 + 2 * w, 128 * w))
    k.I('v_pk_add_f32 v[16:17], v[16:17], v[18:19]')
    k.I('v_pk_add_f32 v[20:21], v[20:21], v[22:23]')
    k.I('v_pk_add_f32 v[16:17], v[16:17], v[20:21]')
    k.I('v_mov_b32 v18, 0')
    k.I('v_mov_b32 v19, 0')
    k.I('s_mov_b32 s51, %d' % WS_ST)
    k.I('s_mov_b32 s52, %d' % WS_STB)
    k.I('s_mov_b64 exec, 0xffff')
    k.I('buffer_store_dwordx2 v[16:17], v9, %s, s51 offen' % SRD_WS)
    k.I('buffer_store_dwordx2 v[18:19], v9, %s, s52 offen' % SRD_WS)
    k.I('s_mov_b64 exec, -1')
    k.label('L_k1_xdone')
    k.stamp()
    k.wait_vm0()
    k.stamp_flush(0, 44, SRD_WS)
    k.nstamp = 1
    k.I('s_endpgm')
    k.label('L_k1_w')
    k.I('s_sub_u32 s45, s2, %d' % NX)
    k.I('s_lshr_b32 s48, s45, 5')
    k.I('s_and_b32 s49, s45, 31')
    k.I('s_lshl_b32 s49, s49, 2')
    k.I('s_add_u32 s49, s49, s44')
    k.I('s_lshr_b32 s50, s49, 6')
    k.I('s_and_b32 s51, s49, 63')
    k.I('s_and_b32 s52, s51, 15')
    k.I('s_lshr_b32 s53, s51, 4')
    k.I('s_lshl_b32 s54, s50, 4')
    k.I('s_add_u32 s54, s54, s52')
    k.I('s_lshl_b32 s55, s53, 9')
    k.I('s_add_u32 s54, s54, s55')
    k.I('v_and_b32 v4, 63, v0')
    k.I('s_mul_i32 s55, s48, 80')
    k.I('v_add_u32 v5, s55, v4')
    k.I('v_sub_u32 v6, 640, v5')
    k.I('s_cmp_lt_u32 s48, 4')
    k.I('s_cselect_b32 s56, 0, -1')
    k.I('s_cselect_b32 s57, 0, 0x80000000')
    k.I('v_mov_b32 v7, s56')
    k.I('v_cmp_eq_u32 vcc, 0, v7')
    k.I('v_cndmask_b32 v5, v6, v5, vcc')
    k.I('v_lshlrev_b32 v5, 1, v5')
    RE, IM, RE2, IM2 = 16, 32, 48, 64
    for mt in range(4):
        for r in range(4):
            q = 4 * mt + r
            k.I('s_add_u32 s58, s54, %d' % (32 * (4 * r + mt)))
            k.I('s_sub_u32 s59, 0, s58')
            k.I('s_and_b32 s59, s59, 2047')
            k.I('s_cmp_lt_u32 s48, 4')
            k.I('s_cselect_b32 s60, s58, s59')
            k.I('s_mul_i32 s60, s60, 642')
            k.I('buffer_load_ushort v%d, v5, %s, s60 offen' % (RE + q, SRD_B))
            k.I('buffer_load_ushort v%d, v5, %s, s60 offen' % (IM + q, SRD_C))
    k.I('s_and_b32 s61, s48, 3')
    k.I('s_cmp_eq_u32 s61, 0')
    k.I('s_cbranch_scc0 L_k1_w_nosym')
    for mt in range(4):
        for r in range(4):
            q = 4 * mt + r
            k.I('s_add_u32 s58, s54, %d' % (32 * (4 * r + mt)))
            k.I('s_sub_u32 s59, 0, s58')
            k.I('s_and_b32 s59, s59, 2047')
            k.I('s_cmp_lt_u32 s48, 4')
            k.I('s_cselect_b32 s60, s59, s58')
            k.I('s_mul_i32 s60, s60, 642')
            k.I('buffer_load_ushort v%d, v5, %s, s60 offen' % (RE2 + q, SRD_B))
            k.I('buffer_load_ushort v%d, v5, %s, s60 offen' % (IM2 + q, SRD_C))
    k.wait_vm0()
    k.I('s_mov_b64 exec, 1')
    for q in range(16):
        k.I('v_lshlrev_b32 v8, 16, v%d' % (RE + q))
        k.I('v_lshlrev_b32 v9, 16, v%d' % (RE2 + q))
        k.I('v_add_f32 v8, v8, v9')
        k.I('v_mul_f32 v8, 0.5, v8')
        k.I('v_lshlrev_b32 v10, 16, v%d' % (IM + q))
        k.I('v_lshlrev_b32 v9, 16, v%d' % (IM2 + q))
        k.I('v_sub_f32 v10, v10, v9')
        k.I('v_mul_f32 v10, 0.5, v10')
        k.I('v_cvt_pk_bf16_f32 v8, v8, v10')
        k.I('v_and_b32 v%d, 0xffff, v8' % (RE + q))
        k.I('v_lshrrev_b32 v%d, 16, v8' % (IM + q))
    k.I('s_mov_b64 exec, -1')
    k.label('L_k1_w_nosym')
    k.wait_vm0()
    for q in range(16):
        k.I('v_lshl_or_b32 v%d, v%d, 16, v%d' % (RE + q, IM + q, RE + q))
        k.I('v_xor_b32 v%d, s57, v%d' % (RE + q, RE + q))
    k.I('v_lshlrev_b32 v6, 16, v4')
    k.I('s_lshl_b32 s58, s48, 13')
    k.I('s_lshl_b32 s59, s49, 6')
    k.I('s_add_u32 s58, s58, s59')
    k.I('s_add_u32 s58, s58, %d' % WS_WC)
    k.I('v_cmp_gt_u32 vcc, 41, v4')
    k.I('s_and_saveexec_b64 s[62:63], vcc')
    for mt in range(4):
        k.I('buffer_store_dwordx4 v[%d:%d], v6, %s, s58 offen offset:%d' % (RE + 4 * mt, RE + 4 * mt + 3, SRD_WS, 16 * mt))
    k.stamp()
    k.wait_vm0()
    k.stamp_flush(0, 44, SRD_WS)
    k.nstamp = 1
    k.I('s_endpgm')

    k.label('L_k1_end')
    k.I('s_endpgm')
    if TOUCH:
        k.label('L_k1_touch')
        k.vm, k.lg = [], []
        NT = 64
        k.I('s_cmp_ge_u32 s2, %d' % (NX + NW + NT))
        k.I('s_cbranch_scc1 L_k1_end')
        k.I('s_getpc_b64 s[6:7]')
        k.out.append('L_k1_pc:')
        k.raw('    s_sub_u32 s8, s6, L_k1_pc-k1_kernel')
        k.raw('    s_subb_u32 s9, s7, 0')
        k.I('s_and_b32 s9, s9, 0xffff')
        k.raw('    s_mov_b32 s10, L_text_end-k1_kernel')
        k.I('s_mov_b32 s11, 0x20000')
        k.I('s_getpc_b64 s[6:7]')
        k.raw('    s_add_u32 s6, s6, tab_base@rel32@lo+4')
        k.raw('    s_addc_u32 s7, s7, tab_base@rel32@hi+12')
        k.I('s_mov_b32 s12, s6')
        k.I('s_and_b32 s13, s7, 0xffff')
        k.I('s_mov_b32 s14, %d' % TAB_BYTES)
        k.I('s_mov_b32 s15, 0x20000')
        k.I('s_sub_u32 s16, s2, %d' % (NX + NW))
        k.I('s_lshl_b32 s16, s16, 12')
        k.I('v_lshlrev_b32 v1, 4, v0')
        k.I('buffer_load_dwordx4 v[4:7], v1, s[8:11], s16 offen')
        k.I('buffer_load_dwordx4 v[8:11], v1, s[12:15], s16 offen')
        k.wait_vm0()
        k.I('s_endpgm')
        return k, NX + NW + NT, 512 + 16 * 1024 + 16 * 1296
    if PREP_IN_K1:
        k.label('L_k1_prep')
        k.vm, k.lg = [], []
        n = gen_wprep(k, NX + NW)
        return k, NX + NW + n, 65536
    return k, (NX + NW), 512 + 16 * 1024 + 16 * 1296


HEADER = '''; Kernarg layout for this problem (72 bytes, ptrs only, base s[0:1]):
'''


def build(kernels, launches):
    out = [HEADER.rstrip('\n')]
    for name, grid, lds in launches:
        out.append('; @launch kernel=%s grid=(%d,1,1) block=(256,1,1) lds=%d' % (name, grid, lds))
    out.append('.amdgcn_target "amdgcn-amd-amdhsa--gfx950"')
    out.append('.text')
    for k in kernels:
        out.append('.globl %s' % k.name)
        out.append('.p2align 8')
        out.append('.type %s,@function' % k.name)
        out.append('%s:' % k.name)
        out += k.out
    out.append('L_text_end:')
    out.append('.section .rodata,"a"')
    for k in kernels:
        if getattr(k, 'main', None) is not None:
            k.maxv, k.maxa, k.maxs = k.main.maxv, k.main.maxa, k.main.maxs
        nv = k.maxv + 1
        acc_off = (nv + 3) // 4 * 4
        nfv = acc_off + (k.maxa + 1) if k.maxa >= 0 else nv
        out.append('.p2align 6')
        out.append('.amdhsa_kernel %s' % k.name)
        out.append('  .amdhsa_next_free_vgpr %d' % nfv)
        out.append('  .amdhsa_next_free_sgpr %d' % max(k.maxs + 1, 16))
        out.append('  .amdhsa_accum_offset %d' % acc_off)
        out.append('  .amdhsa_group_segment_fixed_size 0')
        out.append('  .amdhsa_kernarg_size 72')
        out.append('  .amdhsa_user_sgpr_count 2')
        out.append('  .amdhsa_user_sgpr_kernarg_segment_ptr 1')
        out.append('  .amdhsa_system_sgpr_workgroup_id_x 1')
        out.append('  .amdhsa_float_denorm_mode_32 3')
        out.append('  .amdhsa_float_denorm_mode_16_64 3')
        out.append('.end_amdhsa_kernel')
    out.append('.p2align 8')
    out.append('tab_base:')
    for n, w in tables.items():
        out += emit_table('tab_' + n, w)
    return '\n'.join(out) + '\n'


make_tables()
TAB_BYTES = layout_tables()

if __name__ == '__main__':
    if len(sys.argv) > 2 and sys.argv[2] in ('diag', 'real'):
        Kernel.DIAG = True
        Kernel.REAL = sys.argv[2] == 'real'
    ks, launches = [], []
    k, g, l = gen_k1()
    ks.append(k)
    launches.append((k.name, g, l))
    try:
        from gen2 import more_kernels
        more_kernels(ks, launches)
    except ImportError:
        pass
    path = sys.argv[1] if len(sys.argv) > 1 else 'interleave_layers__spectral_gfnet__dense_activation_silu__prompt.s'
    open(path, 'w').write(build(ks, launches))
    print('wrote', path)
```

```python
import sys
import numpy as np
from asmlib import Kernel, pack_bf16, f32bits, emit_table

import os
S, D, F = 2048, 640, 1536
PREP_IN_K1 = os.environ.get('PREP_IN_K1', '0') == '1'
TOUCH = int(os.environ.get('TOUCH', '1'))
PI = np.pi

WS_W1F = 0x0
WS_W2FA = 0x200000
WS_W2FB = 0x400000
WS_WC = 0x600000
WS_P = 0x900000
WS_ST = 0xC00000
WS_STB = 0xC10000
WS_CNT = 0xC20000
WS_ZP = 0xD00000
WS_XP = 0x1000000
WS_X1P = 0x1300000
WS_X1N = 0x1600000
WS_H = 0x1900000
WS_HB = 0x2000000
WS_SIZE = 0x10000000

SRD_WS = 's[8:11]'
SRD_TAB = 's[12:15]'
SRD_A = 's[16:19]'
SRD_B = 's[20:23]'
SRD_C = 's[24:27]'
SRD_OUT = 's[28:31]'

tables = {}
table_off = {}


def add_table(name, words):
    tables[name] = np.asarray(words, dtype=np.uint32).reshape(-1)


def layout_tables():
    off = 0
    for n, w in tables.items():
        table_off[n] = off
        off += (len(w) * 4 + 255) // 256 * 256
    return off


def make_tables():
    T = np.zeros((5, 3, 64, 8))
    for mo in range(5):
        for t in range(3):
            for l in range(64):
                i, g = l % 16, l // 16
                n = 16 * mo + i
                k1, c = n // 2, n % 2
                for e in range(8):
                    mt, r = 2 * t + e // 4, e % 4
                    if mt >= 5:
                        continue
                    d1 = 16 * mt + 4 * g + r
                    if k1 == 0:
                        v = np.cos(PI * d1) if c == 0 else 0.0
                    else:
                        v = np.cos(2 * PI * k1 * d1 / 80) if c == 0 else -np.sin(2 * PI * k1 * d1 / 80)
                    T[mo, t, l, e] = v
    add_table('G80F', pack_bf16(T))
    T = np.zeros((41 * 8, 2, 8, 2))
    for k1 in range(41):
        for k2 in range(8):
            k = k1 + 80 * k2
            for d2 in range(8):
                th = 2 * PI * ((k * d2) % 640) / 640
                cr, ci = np.cos(th), -np.sin(th)
                if k1 == 0:
                    T[k1 * 8 + k2, 0, d2] = (cr, cr)
                    T[k1 * 8 + k2, 1, d2] = (ci, ci)
                else:
                    T[k1 * 8 + k2, 0, d2] = (cr, -ci)
                    T[k1 * 8 + k2, 1, d2] = (ci, cr)
    add_table('TZ', pack_bf16(T))
    T = np.zeros((2, 3, 64, 8))
    for tile in range(2):
        for l in range(64):
            i, g = l % 16, l // 16
            for e in range(8):
                a, b = 16 * tile + i, 8 * g + e
                th = 2 * PI * ((a * b) % 32) / 32
                T[tile, 0, l, e] = np.cos(th)
                T[tile, 1, l, e] = -np.sin(th)
                T[tile, 2, l, e] = np.sin(th)
    add_table('F32', pack_bf16(T))
    T = np.zeros((3, 4, 2, 64, 8))
    for mt in range(4):
        for t in range(2):
            for l in range(64):
                i, g = l % 16, l // 16
                for e in range(8):
                    a, b = 4 * i + mt, 16 * g + 4 * (e % 4) + 2 * t + e // 4
                    th = 2 * PI * ((a * b) % 64) / 64
                    T[0, mt, t, l, e] = np.cos(th)
                    T[1, mt, t, l, e] = -np.sin(th)
                    T[2, mt, t, l, e] = np.sin(th)
    add_table('F64', pack_bf16(T))
    T = np.zeros((2, 2, 4, 64, 4))
    for nt in range(2):
        for m in range(4):
            for l in range(64):
                j, g = l % 16, l // 16
                for r in range(4):
                    s2, k1p = 16 * g + 4 * r + m, 16 * nt + j
                    th = 2 * PI * (s2 * k1p) / 2048
                    T[nt, 0, m, l, r] = np.cos(th)
                    T[nt, 1, m, l, r] = -np.sin(th)
    add_table('TW', f32bits(T))
    T = np.zeros((22, 64, 2, 4))
    for k1 in range(41):
        for l in range(64):
            i, g = l % 16, l // 16
            d2, cp = i // 2, i % 2
            for e in range(4):
                k2, c = 2 * g + e // 2, e % 2
                ph = 2 * PI * (((k1 + 80 * k2) * d2) % 640) / 640
                if cp == 0:
                    v = np.cos(ph) if c == 0 else -np.sin(ph)
                else:
                    v = np.sin(ph) if c == 0 else np.cos(ph)
                T[k1 // 2, l, k1 % 2, e] = v
    add_table('TA', pack_bf16(T))
    T = np.zeros((5, 3, 64, 8))
    for mt in range(5):
        for t in range(3):
            for l in range(64):
                i, g = l % 16, l // 16
                d1 = 16 * mt + i
                for e in range(8):
                    k1, cp = 16 * t + 4 * g + e // 2, e % 2
                    if k1 > 40:
                        continue
                    th = 2 * PI * ((k1 * d1) % 80) / 80
                    if k1 in (0, 40):
                        v = np.cos(th) if cp == 0 else 0.0
                    else:
                        v = 2 * np.cos(th) if cp == 0 else -2 * np.sin(th)
                    T[mt, t, l, e] = v
    add_table('G80I', pack_bf16(T))


def prologue(k, need, early=None):
    k.I('s_load_dwordx2 s[4:5], s[0:1], 64')
    tmp = 32
    items = list(need.items())
    for n, (srd, (ko, nb)) in enumerate(items):
        k.I('s_load_dwordx2 s[%d:%d], s[0:1], %d' % (tmp + 2 * n, tmp + 2 * n + 1, ko))
    k.I('s_getpc_b64 s[6:7]')
    k.raw('    s_add_u32 s6, s6, tab_base@rel32@lo+4')
    k.raw('    s_addc_u32 s7, s7, tab_base@rel32@hi+12')
    k.I('s_mov_b32 s12, s6')
    k.I('s_and_b32 s13, s7, 0xffff')
    k.I('s_mov_b32 s14, %d' % TAB_BYTES)
    k.I('s_mov_b32 s15, 0x20000')
    if early is not None:
        early()
    k.wait_lgkm0()
    k.I('s_mov_b32 s8, s4')
    k.I('s_and_b32 s9, s5, 0xffff')
    k.I('s_mov_b32 s10, 0x%x' % WS_SIZE)
    k.I('s_mov_b32 s11, 0x20000')
    for n, (srd, (ko, nb)) in enumerate(items):
        b = int(srd[2:srd.index(':')])
        k.I('s_mov_b32 s%d, s%d' % (b, tmp + 2 * n))
        k.I('s_and_b32 s%d, s%d, 0xffff' % (b + 1, tmp + 2 * n + 1))
        k.I('s_mov_b32 s%d, %d' % (b + 2, nb))
        k.I('s_mov_b32 s%d, 0x20000' % (b + 3))


def xsum_g(k, reg, tmp):
    k.I('v_mov_b32 v%d, v%d' % (tmp, reg))
    k.I('v_permlane32_swap_b32 v%d, v%d' % (reg, tmp))
    k.I('v_add_f32 v%d, v%d, v%d' % (reg, reg, tmp))
    k.I('v_mov_b32 v%d, v%d' % (tmp, reg))
    k.I('v_permlane16_swap_b32 v%d, v%d' % (reg, tmp))
    k.I('v_add_f32 v%d, v%d, v%d' % (reg, reg, tmp))


def fwd_epilogue(k, X, T, G80, vP, vP0, vST, sbase, d2_soff_sgpr, statacc=None):
    sm, t1, mean, m2 = T, T + 1, T + 2, T + 3
    acc = T + 4
    B = T + 8
    Dm = T + 20
    k.I('v_pk_add_f32 v[%d:%d], v[%d:%d], v[%d:%d]' % (acc, acc + 1, X, X + 1, X + 2, X + 3))
    for q in range(2, 10):
        k.I('v_pk_add_f32 v[%d:%d], v[%d:%d], v[%d:%d]' % (acc, acc + 1, acc, acc + 1, X + 2 * q, X + 2 * q + 1))
    k.I('v_add_f32 v%d, v%d, v%d' % (sm, acc, acc + 1))
    xsum_g(k, sm, t1)
    k.I('v_mul_f32 v%d, 0x%x, v%d' % (mean, f32bits(1.0 / 80), sm))
    for q in range(10):
        k.I('v_pk_add_f32 v[%d:%d], v[%d:%d], v[%d:%d] op_sel_hi:[1,0] neg_lo:[0,1] neg_hi:[0,1]'
            % (X + 2 * q, X + 2 * q + 1, X + 2 * q, X + 2 * q + 1, mean, mean + 1))
    k.I('v_pk_mul_f32 v[%d:%d], v[%d:%d], v[%d:%d]' % (acc, acc + 1, X, X + 1, X, X + 1))
    for q in range(1, 10):
        k.I('v_pk_fma_f32 v[%d:%d], v[%d:%d], v[%d:%d], v[%d:%d]'
            % (acc, acc + 1, X + 2 * q, X + 2 * q + 1, X + 2 * q, X + 2 * q + 1, acc, acc + 1))
    k.I('v_add_f32 v%d, v%d, v%d' % (m2, acc, acc + 1))
    for q in range(10):
        k.I('v_cvt_pk_bf16_f32 v%d, v%d, v%d' % (B + q, X + 2 * q, X + 2 * q + 1))
    k.I('v_mov_b32 v%d, 0' % (B + 10))
    k.I('v_mov_b32 v%d, 0' % (B + 11))
    xsum_g(k, m2, t1)
    for mo in range(5):
        for t in range(3):
            c = '0' if t == 0 else 'v[%d:%d]' % (Dm + 4 * mo, Dm + 4 * mo + 3)
            k.I('v_mfma_f32_16x16x32_bf16 v[%d:%d], %s, v[%d:%d], %s'
                % (Dm + 4 * mo, Dm + 4 * mo + 3, G80(mo, t), B + 4 * t, B + 4 * t + 3, c))
    hi, lo = acc, acc + 1
    k.I('v_cvt_pk_bf16_f32 v%d, v%d, v%d' % (hi, sm, sm))
    k.I('v_and_b32 v%d, 0xffff0000, v%d' % (hi, hi))
    k.I('v_sub_f32 v%d, v%d, v%d' % (lo, sm, hi))
    k.I('v_cvt_pk_bf16_f32 v%d, v%d, v%d' % (hi, hi, lo))
    k.I('v_fmac_f32 v%d, v%d, v%d' % (m2, sm, mean))
    k.I('s_mov_b64 exec, 0xffff')
    k.I('buffer_store_dword v%d, v%d, %s, s%d offen' % (hi, vP, SRD_WS, d2_soff_sgpr))
    if statacc is None:
        k.I('buffer_atomic_add_f32 v%d, v%d, %s, s%d offen' % (sm, vST, SRD_WS, d2_soff_sgpr + 1))
        k.I('buffer_atomic_add_f32 v%d, v%d, %s, s%d offen offset:4' % (m2, vST, SRD_WS, d2_soff_sgpr + 1))
    k.I('s_mov_b64 exec, -1')
    if statacc is not None:
        k.I('v_add_f32 v%d, v%d, v%d' % (statacc, statacc, sm))
        k.I('v_add_f32 v%d, v%d, v%d' % (statacc + 1, statacc + 1, m2))
    for mo in range(5):
        for h in range(2):
            o = B + 2 * mo + h
            o = X + 2 * mo + h
            k.I('v_cvt_pk_bf16_f32 v%d, v%d, v%d' % (o, Dm + 4 * mo + 2 * h, Dm + 4 * mo + 2 * h + 1))
            k.I('s_add_u32 s%d, s%d, %d' % (sbase, d2_soff_sgpr, (8 * mo + h) * 65536))
            k.I('buffer_store_dword v%d, v%d, %s, s%d offen'
                % (o, vP0 if (mo == 0 and h == 0) else vP, SRD_WS, sbase))


def dma_table(k, tab_off, nchunks, lds_base, wave_s, vlane16, st):
    k.I('s_lshl_b32 s%d, s%d, 10' % (st, wave_s))
    k.I('s_add_u32 m0, s%d, %d' % (st, lds_base))
    k.I('s_add_u32 s%d, s%d, %d' % (st, st, tab_off))
    for i in range((nchunks + 3) // 4):
        if i:
            k.I('s_add_u32 m0, m0, 4096')
            k.I('s_add_u32 s%d, s%d, 4096' % (st, st))
        k.I('buffer_load_dwordx4 v%d, %s, s%d offen lds' % (vlane16, SRD_TAB, st))


def stub_kernel(name, main, sreg, value, target):
    k = Kernel(name)
    k.I('s_mov_b32 s%d, %d' % (sreg, value))
    k.I('s_branch %s' % target)
    k.main = main
    return k


def lane_ids(k, vj, vg, vw_s):
    k.I('v_and_b32 v%d, 15, v0' % vj)
    k.I('v_bfe_u32 v%d, v0, 4, 2' % vg)
    k.I('v_lshrrev_b32 v1, 6, v0')
    k.I('v_readfirstlane_b32 s%d, v1' % vw_s)


def gen_wprep(k, base):
    N1, N2 = 30, 30
    k.I('s_cmp_ge_u32 s2, %d' % (base + N1 + N2))
    k.I('s_cbranch_scc1 L_prep_end')
    prologue(k, {SRD_OUT: (32, D * F * 2), 's[40:43]': (40, F * D * 2)})
    SRD_W1, SRD_W2 = SRD_OUT, 's[40:43]'
    lane_ids(k, 2, 3, 44)
    k.I('v_and_b32 v4, 63, v0')
    k.I('v_lshlrev_b32 v8, 4, v4')
    k.I('s_mov_b32 s46, 0x05040100')
    k.I('s_mov_b32 s47, 0x07060302')
    k.I('s_lshl_b32 s59, s44, 14')
    k.I('v_lshrrev_b32 v9, 1, v2')
    k.I('v_lshlrev_b32 v9, 10, v9')
    k.I('v_and_b32 v10, 1, v2')
    k.I('v_lshl_add_u32 v9, v10, 7, v9')
    k.I('v_lshl_add_u32 v9, v3, 8, v9')
    k.I('v_add_u32 v9, s59, v9')
    k.I('v_add_u32 v10, s59, v8')

    def transpose8(R, O):
        for c in range(8):
            for kk in range(4):
                k.I('v_perm_b32 v%d, v%d, v%d, %s' % (O + 4 * c + kk, R + 4 * (2 * kk + 1) + c // 2,
                                                      R + 4 * (2 * kk) + c // 2, 's47' if c % 2 else 's46'))

    def via_lds(O, i, T):
        for c in range(8):
            k.I('ds_write_b128 v9, v[%d:%d] offset:%d' % (O + 4 * c, O + 4 * c + 3, 8192 * i + 16 * c))
        for q in range(8):
            k.I('ds_read_b128 v[%d:%d], v10 offset:%d' % (T + 4 * q, T + 4 * q + 3, 8192 * i + 1024 * q))
    k.I('s_cmp_ge_u32 s2, %d' % (base + N1))
    k.I('s_cbranch_scc1 L_prep_w2')
    k.I('s_sub_u32 s45, s2, %d' % base)
    k.I('s_lshl_b32 s45, s45, 2')
    k.I('s_add_u32 s45, s45, s44')
    k.I('s_lshl_b32 s45, s45, 1')
    k.I('v_mul_u32_u24 v5, %d, v3' % (32 * 3072))
    k.I('v_lshl_add_u32 v5, v2, 4, v5')
    for i in range(2):
        R = 16 + 32 * i
        k.I('s_add_u32 s56, s45, %d' % i)
        k.I('s_mul_i32 s57, s56, 43691')
        k.I('s_lshr_b32 s%d, s57, 19' % (60 + 2 * i))
        k.I('s_mul_i32 s58, s%d, 12' % (60 + 2 * i))
        k.I('s_sub_u32 s%d, s56, s58' % (61 + 2 * i))
        for e in range(8):
            k.I('s_lshl_b32 s50, s%d, 1' % (60 + 2 * i))
            k.I('s_add_u32 s50, s50, %d' % (e // 4))
            k.I('s_mul_i32 s51, s50, 13')
            k.I('s_lshr_b32 s51, s51, 6')
            k.I('s_mul_i32 s52, s51, 5')
            k.I('s_sub_u32 s52, s50, s52')
            k.I('s_lshl_b32 s52, s52, 7')
            k.I('s_add_u32 s52, s52, s51')
            k.I('s_add_u32 s52, s52, %d' % (8 * (e % 4)))
            k.I('s_mul_i32 s52, s52, 3072')
            k.I('s_lshl_b32 s53, s%d, 8' % (61 + 2 * i))
            k.I('s_add_u32 s52, s52, s53')
            k.I('buffer_load_dwordx4 v[%d:%d], v5, %s, s52 offen' % (R + 4 * e, R + 4 * e + 3, SRD_W1))
    for i in range(2):
        R, O, T = 16 + 32 * i, 80 + 32 * i, 144 + 32 * i
        transpose8(R, O)
        via_lds(O, i, T)
        k.I('s_mul_i32 s50, s%d, %d' % (61 + 2 * i, 8 * 20480))
        k.I('s_lshl_b32 s51, s%d, 10' % (60 + 2 * i))
        k.I('s_add_u32 s50, s50, s51')
        for q in range(8):
            k.I('s_add_u32 s51, s50, %d' % (WS_W1F + q * 20480))
            k.I('buffer_store_dwordx4 v[%d:%d], v8, %s, s51 offen' % (T + 4 * q, T + 4 * q + 3, SRD_WS))
    k.I('s_endpgm')
    k.label('L_prep_w2')
    k.I('s_sub_u32 s45, s2, %d' % (base + N1))
    k.I('s_lshl_b32 s45, s45, 2')
    k.I('s_add_u32 s45, s45, s44')
    k.I('s_lshl_b32 s45, s45, 1')
    k.I('v_mul_u32_u24 v5, 5120, v3')
    k.I('v_lshl_add_u32 v5, v2, 4, v5')
    for i in range(2):
        R = 16 + 32 * i
        k.I('s_add_u32 s56, s45, %d' % i)
        k.I('s_mul_i32 s57, s56, 52429')
        k.I('s_lshr_b32 s%d, s57, 18' % (60 + 2 * i))
        k.I('s_mul_i32 s58, s%d, 5' % (60 + 2 * i))
        k.I('s_sub_u32 s%d, s56, s58' % (61 + 2 * i))
        for e in range(8):
            k.I('s_lshl_b32 s50, s%d, 5' % (60 + 2 * i))
            k.I('s_add_u32 s50, s50, %d' % (16 * (e // 4) + e % 4))
            k.I('s_mul_i32 s50, s50, 1280')
            k.I('s_lshl_b32 s53, s%d, 8' % (61 + 2 * i))
            k.I('s_add_u32 s50, s50, s53')
            k.I('buffer_load_dwordx4 v[%d:%d], v5, %s, s50 offen' % (R + 4 * e, R + 4 * e + 3, SRD_W2))
    for i in range(2):
        R, O, T = 16 + 32 * i, 80 + 32 * i, 144 + 32 * i
        transpose8(R, O)
        via_lds(O, i, T)
        k.I('s_mul_i32 s50, s%d, 49152' % (61 + 2 * i))
        k.I('s_lshl_b32 s51, s%d, 10' % (60 + 2 * i))
        k.I('s_add_u32 s50, s50, s51')
        for c in range(8):
            k.I('s_add_u32 s52, s50, %d' % (WS_W2FA + c * 245760))
            k.I('buffer_store_dwordx4 v[%d:%d], v8, %s, s52 offen' % (O + 4 * c, O + 4 * c + 3, SRD_WS))
        k.I('s_mul_i32 s50, s%d, %d' % (61 + 2 * i, 8 * 49152))
        k.I('s_add_u32 s50, s50, s51')
        for q in range(8):
            k.I('s_add_u32 s52, s50, %d' % (WS_W2FB + q * 49152))
            k.I('buffer_store_dwordx4 v[%d:%d], v8, %s, s52 offen' % (T + 4 * q, T + 4 * q + 3, SRD_WS))
    k.label('L_prep_end')
    k.I('s_endpgm')
    return N1 + N2


def gen_k1():
    k = Kernel('k1_kernel')
    NX, NW = 128, 256
    k.I('s_cmp_ge_u32 s2, %d' % (NX + NW))
    k.I('s_cbranch_scc1 %s' % ('L_k1_touch' if TOUCH else ('L_k1_prep' if PREP_IN_K1 else 'L_k1_end')))
    k.stamp()
    prologue(k, {SRD_A: (0, S * D * 2), SRD_B: (8, S * 321 * 2), SRD_C: (16, S * 321 * 2)})
    lane_ids(k, 2, 3, 44)
    k.I('s_mov_b32 s46, 0x05040100')
    k.I('s_mov_b32 s47, 0x07060302')
    k.I('s_cmp_ge_u32 s2, %d' % NX)
    k.I('s_cbranch_scc1 L_k1_w')
    k.I('s_lshl_b32 s45, s2, 4')
    k.I('v_add_u32 v4, s45, v2')
    XL = 512 + 16 * 1024
    R = 16
    k.I('s_mul_i32 s48, s2, 20480')
    k.I('v_lshlrev_b32 v5, 4, v0')
    for i in range(5):
        k.I('s_add_u32 s49, s48, %d' % (4096 * i))
        k.I('buffer_load_dwordx4 v[%d:%d], v5, %s, s49 offen' % (40 + 4 * i, 43 + 4 * i, SRD_A))
    k.I('v_and_b32 v6, 63, v0')
    k.I('v_lshlrev_b32 v6, 4, v6')
    dma_table(k, table_off['G80F'], 15, 512, 44, 6, 50)
    k.I('s_mov_b32 s48, 52429')
    for i in range(5):
        k.I('v_add_u32 v7, %d, v0' % (256 * i))
        k.I('v_mul_lo_u32 v8, v7, s48')
        k.I('v_lshrrev_b32 v8, 22, v8')
        k.I('v_lshlrev_b32 v7, 4, v7')
        k.I('v_lshl_add_u32 v7, v8, 4, v7')
        k.I('ds_write_b128 v7, v[%d:%d] offset:%d' % (40 + 4 * i, 43 + 4 * i, XL))
    k.wait_vm0()
    k.barrier()
    k.I('v_mul_u32_u24 v5, 1296, v2')
    k.I('v_lshl_add_u32 v5, v3, 6, v5')
    k.I('s_lshl_b32 s49, s44, 2')
    k.I('v_add_u32 v5, s49, v5')
    for mt in range(5):
        for r in range(4):
            k.I('ds_read_b32 v%d, v5 offset:%d' % (R + 4 * mt + r, XL + 256 * mt + 16 * r))
    for q in range(15):
        k.I('ds_read_b128 a[%d:%d], v6 offset:%d' % (4 * q, 4 * q + 3, 512 + 1024 * q))
    k.I('v_lshlrev_b32 v7, 2, v4')
    k.I('v_lshl_add_u32 v7, v3, 17, v7')
    k.I('v_mov_b32 v8, v7')
    k.I('v_cmp_eq_u32 vcc, 0, v3')
    k.I('v_add_u32 v9, %d, v7' % (40 * 65536))
    k.I('v_cndmask_b32 v8, v7, v9, vcc')
    k.I('v_lshlrev_b32 v9, 3, v4')
    k.I('v_mov_b32 v12, 0')
    k.I('v_mov_b32 v13, 0')
    k.I('v_lshlrev_b32 v10, 6, v4')
    k.I('v_lshl_add_u32 v10, v3, 4, v10')
    X, T, PK = 40, 64, 104
    k.I('s_mul_i32 s54, s44, %d' % (5 * 131072))
    k.I('s_add_u32 s54, s54, %d' % WS_XP)
    for mt in range(5):
        pk = PK + 4 * mt
        k.I('v_perm_b32 v%d, v%d, v%d, s46' % (pk, R + 4 * mt + 1, R + 4 * mt))
        k.I('v_perm_b32 v%d, v%d, v%d, s46' % (pk + 1, R + 4 * mt + 3, R + 4 * mt + 2))
        k.I('v_perm_b32 v%d, v%d, v%d, s47' % (pk + 2, R + 4 * mt + 1, R + 4 * mt))
        k.I('v_perm_b32 v%d, v%d, v%d, s47' % (pk + 3, R + 4 * mt + 3, R + 4 * mt + 2))
        k.I('s_add_u32 s55, s54, %d' % (mt * 131072))
        k.I('buffer_store_dwordx4 v[%d:%d], v10, %s, s55 offen' % (pk, pk + 3, SRD_WS))
    for e in range(2):
        k.I('s_lshl_b32 s51, s44, 1')
        k.I('s_add_u32 s51, s51, %d' % e)
        k.I('s_lshl_b32 s52, s51, 13')
        k.I('s_add_u32 s52, s52, %d' % WS_P)
        for q in range(20):
            if e == 0:
                k.I('v_lshlrev_b32 v%d, 16, v%d' % (X + q, R + q))
            else:
                k.I('v_and_b32 v%d, 0xffff0000, v%d' % (X + q, R + q))
        fwd_epilogue(k, X, T, lambda mo, t: 'a[%d:%d]' % (4 * (3 * mo + t), 4 * (3 * mo + t) + 3),
                     7, 8, 9, 55, 52, statacc=12)
    k.I('s_lshl_b32 s51, s44, 7')
    k.I('v_lshl_add_u32 v14, v2, 3, s51')
    k.I('s_mov_b64 exec, 0xffff')
    k.I('ds_write_b64 v14, v[12:13]')
    k.I('s_mov_b64 exec, -1')
    k.barrier()
    k.I('s_cmp_eq_u32 s44, 0')
    k.I('s_cbranch_scc0 L_k1_xdone')
    k.I('v_lshlrev_b32 v14, 3, v2')
    for w in range(4):
        k.I('ds_read_b64 v[%d:%d], v14 offset:%d' % (16 + 2 * w, 17 + 2 * w, 128 * w))
    k.I('v_pk_add_f32 v[16:17], v[16:17], v[18:19]')
    k.I('v_pk_add_f32 v[20:21], v[20:21], v[22:23]')
    k.I('v_pk_add_f32 v[16:17], v[16:17], v[20:21]')
    k.I('v_mov_b32 v18, 0')
    k.I('v_mov_b32 v19, 0')
    k.I('s_mov_b32 s51, %d' % WS_ST)
    k.I('s_mov_b32 s52, %d' % WS_STB)
    k.I('s_mov_b64 exec, 0xffff')
    k.I('buffer_store_dwordx2 v[16:17], v9, %s, s51 offen' % SRD_WS)
    k.I('buffer_store_dwordx2 v[18:19], v9, %s, s52 offen' % SRD_WS)
    k.I('s_mov_b64 exec, -1')
    k.label('L_k1_xdone')
    k.stamp()
    k.wait_vm0()
    k.stamp_flush(0, 44, SRD_WS)
    k.nstamp = 1
    k.I('s_endpgm')
    k.label('L_k1_w')
    k.I('s_sub_u32 s45, s2, %d' % NX)
    k.I('s_lshr_b32 s48, s45, 5')
    k.I('s_and_b32 s49, s45, 31')
    k.I('s_lshl_b32 s49, s49, 2')
    k.I('s_add_u32 s49, s49, s44')
    k.I('s_lshr_b32 s50, s49, 6')
    k.I('s_and_b32 s51, s49, 63')
    k.I('s_and_b32 s52, s51, 15')
    k.I('s_lshr_b32 s53, s51, 4')
    k.I('s_lshl_b32 s54, s50, 4')
    k.I('s_add_u32 s54, s54, s52')
    k.I('s_lshl_b32 s55, s53, 9')
    k.I('s_add_u32 s54, s54, s55')
    k.I('v_and_b32 v4, 63, v0')
    k.I('s_mul_i32 s55, s48, 80')
    k.I('v_add_u32 v5, s55, v4')
    k.I('v_sub_u32 v6, 640, v5')
    k.I('s_cmp_lt_u32 s48, 4')
    k.I('s_cselect_b32 s56, 0, -1')
    k.I('s_cselect_b32 s57, 0, 0x80000000')
    k.I('v_mov_b32 v7, s56')
    k.I('v_cmp_eq_u32 vcc, 0, v7')
    k.I('v_cndmask_b32 v5, v6, v5, vcc')
    k.I('v_lshlrev_b32 v5, 1, v5')
    RE, IM, RE2, IM2 = 16, 32, 48, 64
    for mt in range(4):
        for r in range(4):
            q = 4 * mt + r
            k.I('s_add_u32 s58, s54, %d' % (32 * (4 * r + mt)))
            k.I('s_sub_u32 s59, 0, s58')
            k.I('s_and_b32 s59, s59, 2047')
            k.I('s_cmp_lt_u32 s48, 4')
            k.I('s_cselect_b32 s60, s58, s59')
            k.I('s_mul_i32 s60, s60, 642')
            k.I('buffer_load_ushort v%d, v5, %s, s60 offen' % (RE + q, SRD_B))
            k.I('buffer_load_ushort v%d, v5, %s, s60 offen' % (IM + q, SRD_C))
    k.I('s_and_b32 s61, s48, 3')
    k.I('s_cmp_eq_u32 s61, 0')
    k.I('s_cbranch_scc0 L_k1_w_nosym')
    for mt in range(4):
        for r in range(4):
            q = 4 * mt + r
            k.I('s_add_u32 s58, s54, %d' % (32 * (4 * r + mt)))
            k.I('s_sub_u32 s59, 0, s58')
            k.I('s_and_b32 s59, s59, 2047')
            k.I('s_cmp_lt_u32 s48, 4')
            k.I('s_cselect_b32 s60, s59, s58')
            k.I('s_mul_i32 s60, s60, 642')
            k.I('buffer_load_ushort v%d, v5, %s, s60 offen' % (RE2 + q, SRD_B))
            k.I('buffer_load_ushort v%d, v5, %s, s60 offen' % (IM2 + q, SRD_C))
    k.wait_vm0()
    k.I('s_mov_b64 exec, 1')
    for q in range(16):
        k.I('v_lshlrev_b32 v8, 16, v%d' % (RE + q))
        k.I('v_lshlrev_b32 v9, 16, v%d' % (RE2 + q))
        k.I('v_add_f32 v8, v8, v9')
        k.I('v_mul_f32 v8, 0.5, v8')
        k.I('v_lshlrev_b32 v10, 16, v%d' % (IM + q))
        k.I('v_lshlrev_b32 v9, 16, v%d' % (IM2 + q))
        k.I('v_sub_f32 v10, v10, v9')
        k.I('v_mul_f32 v10, 0.5, v10')
        k.I('v_cvt_pk_bf16_f32 v8, v8, v10')
        k.I('v_and_b32 v%d, 0xffff, v8' % (RE + q))
        k.I('v_lshrrev_b32 v%d, 16, v8' % (IM + q))
    k.I('s_mov_b64 exec, -1')
    k.label('L_k1_w_nosym')
    k.wait_vm0()
    for q in range(16):
        k.I('v_lshl_or_b32 v%d, v%d, 16, v%d' % (RE + q, IM + q, RE + q))
        k.I('v_xor_b32 v%d, s57, v%d' % (RE + q, RE + q))
    k.I('v_lshlrev_b32 v6, 16, v4')
    k.I('s_lshl_b32 s58, s48, 13')
    k.I('s_lshl_b32 s59, s49, 6')
    k.I('s_add_u32 s58, s58, s59')
    k.I('s_add_u32 s58, s58, %d' % WS_WC)
    k.I('v_cmp_gt_u32 vcc, 41, v4')
    k.I('s_and_saveexec_b64 s[62:63], vcc')
    for mt in range(4):
        k.I('buffer_store_dwordx4 v[%d:%d], v6, %s, s58 offen offset:%d' % (RE + 4 * mt, RE + 4 * mt + 3, SRD_WS, 16 * mt))
    k.stamp()
    k.wait_vm0()
    k.stamp_flush(0, 44, SRD_WS)
    k.nstamp = 1
    k.I('s_endpgm')

    k.label('L_k1_end')
    k.I('s_endpgm')
    if TOUCH:
        k.label('L_k1_touch')
        k.vm, k.lg = [], []
        NT = 64
        k.I('s_cmp_ge_u32 s2, %d' % (NX + NW + NT))
        k.I('s_cbranch_scc1 L_k1_end')
        k.I('s_getpc_b64 s[6:7]')
        k.out.append('L_k1_pc:')
        k.raw('    s_sub_u32 s8, s6, L_k1_pc-k1_kernel')
        k.raw('    s_subb_u32 s9, s7, 0')
        k.I('s_and_b32 s9, s9, 0xffff')
        k.raw('    s_mov_b32 s10, L_text_end-k1_kernel')
        k.I('s_mov_b32 s11, 0x20000')
        k.I('s_getpc_b64 s[6:7]')
        k.raw('    s_add_u32 s6, s6, tab_base@rel32@lo+4')
        k.raw('    s_addc_u32 s7, s7, tab_base@rel32@hi+12')
        k.I('s_mov_b32 s12, s6')
        k.I('s_and_b32 s13, s7, 0xffff')
        k.I('s_mov_b32 s14, %d' % TAB_BYTES)
        k.I('s_mov_b32 s15, 0x20000')
        k.I('s_sub_u32 s16, s2, %d' % (NX + NW))
        k.I('s_lshl_b32 s16, s16, 12')
        k.I('v_lshlrev_b32 v1, 4, v0')
        k.I('buffer_load_dwordx4 v[4:7], v1, s[8:11], s16 offen')
        k.I('buffer_load_dwordx4 v[8:11], v1, s[12:15], s16 offen')
        if TOUCH >= 2:
            k.I('s_load_dwordx4 s[20:23], s[0:1], 32')
            k.wait_lgkm0()
            for n, b in enumerate((24, 28)):
                k.I('s_mov_b32 s%d, s%d' % (b, 20 + 2 * n))
                k.I('s_and_b32 s%d, s%d, 0xffff' % (b + 1, 21 + 2 * n))
                k.I('s_mov_b32 s%d, %d' % (b + 2, D * F * 2))
                k.I('s_mov_b32 s%d, 0x20000' % (b + 3))
            k.I('s_lshl_b32 s17, s16, 3')
            for i in range(8):
                k.I('s_add_u32 s18, s17, %d' % (4096 * i))
                k.I('buffer_load_dwordx4 v[%d:%d], v1, s[24:27], s18 offen' % (12 + 8 * i, 15 + 8 * i))
                k.I('buffer_load_dwordx4 v[%d:%d], v1, s[28:31], s18 offen' % (16 + 8 * i, 19 + 8 * i))
        k.wait_vm0()
        k.I('s_endpgm')
        return k, NX + NW + NT, 512 + 16 * 1024 + 16 * 1296
    if PREP_IN_K1:
        k.label('L_k1_prep')
        k.vm, k.lg = [], []
        n = gen_wprep(k, NX + NW)
        return k, NX + NW + n, 65536
    return k, (NX + NW), 512 + 16 * 1024 + 16 * 1296


HEADER = '''; Kernarg layout for this problem (72 bytes, ptrs only, base s[0:1]):
'''


def build(kernels, launches):
    out = [HEADER.rstrip('\n')]
    for name, grid, lds in launches:
        out.append('; @launch kernel=%s grid=(%d,1,1) block=(256,1,1) lds=%d' % (name, grid, lds))
    out.append('.amdgcn_target "amdgcn-amd-amdhsa--gfx950"')
    out.append('.text')
    for k in kernels:
        out.append('.globl %s' % k.name)
        out.append('.p2align 8')
        out.append('.type %s,@function' % k.name)
        out.append('%s:' % k.name)
        out += k.out
    out.append('L_text_end:')
    out.append('.section .rodata,"a"')
    for k in kernels:
        if getattr(k, 'main', None) is not None:
            k.maxv, k.maxa, k.maxs = k.main.maxv, k.main.maxa, k.main.maxs
        nv = k.maxv + 1
        acc_off = (nv + 3) // 4 * 4
        nfv = acc_off + (k.maxa + 1) if k.maxa >= 0 else nv
        out.append('.p2align 6')
        out.append('.amdhsa_kernel %s' % k.name)
        out.append('  .amdhsa_next_free_vgpr %d' % nfv)
        out.append('  .amdhsa_next_free_sgpr %d' % max(k.maxs + 1, 16))
        out.append('  .amdhsa_accum_offset %d' % acc_off)
        out.append('  .amdhsa_group_segment_fixed_size 0')
        out.append('  .amdhsa_kernarg_size 72')
        out.append('  .amdhsa_user_sgpr_count 2')
        out.append('  .amdhsa_user_sgpr_kernarg_segment_ptr 1')
        out.append('  .amdhsa_system_sgpr_workgroup_id_x 1')
        out.append('  .amdhsa_float_denorm_mode_32 3')
        out.append('  .amdhsa_float_denorm_mode_16_64 3')
        out.append('.end_amdhsa_kernel')
    out.append('.p2align 8')
    out.append('tab_base:')
    for n, w in tables.items():
        out += emit_table('tab_' + n, w)
    return '\n'.join(out) + '\n'


make_tables()
TAB_BYTES = layout_tables()

if __name__ == '__main__':
    if len(sys.argv) > 2 and sys.argv[2] in ('diag', 'real'):
        Kernel.DIAG = True
        Kernel.REAL = sys.argv[2] == 'real'
    ks, launches = [], []
    k, g, l = gen_k1()
    ks.append(k)
    launches.append((k.name, g, l))
    try:
        from gen2 import more_kernels
        more_kernels(ks, launches)
    except ImportError:
        pass
    path = sys.argv[1] if len(sys.argv) > 1 else 'interleave_layers__spectral_gfnet__dense_activation_silu__prompt.s'
    open(path, 'w').write(build(ks, launches))
    print('wrote', path)
```

```python
import numpy as np
from asmlib import Kernel, f32bits
import gen as G
from gen import (prologue, lane_ids, xsum_g, fwd_epilogue, table_off, SRD_WS, SRD_TAB, SRD_A, SRD_B, SRD_C,
                 SRD_OUT, S, D, F)


def vr(b, n=4):
    return 'v[%d:%d]' % (b, b + n - 1)


def ar(b, n=4):
    return 'a[%d:%d]' % (b, b + n - 1)


def bf16_round2(k, a, b, tmp):
    k.I('v_cvt_pk_bf16_f32 v%d, v%d, v%d' % (tmp, a, b))
    k.I('v_lshlrev_b32 v%d, 16, v%d' % (a, tmp))
    k.I('v_and_b32 v%d, 0xffff0000, v%d' % (b, tmp))


def cmul_pk(k, xr, xi, tr, ti, o_r, o_i, conj=False):
    k.I('v_pk_mul_f32 %s, %s, %s' % (vr(o_r, 2), vr(xr, 2), vr(tr, 2)))
    if not conj:
        k.I('v_pk_mul_f32 %s, %s, %s' % (vr(o_i, 2), vr(xr, 2), vr(ti, 2)))
        k.I('v_pk_fma_f32 %s, %s, %s, %s neg_lo:[1,0,0] neg_hi:[1,0,0]' % (vr(o_r, 2), vr(xi, 2), vr(ti, 2), vr(o_r, 2)))
        k.I('v_pk_fma_f32 %s, %s, %s, %s' % (vr(o_i, 2), vr(xi, 2), vr(tr, 2), vr(o_i, 2)))
    else:
        k.I('v_pk_mul_f32 %s, %s, %s' % (vr(o_i, 2), vr(xi, 2), vr(tr, 2)))
        k.I('v_pk_fma_f32 %s, %s, %s, %s' % (vr(o_r, 2), vr(xi, 2), vr(ti, 2), vr(o_r, 2)))
        k.I('v_pk_fma_f32 %s, %s, %s, %s neg_lo:[1,0,0] neg_hi:[1,0,0]' % (vr(o_i, 2), vr(xr, 2), vr(ti, 2), vr(o_i, 2)))


MF = 'v_mfma_f32_16x16x32_bf16'
MF16 = 'v_mfma_f32_16x16x16_bf16'


def gen_c():
    k = Kernel('c1_kernel')
    k.I('s_cmp_ge_u32 s2, 192')
    k.I('s_cbranch_scc1 %s' % ('L_c_end' if G.PREP_IN_K1 else 'L_c_prep'))
    k.I('s_mov_b32 s60, %d' % G.WS_ST)
    k.out.append('L_c_body:')
    k.I('s_and_b32 s40, s2, 7')
    k.I('s_lshr_b32 s41, s2, 3')
    k.I('s_and_b32 s42, s41, 3')
    k.I('s_lshr_b32 s43, s41, 3')
    k.I('s_lshl_b32 s43, s43, 3')
    k.I('s_add_u32 s40, s40, s43')
    k.I('s_lshl_b32 s40, s40, 1')
    k.I('s_bfe_u32 s43, s41, 0x10002')
    k.I('s_add_u32 s40, s40, s43')
    k.I('s_cmp_ge_u32 s40, 41')
    k.I('s_cbranch_scc1 L_c_end')
    k.stamp()
    ST, TW, WW, AZ, TZ, RS, MB, DZ = 16, 144, 176, 192, 200, 202, 210, 218
    aP, aF32, aF64, aF32o = 0, 64, 88, 184
    TABL = 34816

    def early():
        lane_ids(k, 2, 3, 44)
        k.I('v_and_b32 v4, 63, v0')
        k.I('v_lshlrev_b32 v8, 4, v4')
        k.I('v_and_b32 v6, 3, v2')
        k.I('v_lshl_add_u32 v6, v6, 3, v3')
        k.I('v_lshlrev_b32 v6, 2, v6')
        k.I('s_lshl_b32 s48, s40, 3')
        k.I('s_lshl_b32 s49, s42, 1')
        k.I('s_add_u32 s48, s48, s49')
        k.I('s_lshl_b32 s49, s48, 6')
        k.I('s_add_u32 s49, s49, %d' % table_off['TZ'])
        k.I('buffer_load_dword v%d, v6, %s, s49 offen' % (TZ, SRD_TAB))
        k.I('buffer_load_dword v%d, v6, %s, s49 offen offset:16' % (TZ + 1, SRD_TAB))
    prologue(k, {}, early)
    k.I('v_lshl_add_u32 v7, v2, 2, v3')
    k.I('v_lshlrev_b32 v7, 3, v7')
    k.I('s_lshl_b32 s45, s44, 12')
    k.I('v_add_u32 v7, s45, v7')
    for e in range(8):
        k.I('buffer_load_dwordx2 %s, v7, %s, s60 offen offset:%d' % (vr(ST + 2 * e, 2), SRD_WS, 512 * e))
    k.I('v_lshlrev_b32 v5, 13, v3')
    k.I('v_lshl_add_u32 v5, v2, 4, v5')
    k.I('s_lshl_b32 s45, s44, 11')
    k.I('v_add_u32 v5, s45, v5')
    k.I('s_lshl_b32 s46, s40, 16')
    k.I('s_add_u32 s46, s46, %d' % G.WS_P)
    k.I('s_add_u32 s47, s46, 32768')
    for e in range(8):
        for h2 in range(2):
            k.I('buffer_load_dwordx4 %s, v5, %s, s%d offen offset:%d' % (ar(aP + 8 * e + 4 * h2), SRD_WS, 46 + h2, 256 * e))
    k.I('s_and_b32 s51, s44, 1')
    assert table_off['F64'] == table_off['F32'] + 6144 and table_off['TW'] == table_off['F64'] + 24576
    G.dma_table(k, table_off['F32'], 46, TABL, 44, 8, 52)
    dma_mark = k.mark()
    k.I('v_lshlrev_b32 v9, 6, v4')
    k.I('s_lshl_b32 s52, s48, 13')
    k.I('s_lshl_b32 s53, s44, 12')
    k.I('s_add_u32 s52, s52, s53')
    k.I('s_add_u32 s52, s52, %d' % G.WS_WC)
    for mt in range(4):
        k.I('buffer_load_dwordx4 %s, v9, %s, s52 offen offset:%d' % (vr(WW + 4 * mt), SRD_WS, 16 * mt))
    k.I('s_or_b32 s53, s40, s42')
    k.I('s_or_b32 s53, s53, s44')
    k.I('s_cmp_eq_u32 s53, 0')
    k.I('s_cselect_b32 s54, -1, 0')
    k.I('s_mov_b32 s55, 0')
    k.I('v_lshlrev_b32 v6, 8, v4')
    k.I('v_mov_b32 v7, 0')
    k.I('s_mov_b32 s53, %d' % G.WS_CNT)
    k.I('s_mov_b64 exec, s[54:55]')
    k.I('buffer_store_dword v7, v6, %s, s53 offen' % SRD_WS)
    k.I('s_mov_b64 exec, -1')
    k.stamp()
    k.I('v_lshrrev_b32 v10, 2, v2')
    for m in range(4):
        k.I('v_cmp_eq_u32 vcc, %d, v10' % m)
        k.I('v_cndmask_b32 v%d, 0, v%d, vcc' % (AZ + m, TZ))
        k.I('v_cndmask_b32 v%d, 0, v%d, vcc' % (AZ + 4 + m, TZ + 1))
    k.stamp()
    k.I('s_or_b32 s53, s40, s42')
    k.I('s_cmp_eq_u32 s53, 0')
    k.I('s_cselect_b32 s53, 0x%x, 0' % f32bits(-640.0))
    k.I('s_mov_b32 s54, 0x%x' % f32bits(1.0 / 640))
    k.I('s_mov_b32 s55, s54')
    for e in range(8):
        b = ST + 2 * e
        k.I('v_pk_mul_f32 %s, %s, s[54:55]' % (vr(b, 2), vr(b, 2)))
        k.I('v_fma_f32 v%d, -v%d, v%d, v%d' % (b + 1, b, b, b + 1))
        bf16_round2(k, b, b + 1, 13)
        k.I('v_mov_b32 v%d, v%d' % (MB + e, b))
        k.I('v_add_f32 v%d, 0x%x, v%d' % (b + 1, f32bits(1e-5), b + 1))
    for e in range(0, 8, 2):
        b = ST + 2 * e
        bf16_round2(k, b + 1, b + 3, 13)
        k.I('v_sqrt_f32 v%d, v%d' % (b + 1, b + 1))
        k.I('v_sqrt_f32 v%d, v%d' % (b + 3, b + 3))
        bf16_round2(k, b + 1, b + 3, 13)
        k.I('v_rcp_f32 v%d, v%d' % (b + 1, b + 1))
        k.I('v_rcp_f32 v%d, v%d' % (b + 3, b + 3))
        k.I('v_mul_f32 v%d, 0x%x, v%d' % (RS + e, f32bits(1.0 / (S * D)), b + 1))
        k.I('v_mul_f32 v%d, 0x%x, v%d' % (RS + e + 1, f32bits(1.0 / (S * D)), b + 3))
    k.stamp()
    for e in range(8):
        k.I('%s %s, %s, %s, 0' % (MF, vr(DZ + 4 * e), vr(AZ), ar(aP + 8 * e)))
        k.I('%s %s, %s, %s, %s' % (MF, vr(DZ + 4 * e), vr(AZ + 4), ar(aP + 8 * e + 4), vr(DZ + 4 * e)))
    for e in range(8):
        k.I('v_fmac_f32 v%d, s53, v%d' % (DZ + 4 * e, MB + e))
        rs = RS + e
        if rs % 2 == 0:
            src, sel = vr(rs, 2), 'op_sel:[0,0] op_sel_hi:[1,0]'
        else:
            src, sel = vr(rs - 1, 2), 'op_sel:[0,1] op_sel_hi:[1,1]'
        k.I('v_pk_mul_f32 %s, %s, %s %s' % (vr(DZ + 4 * e, 2), vr(DZ + 4 * e, 2), src, sel))
        k.I('v_pk_mul_f32 %s, %s, %s %s' % (vr(DZ + 4 * e + 2, 2), vr(DZ + 4 * e + 2, 2), src, sel))
    ZF = 16
    for arr in range(4):
        for h in range(4):
            k.I('v_cvt_pk_bf16_f32 v%d, v%d, v%d' % (ZF + 4 * arr + h, DZ + 8 * h + arr, DZ + 8 * h + 4 + arr))
    k.I('v_lshlrev_b32 v10, 10, v3')
    k.I('v_lshl_add_u32 v10, v2, 4, v10')
    k.I('s_lshl_b32 s45, s44, 8')
    k.I('v_add_u32 v10, s45, v10')
    for arr in range(4):
        k.I('ds_write_b128 v10, %s offset:%d' % (vr(ZF + 4 * arr), 4096 * arr))
    k.wait_mark(dma_mark)
    k.barrier()
    k.stamp()
    k.I('s_mul_i32 s52, s51, 3072')
    k.I('v_add_u32 v11, s52, v8')
    for var in range(3):
        k.I('ds_read_b128 %s, v11 offset:%d' % (ar(aF32o + 4 * var), TABL + 1024 * var))
    AF, D1, TMP, B3, D3 = 32, 64, 96, 128, 218
    k.I('s_lshr_b32 s45, s44, 1')
    k.I('s_lshl_b32 s45, s45, 13')
    k.I('v_add_u32 v10, s45, v8')
    for c in range(2):
        for m in range(4):
            k.I('ds_read_b128 %s, v10 offset:%d' % (vr(AF + 16 * c + 4 * m), 4096 * c + 1024 * m))
    k.I('s_lshl_b32 s52, s51, 13')
    k.I('s_add_u32 s52, s52, %d' % (TABL + 30720))
    k.I('v_add_u32 v11, s52, v8')
    for c in range(2):
        for m in range(4):
            k.I('ds_read_b128 %s, v11 offset:%d' % (vr(TW + 16 * c + 4 * m), 4096 * c + 1024 * m))
    Fr, Fi, Fn = ar(aF32o), ar(aF32o + 4), ar(aF32o + 8)
    for q in range(24):
        k.I('ds_read_b128 %s, v8 offset:%d' % (ar(aF64 + 4 * q), TABL + 6144 + 1024 * q))
    for q in range(6):
        k.I('ds_read_b128 %s, v8 offset:%d' % (ar(aF32 + 4 * q), TABL + 1024 * q))

    def f64(var, mt, t):
        return ar(aF64 + 4 * ((var * 4 + mt) * 2 + t))

    def weave(mf, fill):
        fi = 0
        for n, m_ in enumerate(mf):
            k.I(m_)
            tgt = len(fill) * (n + 1) // len(mf)
            while fi < tgt:
                k.I(fill[fi])
                fi += 1

    def cmul_ops(xr, xi, tr, ti, o_r, o_i, conj):
        ops = []
        for r in range(4):
            ops.append('v_mul_f32 v%d, v%d, v%d' % (o_r + r, xr + r, tr + r))
            if not conj:
                ops.append('v_mul_f32 v%d, v%d, v%d' % (o_i + r, xr + r, ti + r))
                ops.append('v_fma_f32 v%d, -v%d, v%d, v%d' % (o_r + r, xi + r, ti + r, o_r + r))
                ops.append('v_fmac_f32 v%d, v%d, v%d' % (o_i + r, xi + r, tr + r))
            else:
                ops.append('v_mul_f32 v%d, v%d, v%d' % (o_i + r, xi + r, tr + r))
                ops.append('v_fmac_f32 v%d, v%d, v%d' % (o_r + r, xi + r, ti + r))
                ops.append('v_fma_f32 v%d, -v%d, v%d, v%d' % (o_i + r, xr + r, ti + r, o_i + r))
        return ops

    def pack_ops(Bd, m):
        return ['v_cvt_pk_bf16_f32 v%d, v%d, v%d' % (Bd + 8 * c + 2 * m + h, TMP + 16 * c + 4 * m + 2 * h,
                                                     TMP + 16 * c + 4 * m + 2 * h + 1) for c in range(2) for h in range(2)]
    WR, WI, B5, D5 = 16, 192, 32, 64

    def g1(m):
        return ['%s %s, %s, %s, 0' % (MF, vr(D1 + 4 * m), vr(AF + 4 * m), Fr),
                '%s %s, %s, %s, 0' % (MF, vr(D1 + 16 + 4 * m), vr(AF + 4 * m), Fi),
                '%s %s, %s, %s, %s' % (MF, vr(D1 + 4 * m), vr(AF + 16 + 4 * m), Fn, vr(D1 + 4 * m)),
                '%s %s, %s, %s, %s' % (MF, vr(D1 + 16 + 4 * m), vr(AF + 16 + 4 * m), Fr, vr(D1 + 16 + 4 * m))]

    def g64(Dd, Bb, conj, mt, t):
        vi, vn = (1, 2) if not conj else (2, 1)
        cr = '0' if t == 0 else vr(Dd + 4 * mt)
        ci = '0' if t == 0 else vr(Dd + 16 + 4 * mt)
        return ['%s %s, %s, %s, %s' % (MF, vr(Dd + 4 * mt), f64(0, mt, t), vr(Bb + 4 * t), cr),
                '%s %s, %s, %s, %s' % (MF, vr(Dd + 16 + 4 * mt), f64(0, mt, t), vr(Bb + 8 + 4 * t), ci),
                '%s %s, %s, %s, %s' % (MF, vr(Dd + 4 * mt), f64(vn, mt, t), vr(Bb + 8 + 4 * t), vr(Dd + 4 * mt)),
                '%s %s, %s, %s, %s' % (MF, vr(Dd + 16 + 4 * mt), f64(vi, mt, t), vr(Bb + 4 * t), vr(Dd + 16 + 4 * mt))]

    def T(m):
        return cmul_ops(D1 + 4 * m, D1 + 16 + 4 * m, TW + 4 * m, TW + 16 + 4 * m, TMP + 4 * m, TMP + 16 + 4 * m, False) + pack_ops(B3, m)

    def W(m):
        return cmul_ops(D3 + 4 * m, D3 + 16 + 4 * m, WR + 4 * m, WI + 4 * m, TMP + 4 * m, TMP + 16 + 4 * m, False) + pack_ops(B5, m)

    def Tc(m):
        return cmul_ops(D5 + 4 * m, D5 + 16 + 4 * m, TW + 4 * m, TW + 16 + 4 * m, TMP + 4 * m, TMP + 16 + 4 * m, True)
    wun = []
    for q in range(16):
        wun += ['v_lshlrev_b32 v%d, 16, v%d' % (WR + q, WW + q), 'v_and_b32 v%d, 0xffff0000, v%d' % (WI + q, WW + q)]
    weave(g1(0) + g1(1), wun)
    weave(g1(2), T(0))
    weave(g1(3), T(1))
    k.stamp()
    weave(sum([g64(D3, B3, False, mt, 0) for mt in range(4)], []), T(2) + T(3))
    weave(g64(D3, B3, False, 0, 1) + g64(D3, B3, False, 1, 1), [])
    weave(g64(D3, B3, False, 2, 1), W(0))
    weave(g64(D3, B3, False, 3, 1), W(1))
    k.stamp()
    weave(sum([g64(D5, B5, True, mt, 0) for mt in range(4)], []), W(2) + W(3))
    weave(g64(D5, B5, True, 0, 1) + g64(D5, B5, True, 1, 1), [])
    weave(g64(D5, B5, True, 2, 1), Tc(0))
    weave(g64(D5, B5, True, 3, 1), Tc(1))
    for op in Tc(2) + Tc(3):
        k.I(op)
    L2 = 128
    for c in range(2):
        for r in range(4):
            for mp in range(2):
                k.I('v_cvt_pk_bf16_f32 v%d, v%d, v%d' % (L2 + 8 * c + 2 * r + mp, TMP + 16 * c + 4 * (2 * mp) + r,
                                                         TMP + 16 * c + 4 * (2 * mp + 1) + r))
    LB2, ARR2 = 16384, 4608
    k.I('s_lshr_b32 s45, s44, 1')
    k.I('s_mul_i32 s45, s45, %d' % (2 * ARR2))
    k.I('s_mul_i32 s46, s51, %d' % (16 * 144))
    k.I('s_add_u32 s45, s45, s46')
    k.I('s_add_u32 s45, s45, %d' % LB2)
    k.I('v_mul_u32_u24 v10, 144, v2')
    k.I('v_lshl_add_u32 v10, v3, 5, v10')
    k.I('v_add_u32 v10, s45, v10')
    for c in range(2):
        for h in range(2):
            k.I('ds_write_b128 v10, %s offset:%d' % (vr(L2 + 8 * c + 4 * h), ARR2 * c + 16 * h))
    k.barrier()
    k.stamp()
    k.I('v_lshrrev_b32 v10, 2, v2')
    k.I('v_lshl_add_u32 v10, v3, 3, v10')
    k.I('v_mul_u32_u24 v10, 144, v10')
    k.I('v_and_b32 v11, 3, v2')
    k.I('v_lshl_add_u32 v10, v11, 3, v10')
    k.I('s_lshl_b32 s45, s44, 5')
    k.I('s_add_u32 s45, s45, %d' % LB2)
    k.I('v_add_u32 v10, s45, v10')
    B7 = 32
    for arr in range(4):
        for h in range(2):
            k.I('ds_read_b64_tr_b16 %s, v10 offset:%d' % (vr(B7 + 4 * arr + 2 * h, 2), ARR2 * arr + 576 * h))
    D7 = 64

    def f32(tile, var):
        return ar(aF32 + 4 * (3 * tile + var))
    for col in range(2):
        for mt in range(2):
            dr, di = D7 + 16 * col + 4 * mt, D7 + 16 * col + 8 + 4 * mt
            br, bi = B7 + 8 * col, B7 + 8 * col + 4
            k.I('%s %s, %s, %s, 0' % (MF, vr(dr), f32(mt, 0), vr(br)))
            k.I('%s %s, %s, %s, 0' % (MF, vr(di), f32(mt, 0), vr(bi)))
            k.I('%s %s, %s, %s, %s' % (MF, vr(dr), f32(mt, 1), vr(bi), vr(dr)))
            k.I('%s %s, %s, %s, %s' % (MF, vr(di), f32(mt, 2), vr(br), vr(di)))
    k.I('v_lshl_add_u32 v10, v3, 8, v2')
    k.I('s_lshl_b32 s45, s44, 4')
    k.I('v_add_u32 v10, s45, v10')
    k.I('v_lshlrev_b32 v10, 4, v10')
    k.I('s_lshr_b32 s45, s40, 1')
    k.I('s_lshl_b32 s45, s45, 2')
    k.I('s_add_u32 s45, s45, s42')
    k.I('s_lshl_b32 s45, s45, 15')
    k.I('s_and_b32 s46, s40, 1')
    k.I('s_lshl_b32 s46, s46, 3')
    k.I('s_add_u32 s45, s45, s46')
    k.I('s_add_u32 s45, s45, %d' % G.WS_ZP)
    k.I('s_add_u32 s46, s45, 16384')
    O = 96
    for mt in range(2):
        for r in range(4):
            o = O + 2 * (4 * mt + r)
            for col in range(2):
                k.I('v_cvt_pk_bf16_f32 v%d, v%d, v%d' % (o + col, D7 + 16 * col + 4 * mt + r, D7 + 16 * col + 8 + 4 * mt + r))
            k.I('buffer_store_dwordx2 %s, v10, %s, s%d offen offset:%d' % (vr(o, 2), SRD_WS, 45 + mt, 1024 * r))
    k.stamp()
    k.wait_vm0()
    k.stamp_flush(1, 44, SRD_WS)
    k.label('L_c_end')
    k.I('s_endpgm')
    nprep = 0
    if not G.PREP_IN_K1:
        k.label('L_c_prep')
        k.vm, k.lg = [], []
        nprep = G.gen_wprep(k, 192)
    return k, 192, TABL + 48 * 1024, nprep


def more_kernels(ks, launches):
    kc, gc, lc, nprep = gen_c()
    ks.append(kc)
    kc2 = G.stub_kernel('c2_kernel', kc, 60, G.WS_STB, 'L_c_body')
    ks.append(kc2)
    launches.append((kc.name, gc + nprep, lc))
    try:
        from gen3 import gemm_kernels
        gemm_kernels(ks, launches, (kc2.name, gc, lc))
    except ImportError:
        pass
```

```python
import sys
import numpy as np
from asmlib import Kernel, pack_bf16, f32bits, emit_table

import os
S, D, F = 2048, 640, 1536
PREP_IN_K1 = os.environ.get('PREP_IN_K1', '0') == '1'
TOUCH = int(os.environ.get('TOUCH', '1'))
PI = np.pi

WS_W1F = 0x0
WS_W2FA = 0x200000
WS_W2FB = 0x400000
WS_WC = 0x600000
WS_P = 0x900000
WS_ST = 0xC00000
WS_STB = 0xC10000
WS_CNT = 0xC20000
WS_ZP = 0xD00000
WS_XP = 0x1000000
WS_X1P = 0x1300000
WS_X1N = 0x1600000
WS_H = 0x1900000
WS_HB = 0x2000000
WS_SIZE = 0x10000000

SRD_WS = 's[8:11]'
SRD_TAB = 's[12:15]'
SRD_A = 's[16:19]'
SRD_B = 's[20:23]'
SRD_C = 's[24:27]'
SRD_OUT = 's[28:31]'

tables = {}
table_off = {}


def add_table(name, words):
    tables[name] = np.asarray(words, dtype=np.uint32).reshape(-1)


def layout_tables():
    off = 0
    for n, w in tables.items():
        table_off[n] = off
        off += (len(w) * 4 + 255) // 256 * 256
    return off


def make_tables():
    T = np.zeros((5, 3, 64, 8))
    for mo in range(5):
        for t in range(3):
            for l in range(64):
                i, g = l % 16, l // 16
                n = 16 * mo + i
                k1, c = n // 2, n % 2
                for e in range(8):
                    mt, r = 2 * t + e // 4, e % 4
                    if mt >= 5:
                        continue
                    d1 = 16 * mt + 4 * g + r
                    if k1 == 0:
                        v = np.cos(PI * d1) if c == 0 else 0.0
                    else:
                        v = np.cos(2 * PI * k1 * d1 / 80) if c == 0 else -np.sin(2 * PI * k1 * d1 / 80)
                    T[mo, t, l, e] = v
    add_table('G80F', pack_bf16(T))
    T = np.zeros((41 * 8, 2, 8, 2))
    for k1 in range(41):
        for k2 in range(8):
            k = k1 + 80 * k2
            for d2 in range(8):
                th = 2 * PI * ((k * d2) % 640) / 640
                cr, ci = np.cos(th), -np.sin(th)
                if k1 == 0:
                    T[k1 * 8 + k2, 0, d2] = (cr, cr)
                    T[k1 * 8 + k2, 1, d2] = (ci, ci)
                else:
                    T[k1 * 8 + k2, 0, d2] = (cr, -ci)
                    T[k1 * 8 + k2, 1, d2] = (ci, cr)
    add_table('TZ', pack_bf16(T))
    T = np.zeros((2, 3, 64, 8))
    for tile in range(2):
        for l in range(64):
            i, g = l % 16, l // 16
            for e in range(8):
                a, b = 16 * tile + i, 8 * g + e
                th = 2 * PI * ((a * b) % 32) / 32
                T[tile, 0, l, e] = np.cos(th)
                T[tile, 1, l, e] = -np.sin(th)
                T[tile, 2, l, e] = np.sin(th)
    add_table('F32', pack_bf16(T))
    T = np.zeros((3, 4, 2, 64, 8))
    for mt in range(4):
        for t in range(2):
            for l in range(64):
                i, g = l % 16, l // 16
                for e in range(8):
                    a, b = 4 * i + mt, 16 * g + 4 * (e % 4) + 2 * t + e // 4
                    th = 2 * PI * ((a * b) % 64) / 64
                    T[0, mt, t, l, e] = np.cos(th)
                    T[1, mt, t, l, e] = -np.sin(th)
                    T[2, mt, t, l, e] = np.sin(th)
    add_table('F64', pack_bf16(T))
    T = np.zeros((2, 2, 4, 64, 4))
    for nt in range(2):
        for m in range(4):
            for l in range(64):
                j, g = l % 16, l // 16
                for r in range(4):
                    s2, k1p = 16 * g + 4 * r + m, 16 * nt + j
                    th = 2 * PI * (s2 * k1p) / 2048
                    T[nt, 0, m, l, r] = np.cos(th)
                    T[nt, 1, m, l, r] = -np.sin(th)
    add_table('TW', f32bits(T))
    T = np.zeros((22, 64, 2, 4))
    for k1 in range(41):
        for l in range(64):
            i, g = l % 16, l // 16
            d2, cp = i // 2, i % 2
            for e in range(4):
                k2, c = 2 * g + e // 2, e % 2
                ph = 2 * PI * (((k1 + 80 * k2) * d2) % 640) / 640
                if cp == 0:
                    v = np.cos(ph) if c == 0 else -np.sin(ph)
                else:
                    v = np.sin(ph) if c == 0 else np.cos(ph)
                T[k1 // 2, l, k1 % 2, e] = v
    add_table('TA', pack_bf16(T))
    T = np.zeros((5, 3, 64, 8))
    for mt in range(5):
        for t in range(3):
            for l in range(64):
                i, g = l % 16, l // 16
                d1 = 16 * mt + i
                for e in range(8):
                    k1, cp = 16 * t + 4 * g + e // 2, e % 2
                    if k1 > 40:
                        continue
                    th = 2 * PI * ((k1 * d1) % 80) / 80
                    if k1 in (0, 40):
                        v = np.cos(th) if cp == 0 else 0.0
                    else:
                        v = 2 * np.cos(th) if cp == 0 else -2 * np.sin(th)
                    T[mt, t, l, e] = v
    add_table('G80I', pack_bf16(T))


def prologue(k, need, early=None):
    k.I('s_load_dwordx2 s[4:5], s[0:1], 64')
    tmp = 32
    items = list(need.items())
    for n, (srd, (ko, nb)) in enumerate(items):
        k.I('s_load_dwordx2 s[%d:%d], s[0:1], %d' % (tmp + 2 * n, tmp + 2 * n + 1, ko))
    k.I('s_getpc_b64 s[6:7]')
    k.raw('    s_add_u32 s6, s6, tab_base@rel32@lo+4')
    k.raw('    s_addc_u32 s7, s7, tab_base@rel32@hi+12')
    k.I('s_mov_b32 s12, s6')
    k.I('s_and_b32 s13, s7, 0xffff')
    k.I('s_mov_b32 s14, %d' % TAB_BYTES)
    k.I('s_mov_b32 s15, 0x20000')
    if early is not None:
        early()
    k.wait_lgkm0()
    k.I('s_mov_b32 s8, s4')
    k.I('s_and_b32 s9, s5, 0xffff')
    k.I('s_mov_b32 s10, 0x%x' % WS_SIZE)
    k.I('s_mov_b32 s11, 0x20000')
    for n, (srd, (ko, nb)) in enumerate(items):
        b = int(srd[2:srd.index(':')])
        k.I('s_mov_b32 s%d, s%d' % (b, tmp + 2 * n))
        k.I('s_and_b32 s%d, s%d, 0xffff' % (b + 1, tmp + 2 * n + 1))
        k.I('s_mov_b32 s%d, %d' % (b + 2, nb))
        k.I('s_mov_b32 s%d, 0x20000' % (b + 3))


def xsum_g(k, reg, tmp):
    k.I('v_mov_b32 v%d, v%d' % (tmp, reg))
    k.I('v_permlane32_swap_b32 v%d, v%d' % (reg, tmp))
    k.I('v_add_f32 v%d, v%d, v%d' % (reg, reg, tmp))
    k.I('v_mov_b32 v%d, v%d' % (tmp, reg))
    k.I('v_permlane16_swap_b32 v%d, v%d' % (reg, tmp))
    k.I('v_add_f32 v%d, v%d, v%d' % (reg, reg, tmp))


def fwd_epilogue(k, X, T, G80, vP, vP0, vST, sbase, d2_soff_sgpr, statacc=None):
    sm, t1, mean, m2 = T, T + 1, T + 2, T + 3
    acc = T + 4
    B = T + 8
    Dm = T + 20
    k.I('v_pk_add_f32 v[%d:%d], v[%d:%d], v[%d:%d]' % (acc, acc + 1, X, X + 1, X + 2, X + 3))
    for q in range(2, 10):
        k.I('v_pk_add_f32 v[%d:%d], v[%d:%d], v[%d:%d]' % (acc, acc + 1, acc, acc + 1, X + 2 * q, X + 2 * q + 1))
    k.I('v_add_f32 v%d, v%d, v%d' % (sm, acc, acc + 1))
    xsum_g(k, sm, t1)
    k.I('v_mul_f32 v%d, 0x%x, v%d' % (mean, f32bits(1.0 / 80), sm))
    for q in range(10):
        k.I('v_pk_add_f32 v[%d:%d], v[%d:%d], v[%d:%d] op_sel_hi:[1,0] neg_lo:[0,1] neg_hi:[0,1]'
            % (X + 2 * q, X + 2 * q + 1, X + 2 * q, X + 2 * q + 1, mean, mean + 1))
    k.I('v_pk_mul_f32 v[%d:%d], v[%d:%d], v[%d:%d]' % (acc, acc + 1, X, X + 1, X, X + 1))
    for q in range(1, 10):
        k.I('v_pk_fma_f32 v[%d:%d], v[%d:%d], v[%d:%d], v[%d:%d]'
            % (acc, acc + 1, X + 2 * q, X + 2 * q + 1, X + 2 * q, X + 2 * q + 1, acc, acc + 1))
    k.I('v_add_f32 v%d, v%d, v%d' % (m2, acc, acc + 1))
    for q in range(10):
        k.I('v_cvt_pk_bf16_f32 v%d, v%d, v%d' % (B + q, X + 2 * q, X + 2 * q + 1))
    k.I('v_mov_b32 v%d, 0' % (B + 10))
    k.I('v_mov_b32 v%d, 0' % (B + 11))
    xsum_g(k, m2, t1)
    for mo in range(5):
        for t in range(3):
            c = '0' if t == 0 else 'v[%d:%d]' % (Dm + 4 * mo, Dm + 4 * mo + 3)
            k.I('v_mfma_f32_16x16x32_bf16 v[%d:%d], %s, v[%d:%d], %s'
                % (Dm + 4 * mo, Dm + 4 * mo + 3, G80(mo, t), B + 4 * t, B + 4 * t + 3, c))
    hi, lo = acc, acc + 1
    k.I('v_cvt_pk_bf16_f32 v%d, v%d, v%d' % (hi, sm, sm))
    k.I('v_and_b32 v%d, 0xffff0000, v%d' % (hi, hi))
    k.I('v_sub_f32 v%d, v%d, v%d' % (lo, sm, hi))
    k.I('v_cvt_pk_bf16_f32 v%d, v%d, v%d' % (hi, hi, lo))
    k.I('v_fmac_f32 v%d, v%d, v%d' % (m2, sm, mean))
    k.I('s_mov_b64 exec, 0xffff')
    k.I('buffer_store_dword v%d, v%d, %s, s%d offen' % (hi, vP, SRD_WS, d2_soff_sgpr))
    if statacc is None:
        k.I('buffer_atomic_add_f32 v%d, v%d, %s, s%d offen' % (sm, vST, SRD_WS, d2_soff_sgpr + 1))
        k.I('buffer_atomic_add_f32 v%d, v%d, %s, s%d offen offset:4' % (m2, vST, SRD_WS, d2_soff_sgpr + 1))
    k.I('s_mov_b64 exec, -1')
    if statacc is not None:
        k.I('v_add_f32 v%d, v%d, v%d' % (statacc, statacc, sm))
        k.I('v_add_f32 v%d, v%d, v%d' % (statacc + 1, statacc + 1, m2))
    for mo in range(5):
        for h in range(2):
            o = B + 2 * mo + h
            o = X + 2 * mo + h
            k.I('v_cvt_pk_bf16_f32 v%d, v%d, v%d' % (o, Dm + 4 * mo + 2 * h, Dm + 4 * mo + 2 * h + 1))
            k.I('s_add_u32 s%d, s%d, %d' % (sbase, d2_soff_sgpr, (8 * mo + h) * 65536))
            k.I('buffer_store_dword v%d, v%d, %s, s%d offen'
                % (o, vP0 if (mo == 0 and h == 0) else vP, SRD_WS, sbase))


def dma_table(k, tab_off, nchunks, lds_base, wave_s, vlane16, st):
    k.I('s_lshl_b32 s%d, s%d, 10' % (st, wave_s))
    k.I('s_add_u32 m0, s%d, %d' % (st, lds_base))
    k.I('s_add_u32 s%d, s%d, %d' % (st, st, tab_off))
    for i in range((nchunks + 3) // 4):
        if i:
            k.I('s_add_u32 m0, m0, 4096')
            k.I('s_add_u32 s%d, s%d, 4096' % (st, st))
        k.I('buffer_load_dwordx4 v%d, %s, s%d offen lds' % (vlane16, SRD_TAB, st))


def stub_kernel(name, main, sreg, value, target):
    k = Kernel(name)
    k.I('s_mov_b32 s%d, %d' % (sreg, value))
    k.I('s_branch %s' % target)
    k.main = main
    return k


def lane_ids(k, vj, vg, vw_s):
    k.I('v_and_b32 v%d, 15, v0' % vj)
    k.I('v_bfe_u32 v%d, v0, 4, 2' % vg)
    k.I('v_lshrrev_b32 v1, 6, v0')
    k.I('v_readfirstlane_b32 s%d, v1' % vw_s)


def gen_wprep(k, base):
    N1, N2 = 30, 30
    k.I('s_cmp_ge_u32 s2, %d' % (base + N1 + N2))
    k.I('s_cbranch_scc1 L_prep_end')
    prologue(k, {SRD_OUT: (32, D * F * 2), 's[40:43]': (40, F * D * 2)})
    SRD_W1, SRD_W2 = SRD_OUT, 's[40:43]'
    lane_ids(k, 2, 3, 44)
    k.I('v_and_b32 v4, 63, v0')
    k.I('v_lshlrev_b32 v8, 4, v4')
    k.I('s_mov_b32 s46, 0x05040100')
    k.I('s_mov_b32 s47, 0x07060302')
    k.I('s_lshl_b32 s59, s44, 14')
    k.I('v_lshrrev_b32 v9, 1, v2')
    k.I('v_lshlrev_b32 v9, 10, v9')
    k.I('v_and_b32 v10, 1, v2')
    k.I('v_lshl_add_u32 v9, v10, 7, v9')
    k.I('v_lshl_add_u32 v9, v3, 8, v9')
    k.I('v_add_u32 v9, s59, v9')
    k.I('v_add_u32 v10, s59, v8')

    def transpose8(R, O):
        for c in range(8):
            for kk in range(4):
                k.I('v_perm_b32 v%d, v%d, v%d, %s' % (O + 4 * c + kk, R + 4 * (2 * kk + 1) + c // 2,
                                                      R + 4 * (2 * kk) + c // 2, 's47' if c % 2 else 's46'))

    def via_lds(O, i, T):
        for c in range(8):
            k.I('ds_write_b128 v9, v[%d:%d] offset:%d' % (O + 4 * c, O + 4 * c + 3, 8192 * i + 16 * c))
        for q in range(8):
            k.I('ds_read_b128 v[%d:%d], v10 offset:%d' % (T + 4 * q, T + 4 * q + 3, 8192 * i + 1024 * q))
    k.I('s_cmp_ge_u32 s2, %d' % (base + N1))
    k.I('s_cbranch_scc1 L_prep_w2')
    k.I('s_sub_u32 s45, s2, %d' % base)
    k.I('s_lshl_b32 s45, s45, 2')
    k.I('s_add_u32 s45, s45, s44')
    k.I('s_lshl_b32 s45, s45, 1')
    k.I('v_mul_u32_u24 v5, %d, v3' % (32 * 3072))
    k.I('v_lshl_add_u32 v5, v2, 4, v5')
    for i in range(2):
        R = 16 + 32 * i
        k.I('s_add_u32 s56, s45, %d' % i)
        k.I('s_mul_i32 s57, s56, 43691')
        k.I('s_lshr_b32 s%d, s57, 19' % (60 + 2 * i))
        k.I('s_mul_i32 s58, s%d, 12' % (60 + 2 * i))
        k.I('s_sub_u32 s%d, s56, s58' % (61 + 2 * i))
        for e in range(8):
            k.I('s_lshl_b32 s50, s%d, 1' % (60 + 2 * i))
            k.I('s_add_u32 s50, s50, %d' % (e // 4))
            k.I('s_mul_i32 s51, s50, 13')
            k.I('s_lshr_b32 s51, s51, 6')
            k.I('s_mul_i32 s52, s51, 5')
            k.I('s_sub_u32 s52, s50, s52')
            k.I('s_lshl_b32 s52, s52, 7')
            k.I('s_add_u32 s52, s52, s51')
            k.I('s_add_u32 s52, s52, %d' % (8 * (e % 4)))
            k.I('s_mul_i32 s52, s52, 3072')
            k.I('s_lshl_b32 s53, s%d, 8' % (61 + 2 * i))
            k.I('s_add_u32 s52, s52, s53')
            k.I('buffer_load_dwordx4 v[%d:%d], v5, %s, s52 offen' % (R + 4 * e, R + 4 * e + 3, SRD_W1))
    for i in range(2):
        R, O, T = 16 + 32 * i, 80 + 32 * i, 144 + 32 * i
        transpose8(R, O)
        via_lds(O, i, T)
        k.I('s_mul_i32 s50, s%d, %d' % (61 + 2 * i, 8 * 20480))
        k.I('s_lshl_b32 s51, s%d, 10' % (60 + 2 * i))
        k.I('s_add_u32 s50, s50, s51')
        for q in range(8):
            k.I('s_add_u32 s51, s50, %d' % (WS_W1F + q * 20480))
            k.I('buffer_store_dwordx4 v[%d:%d], v8, %s, s51 offen' % (T + 4 * q, T + 4 * q + 3, SRD_WS))
    k.I('s_endpgm')
    k.label('L_prep_w2')
    k.I('s_sub_u32 s45, s2, %d' % (base + N1))
    k.I('s_lshl_b32 s45, s45, 2')
    k.I('s_add_u32 s45, s45, s44')
    k.I('s_lshl_b32 s45, s45, 1')
    k.I('v_mul_u32_u24 v5, 5120, v3')
    k.I('v_lshl_add_u32 v5, v2, 4, v5')
    for i in range(2):
        R = 16 + 32 * i
        k.I('s_add_u32 s56, s45, %d' % i)
        k.I('s_mul_i32 s57, s56, 52429')
        k.I('s_lshr_b32 s%d, s57, 18' % (60 + 2 * i))
        k.I('s_mul_i32 s58, s%d, 5' % (60 + 2 * i))
        k.I('s_sub_u32 s%d, s56, s58' % (61 + 2 * i))
        for e in range(8):
            k.I('s_lshl_b32 s50, s%d, 5' % (60 + 2 * i))
            k.I('s_add_u32 s50, s50, %d' % (16 * (e // 4) + e % 4))
            k.I('s_mul_i32 s50, s50, 1280')
            k.I('s_lshl_b32 s53, s%d, 8' % (61 + 2 * i))
            k.I('s_add_u32 s50, s50, s53')
            k.I('buffer_load_dwordx4 v[%d:%d], v5, %s, s50 offen' % (R + 4 * e, R + 4 * e + 3, SRD_W2))
    for i in range(2):
        R, O, T = 16 + 32 * i, 80 + 32 * i, 144 + 32 * i
        transpose8(R, O)
        via_lds(O, i, T)
        k.I('s_mul_i32 s50, s%d, 49152' % (61 + 2 * i))
        k.I('s_lshl_b32 s51, s%d, 10' % (60 + 2 * i))
        k.I('s_add_u32 s50, s50, s51')
        for c in range(8):
            k.I('s_add_u32 s52, s50, %d' % (WS_W2FA + c * 245760))
            k.I('buffer_store_dwordx4 v[%d:%d], v8, %s, s52 offen' % (O + 4 * c, O + 4 * c + 3, SRD_WS))
        k.I('s_mul_i32 s50, s%d, %d' % (61 + 2 * i, 8 * 49152))
        k.I('s_add_u32 s50, s50, s51')
        for q in range(8):
            k.I('s_add_u32 s52, s50, %d' % (WS_W2FB + q * 49152))
            k.I('buffer_store_dwordx4 v[%d:%d], v8, %s, s52 offen' % (T + 4 * q, T + 4 * q + 3, SRD_WS))
    k.label('L_prep_end')
    k.I('s_endpgm')
    return N1 + N2


def gen_k1():
    k = Kernel('k1_kernel')
    NX, NW = 128, 256
    k.I('s_cmp_ge_u32 s2, %d' % (NX + NW))
    k.I('s_cbranch_scc1 %s' % ('L_k1_touch' if TOUCH else ('L_k1_prep' if PREP_IN_K1 else 'L_k1_end')))
    k.stamp()
    prologue(k, {SRD_A: (0, S * D * 2), SRD_B: (8, S * 321 * 2), SRD_C: (16, S * 321 * 2)})
    lane_ids(k, 2, 3, 44)
    k.I('s_mov_b32 s46, 0x05040100')
    k.I('s_mov_b32 s47, 0x07060302')
    k.I('s_cmp_ge_u32 s2, %d' % NX)
    k.I('s_cbranch_scc1 L_k1_w')
    k.I('s_lshl_b32 s45, s2, 4')
    k.I('v_add_u32 v4, s45, v2')
    XL = 512 + 16 * 1024
    R = 16
    k.I('s_mul_i32 s48, s2, 20480')
    k.I('v_lshlrev_b32 v5, 4, v0')
    for i in range(5):
        k.I('s_add_u32 s49, s48, %d' % (4096 * i))
        k.I('buffer_load_dwordx4 v[%d:%d], v5, %s, s49 offen' % (40 + 4 * i, 43 + 4 * i, SRD_A))
    k.I('v_and_b32 v6, 63, v0')
    k.I('v_lshlrev_b32 v6, 4, v6')
    dma_table(k, table_off['G80F'], 15, 512, 44, 6, 50)
    k.I('s_mov_b32 s48, 52429')
    for i in range(5):
        k.I('v_add_u32 v7, %d, v0' % (256 * i))
        k.I('v_mul_lo_u32 v8, v7, s48')
        k.I('v_lshrrev_b32 v8, 22, v8')
        k.I('v_lshlrev_b32 v7, 4, v7')
        k.I('v_lshl_add_u32 v7, v8, 4, v7')
        k.I('ds_write_b128 v7, v[%d:%d] offset:%d' % (40 + 4 * i, 43 + 4 * i, XL))
    k.stamp()
    k.wait_vm0()
    k.barrier()
    k.stamp()
    k.I('v_mul_u32_u24 v5, 1296, v2')
    k.I('v_lshl_add_u32 v5, v3, 6, v5')
    k.I('s_lshl_b32 s49, s44, 2')
    k.I('v_add_u32 v5, s49, v5')
    for mt in range(5):
        for r in range(4):
            k.I('ds_read_b32 v%d, v5 offset:%d' % (R + 4 * mt + r, XL + 256 * mt + 16 * r))
    for q in range(15):
        k.I('ds_read_b128 a[%d:%d], v6 offset:%d' % (4 * q, 4 * q + 3, 512 + 1024 * q))
    k.I('v_lshlrev_b32 v7, 2, v4')
    k.I('v_lshl_add_u32 v7, v3, 17, v7')
    k.I('v_mov_b32 v8, v7')
    k.I('v_cmp_eq_u32 vcc, 0, v3')
    k.I('v_add_u32 v9, %d, v7' % (40 * 65536))
    k.I('v_cndmask_b32 v8, v7, v9, vcc')
    k.I('v_lshlrev_b32 v9, 3, v4')
    k.I('v_mov_b32 v12, 0')
    k.I('v_mov_b32 v13, 0')
    k.I('v_lshlrev_b32 v10, 6, v4')
    k.I('v_lshl_add_u32 v10, v3, 4, v10')
    X, T, PK = 40, 64, 104
    k.I('s_mul_i32 s54, s44, %d' % (5 * 131072))
    k.I('s_add_u32 s54, s54, %d' % WS_XP)
    for mt in range(5):
        pk = PK + 4 * mt
        k.I('v_perm_b32 v%d, v%d, v%d, s46' % (pk, R + 4 * mt + 1, R + 4 * mt))
        k.I('v_perm_b32 v%d, v%d, v%d, s46' % (pk + 1, R + 4 * mt + 3, R + 4 * mt + 2))
        k.I('v_perm_b32 v%d, v%d, v%d, s47' % (pk + 2, R + 4 * mt + 1, R + 4 * mt))
        k.I('v_perm_b32 v%d, v%d, v%d, s47' % (pk + 3, R + 4 * mt + 3, R + 4 * mt + 2))
        k.I('s_add_u32 s55, s54, %d' % (mt * 131072))
        k.I('buffer_store_dwordx4 v[%d:%d], v10, %s, s55 offen' % (pk, pk + 3, SRD_WS))
    k.stamp()
    for e in range(2):
        k.I('s_lshl_b32 s51, s44, 1')
        k.I('s_add_u32 s51, s51, %d' % e)
        k.I('s_lshl_b32 s52, s51, 13')
        k.I('s_add_u32 s52, s52, %d' % WS_P)
        for q in range(20):
            if e == 0:
                k.I('v_lshlrev_b32 v%d, 16, v%d' % (X + q, R + q))
            else:
                k.I('v_and_b32 v%d, 0xffff0000, v%d' % (X + q, R + q))
        fwd_epilogue(k, X, T, lambda mo, t: 'a[%d:%d]' % (4 * (3 * mo + t), 4 * (3 * mo + t) + 3),
                     7, 8, 9, 55, 52, statacc=12)
    k.stamp()
    k.I('s_lshl_b32 s51, s44, 7')
    k.I('v_lshl_add_u32 v14, v2, 3, s51')
    k.I('s_mov_b64 exec, 0xffff')
    k.I('ds_write_b64 v14, v[12:13]')
    k.I('s_mov_b64 exec, -1')
    k.barrier()
    k.I('s_cmp_eq_u32 s44, 0')
    k.I('s_cbranch_scc0 L_k1_xdone')
    k.I('v_lshlrev_b32 v14, 3, v2')
    for w in range(4):
        k.I('ds_read_b64 v[%d:%d], v14 offset:%d' % (16 + 2 * w, 17 + 2 * w, 128 * w))
    k.I('v_pk_add_f32 v[16:17], v[16:17], v[18:19]')
    k.I('v_pk_add_f32 v[20:21], v[20:21], v[22:23]')
    k.I('v_pk_add_f32 v[16:17], v[16:17], v[20:21]')
    k.I('v_mov_b32 v18, 0')
    k.I('v_mov_b32 v19, 0')
    k.I('s_mov_b32 s51, %d' % WS_ST)
    k.I('s_mov_b32 s52, %d' % WS_STB)
    k.I('s_mov_b64 exec, 0xffff')
    k.I('buffer_store_dwordx2 v[16:17], v9, %s, s51 offen' % SRD_WS)
    k.I('buffer_store_dwordx2 v[18:19], v9, %s, s52 offen' % SRD_WS)
    k.I('s_mov_b64 exec, -1')
    k.label('L_k1_xdone')
    k.stamp()
    k.wait_vm0()
    k.stamp_flush(0, 44, SRD_WS)
    k.nstamp = 1
    k.I('s_endpgm')
    k.label('L_k1_w')
    k.I('s_sub_u32 s45, s2, %d' % NX)
    k.I('s_lshr_b32 s48, s45, 5')
    k.I('s_and_b32 s49, s45, 31')
    k.I('s_lshl_b32 s49, s49, 2')
    k.I('s_add_u32 s49, s49, s44')
    k.I('s_lshr_b32 s50, s49, 6')
    k.I('s_and_b32 s51, s49, 63')
    k.I('s_and_b32 s52, s51, 15')
    k.I('s_lshr_b32 s53, s51, 4')
    k.I('s_lshl_b32 s54, s50, 4')
    k.I('s_add_u32 s54, s54, s52')
    k.I('s_lshl_b32 s55, s53, 9')
    k.I('s_add_u32 s54, s54, s55')
    k.I('v_and_b32 v4, 63, v0')
    k.I('s_mul_i32 s55, s48, 80')
    k.I('v_add_u32 v5, s55, v4')
    k.I('v_sub_u32 v6, 640, v5')
    k.I('s_cmp_lt_u32 s48, 4')
    k.I('s_cselect_b32 s56, 0, -1')
    k.I('s_cselect_b32 s57, 0, 0x80000000')
    k.I('v_mov_b32 v7, s56')
    k.I('v_cmp_eq_u32 vcc, 0, v7')
    k.I('v_cndmask_b32 v5, v6, v5, vcc')
    k.I('v_lshlrev_b32 v5, 1, v5')
    RE, IM, RE2, IM2 = 16, 32, 48, 64
    for mt in range(4):
        for r in range(4):
            q = 4 * mt + r
            k.I('s_add_u32 s58, s54, %d' % (32 * (4 * r + mt)))
            k.I('s_sub_u32 s59, 0, s58')
            k.I('s_and_b32 s59, s59, 2047')
            k.I('s_cmp_lt_u32 s48, 4')
            k.I('s_cselect_b32 s60, s58, s59')
            k.I('s_mul_i32 s60, s60, 642')
            k.I('buffer_load_ushort v%d, v5, %s, s60 offen' % (RE + q, SRD_B))
            k.I('buffer_load_ushort v%d, v5, %s, s60 offen' % (IM + q, SRD_C))
    k.stamp()
    k.I('s_and_b32 s61, s48, 3')
    k.I('s_cmp_eq_u32 s61, 0')
    k.I('s_cbranch_scc0 L_k1_w_nosym')
    for mt in range(4):
        for r in range(4):
            q = 4 * mt + r
            k.I('s_add_u32 s58, s54, %d' % (32 * (4 * r + mt)))
            k.I('s_sub_u32 s59, 0, s58')
            k.I('s_and_b32 s59, s59, 2047')
            k.I('s_cmp_lt_u32 s48, 4')
            k.I('s_cselect_b32 s60, s59, s58')
            k.I('s_mul_i32 s60, s60, 642')
            k.I('buffer_load_ushort v%d, v5, %s, s60 offen' % (RE2 + q, SRD_B))
            k.I('buffer_load_ushort v%d, v5, %s, s60 offen' % (IM2 + q, SRD_C))
    k.wait_vm0()
    k.I('s_mov_b64 exec, 1')
    for q in range(16):
        k.I('v_lshlrev_b32 v8, 16, v%d' % (RE + q))
        k.I('v_lshlrev_b32 v9, 16, v%d' % (RE2 + q))
        k.I('v_add_f32 v8, v8, v9')
        k.I('v_mul_f32 v8, 0.5, v8')
        k.I('v_lshlrev_b32 v10, 16, v%d' % (IM + q))
        k.I('v_lshlrev_b32 v9, 16, v%d' % (IM2 + q))
        k.I('v_sub_f32 v10, v10, v9')
        k.I('v_mul_f32 v10, 0.5, v10')
        k.I('v_cvt_pk_bf16_f32 v8, v8, v10')
        k.I('v_and_b32 v%d, 0xffff, v8' % (RE + q))
        k.I('v_lshrrev_b32 v%d, 16, v8' % (IM + q))
    k.I('s_mov_b64 exec, -1')
    k.label('L_k1_w_nosym')
    k.wait_vm0()
    k.stamp()
    for q in range(16):
        k.I('v_lshl_or_b32 v%d, v%d, 16, v%d' % (RE + q, IM + q, RE + q))
        k.I('v_xor_b32 v%d, s57, v%d' % (RE + q, RE + q))
    k.I('v_lshlrev_b32 v6, 16, v4')
    k.I('s_lshl_b32 s58, s48, 13')
    k.I('s_lshl_b32 s59, s49, 6')
    k.I('s_add_u32 s58, s58, s59')
    k.I('s_add_u32 s58, s58, %d' % WS_WC)
    k.I('v_cmp_gt_u32 vcc, 41, v4')
    k.I('s_and_saveexec_b64 s[62:63], vcc')
    for mt in range(4):
        k.I('buffer_store_dwordx4 v[%d:%d], v6, %s, s58 offen offset:%d' % (RE + 4 * mt, RE + 4 * mt + 3, SRD_WS, 16 * mt))
    k.stamp()
    k.wait_vm0()
    k.stamp_flush(0, 44, SRD_WS)
    k.nstamp = 1
    k.I('s_endpgm')

    k.label('L_k1_end')
    k.I('s_endpgm')
    if TOUCH:
        k.label('L_k1_touch')
        k.vm, k.lg = [], []
        NT = 64
        k.I('s_cmp_ge_u32 s2, %d' % (NX + NW + NT))
        k.I('s_cbranch_scc1 L_k1_end')
        k.I('s_getpc_b64 s[6:7]')
        k.out.append('L_k1_pc:')
        k.raw('    s_sub_u32 s8, s6, L_k1_pc-k1_kernel')
        k.raw('    s_subb_u32 s9, s7, 0')
        k.I('s_and_b32 s9, s9, 0xffff')
        k.raw('    s_mov_b32 s10, L_text_end-k1_kernel')
        k.I('s_mov_b32 s11, 0x20000')
        k.I('s_getpc_b64 s[6:7]')
        k.raw('    s_add_u32 s6, s6, tab_base@rel32@lo+4')
        k.raw('    s_addc_u32 s7, s7, tab_base@rel32@hi+12')
        k.I('s_mov_b32 s12, s6')
        k.I('s_and_b32 s13, s7, 0xffff')
        k.I('s_mov_b32 s14, %d' % TAB_BYTES)
        k.I('s_mov_b32 s15, 0x20000')
        k.I('s_sub_u32 s16, s2, %d' % (NX + NW))
        k.I('s_lshl_b32 s16, s16, 12')
        k.I('v_lshlrev_b32 v1, 4, v0')
        k.I('buffer_load_dwordx4 v[4:7], v1, s[8:11], s16 offen')
        k.I('buffer_load_dwordx4 v[8:11], v1, s[12:15], s16 offen')
        if TOUCH >= 2:
            k.I('s_load_dwordx4 s[20:23], s[0:1], 32')
            k.wait_lgkm0()
            for n, b in enumerate((24, 28)):
                k.I('s_mov_b32 s%d, s%d' % (b, 20 + 2 * n))
                k.I('s_and_b32 s%d, s%d, 0xffff' % (b + 1, 21 + 2 * n))
                k.I('s_mov_b32 s%d, %d' % (b + 2, D * F * 2))
                k.I('s_mov_b32 s%d, 0x20000' % (b + 3))
            k.I('s_lshl_b32 s17, s16, 3')
            for i in range(8):
                k.I('s_add_u32 s18, s17, %d' % (4096 * i))
                k.I('buffer_load_dwordx4 v[%d:%d], v1, s[24:27], s18 offen' % (12 + 8 * i, 15 + 8 * i))
                k.I('buffer_load_dwordx4 v[%d:%d], v1, s[28:31], s18 offen' % (16 + 8 * i, 19 + 8 * i))
        k.wait_vm0()
        k.I('s_endpgm')
        return k, NX + NW + NT, 512 + 16 * 1024 + 16 * 1296
    if PREP_IN_K1:
        k.label('L_k1_prep')
        k.vm, k.lg = [], []
        n = gen_wprep(k, NX + NW)
        return k, NX + NW + n, 65536
    return k, (NX + NW), 512 + 16 * 1024 + 16 * 1296


HEADER = '''; Kernarg layout for this problem (72 bytes, ptrs only, base s[0:1]):
'''


def build(kernels, launches):
    out = [HEADER.rstrip('\n')]
    for name, grid, lds in launches:
        out.append('; @launch kernel=%s grid=(%d,1,1) block=(256,1,1) lds=%d' % (name, grid, lds))
    out.append('.amdgcn_target "amdgcn-amd-amdhsa--gfx950"')
    out.append('.text')
    for k in kernels:
        out.append('.globl %s' % k.name)
        out.append('.p2align 8')
        out.append('.type %s,@function' % k.name)
        out.append('%s:' % k.name)
        out += k.out
    out.append('L_text_end:')
    out.append('.section .rodata,"a"')
    for k in kernels:
        if getattr(k, 'main', None) is not None:
            k.maxv, k.maxa, k.maxs = k.main.maxv, k.main.maxa, k.main.maxs
        nv = k.maxv + 1
        acc_off = (nv + 3) // 4 * 4
        nfv = acc_off + (k.maxa + 1) if k.maxa >= 0 else nv
        out.append('.p2align 6')
        out.append('.amdhsa_kernel %s' % k.name)
        out.append('  .amdhsa_next_free_vgpr %d' % nfv)
        out.append('  .amdhsa_next_free_sgpr %d' % max(k.maxs + 1, 16))
        out.append('  .amdhsa_accum_offset %d' % acc_off)
        out.append('  .amdhsa_group_segment_fixed_size 0')
        out.append('  .amdhsa_kernarg_size 72')
        out.append('  .amdhsa_user_sgpr_count 2')
        out.append('  .amdhsa_user_sgpr_kernarg_segment_ptr 1')
        out.append('  .amdhsa_system_sgpr_workgroup_id_x 1')
        out.append('  .amdhsa_float_denorm_mode_32 3')
        out.append('  .amdhsa_float_denorm_mode_16_64 3')
        out.append('.end_amdhsa_kernel')
    out.append('.p2align 8')
    out.append('tab_base:')
    for n, w in tables.items():
        out += emit_table('tab_' + n, w)
    return '\n'.join(out) + '\n'


make_tables()
TAB_BYTES = layout_tables()

if __name__ == '__main__':
    if len(sys.argv) > 2 and sys.argv[2] in ('diag', 'real'):
        Kernel.DIAG = True
        Kernel.REAL = sys.argv[2] == 'real'
    ks, launches = [], []
    k, g, l = gen_k1()
    ks.append(k)
    launches.append((k.name, g, l))
    try:
        from gen2 import more_kernels
        more_kernels(ks, launches)
    except ImportError:
        pass
    path = sys.argv[1] if len(sys.argv) > 1 else 'interleave_layers__spectral_gfnet__dense_activation_silu__prompt.s'
    open(path, 'w').write(build(ks, launches))
    print('wrote', path)
```

```python
import sys
import numpy as np
from asmlib import Kernel, pack_bf16, f32bits, emit_table

import os
S, D, F = 2048, 640, 1536
PREP_IN_K1 = os.environ.get('PREP_IN_K1', '0') == '1'
TOUCH = int(os.environ.get('TOUCH', '1'))
WT = os.environ.get('WT', '')
PI = np.pi

WS_W1F = 0x0
WS_W2FA = 0x200000
WS_W2FB = 0x400000
WS_WC = 0x600000
WS_P = 0x900000
WS_ST = 0xC00000
WS_STB = 0xC10000
WS_CNT = 0xC20000
WS_ZP = 0xD00000
WS_XP = 0x1000000
WS_X1P = 0x1300000
WS_X1N = 0x1600000
WS_H = 0x1900000
WS_HB = 0x2000000
WS_SIZE = 0x10000000

SRD_WS = 's[8:11]'
SRD_TAB = 's[12:15]'
SRD_A = 's[16:19]'
SRD_B = 's[20:23]'
SRD_C = 's[24:27]'
SRD_OUT = 's[28:31]'

tables = {}
table_off = {}


def add_table(name, words):
    tables[name] = np.asarray(words, dtype=np.uint32).reshape(-1)


def layout_tables():
    off = 0
    for n, w in tables.items():
        table_off[n] = off
        off += (len(w) * 4 + 255) // 256 * 256
    return off


def make_tables():
    T = np.zeros((5, 3, 64, 8))
    for mo in range(5):
        for t in range(3):
            for l in range(64):
                i, g = l % 16, l // 16
                n = 16 * mo + i
                k1, c = n // 2, n % 2
                for e in range(8):
                    mt, r = 2 * t + e // 4, e % 4
                    if mt >= 5:
                        continue
                    d1 = 16 * mt + 4 * g + r
                    if k1 == 0:
                        v = np.cos(PI * d1) if c == 0 else 0.0
                    else:
                        v = np.cos(2 * PI * k1 * d1 / 80) if c == 0 else -np.sin(2 * PI * k1 * d1 / 80)
                    T[mo, t, l, e] = v
    add_table('G80F', pack_bf16(T))
    T = np.zeros((41 * 8, 2, 8, 2))
    for k1 in range(41):
        for k2 in range(8):
            k = k1 + 80 * k2
            for d2 in range(8):
                th = 2 * PI * ((k * d2) % 640) / 640
                cr, ci = np.cos(th), -np.sin(th)
                if k1 == 0:
                    T[k1 * 8 + k2, 0, d2] = (cr, cr)
                    T[k1 * 8 + k2, 1, d2] = (ci, ci)
                else:
                    T[k1 * 8 + k2, 0, d2] = (cr, -ci)
                    T[k1 * 8 + k2, 1, d2] = (ci, cr)
    add_table('TZ', pack_bf16(T))
    T = np.zeros((2, 3, 64, 8))
    for tile in range(2):
        for l in range(64):
            i, g = l % 16, l // 16
            for e in range(8):
                a, b = 16 * tile + i, 8 * g + e
                th = 2 * PI * ((a * b) % 32) / 32
                T[tile, 0, l, e] = np.cos(th)
                T[tile, 1, l, e] = -np.sin(th)
                T[tile, 2, l, e] = np.sin(th)
    add_table('F32', pack_bf16(T))
    T = np.zeros((3, 4, 2, 64, 8))
    for mt in range(4):
        for t in range(2):
            for l in range(64):
                i, g = l % 16, l // 16
                for e in range(8):
                    a, b = 4 * i + mt, 16 * g + 4 * (e % 4) + 2 * t + e // 4
                    th = 2 * PI * ((a * b) % 64) / 64
                    T[0, mt, t, l, e] = np.cos(th)
                    T[1, mt, t, l, e] = -np.sin(th)
                    T[2, mt, t, l, e] = np.sin(th)
    add_table('F64', pack_bf16(T))
    T = np.zeros((2, 2, 4, 64, 4))
    for nt in range(2):
        for m in range(4):
            for l in range(64):
                j, g = l % 16, l // 16
                for r in range(4):
                    s2, k1p = 16 * g + 4 * r + m, 16 * nt + j
                    th = 2 * PI * (s2 * k1p) / 2048
                    T[nt, 0, m, l, r] = np.cos(th)
                    T[nt, 1, m, l, r] = -np.sin(th)
    add_table('TW', f32bits(T))
    T = np.zeros((22, 64, 2, 4))
    for k1 in range(41):
        for l in range(64):
            i, g = l % 16, l // 16
            d2, cp = i // 2, i % 2
            for e in range(4):
                k2, c = 2 * g + e // 2, e % 2
                ph = 2 * PI * (((k1 + 80 * k2) * d2) % 640) / 640
                if cp == 0:
                    v = np.cos(ph) if c == 0 else -np.sin(ph)
                else:
                    v = np.sin(ph) if c == 0 else np.cos(ph)
                T[k1 // 2, l, k1 % 2, e] = v
    add_table('TA', pack_bf16(T))
    T = np.zeros((5, 3, 64, 8))
    for mt in range(5):
        for t in range(3):
            for l in range(64):
                i, g = l % 16, l // 16
                d1 = 16 * mt + i
                for e in range(8):
                    k1, cp = 16 * t + 4 * g + e // 2, e % 2
                    if k1 > 40:
                        continue
                    th = 2 * PI * ((k1 * d1) % 80) / 80
                    if k1 in (0, 40):
                        v = np.cos(th) if cp == 0 else 0.0
                    else:
                        v = 2 * np.cos(th) if cp == 0 else -2 * np.sin(th)
                    T[mt, t, l, e] = v
    add_table('G80I', pack_bf16(T))


def prologue(k, need, early=None):
    k.I('s_load_dwordx2 s[4:5], s[0:1], 64')
    tmp = 32
    items = list(need.items())
    for n, (srd, (ko, nb)) in enumerate(items):
        k.I('s_load_dwordx2 s[%d:%d], s[0:1], %d' % (tmp + 2 * n, tmp + 2 * n + 1, ko))
    k.I('s_getpc_b64 s[6:7]')
    k.raw('    s_add_u32 s6, s6, tab_base@rel32@lo+4')
    k.raw('    s_addc_u32 s7, s7, tab_base@rel32@hi+12')
    k.I('s_mov_b32 s12, s6')
    k.I('s_and_b32 s13, s7, 0xffff')
    k.I('s_mov_b32 s14, %d' % TAB_BYTES)
    k.I('s_mov_b32 s15, 0x20000')
    if early is not None:
        early()
    k.wait_lgkm0()
    k.I('s_mov_b32 s8, s4')
    k.I('s_and_b32 s9, s5, 0xffff')
    k.I('s_mov_b32 s10, 0x%x' % WS_SIZE)
    k.I('s_mov_b32 s11, 0x20000')
    for n, (srd, (ko, nb)) in enumerate(items):
        b = int(srd[2:srd.index(':')])
        k.I('s_mov_b32 s%d, s%d' % (b, tmp + 2 * n))
        k.I('s_and_b32 s%d, s%d, 0xffff' % (b + 1, tmp + 2 * n + 1))
        k.I('s_mov_b32 s%d, %d' % (b + 2, nb))
        k.I('s_mov_b32 s%d, 0x20000' % (b + 3))


def xsum_g(k, reg, tmp):
    k.I('v_mov_b32 v%d, v%d' % (tmp, reg))
    k.I('v_permlane32_swap_b32 v%d, v%d' % (reg, tmp))
    k.I('v_add_f32 v%d, v%d, v%d' % (reg, reg, tmp))
    k.I('v_mov_b32 v%d, v%d' % (tmp, reg))
    k.I('v_permlane16_swap_b32 v%d, v%d' % (reg, tmp))
    k.I('v_add_f32 v%d, v%d, v%d' % (reg, reg, tmp))


def fwd_epilogue(k, X, T, G80, vP, vP0, vST, sbase, d2_soff_sgpr, statacc=None):
    sm, t1, mean, m2 = T, T + 1, T + 2, T + 3
    acc = T + 4
    B = T + 8
    Dm = T + 20
    k.I('v_pk_add_f32 v[%d:%d], v[%d:%d], v[%d:%d]' % (acc, acc + 1, X, X + 1, X + 2, X + 3))
    for q in range(2, 10):
        k.I('v_pk_add_f32 v[%d:%d], v[%d:%d], v[%d:%d]' % (acc, acc + 1, acc, acc + 1, X + 2 * q, X + 2 * q + 1))
    k.I('v_add_f32 v%d, v%d, v%d' % (sm, acc, acc + 1))
    xsum_g(k, sm, t1)
    k.I('v_mul_f32 v%d, 0x%x, v%d' % (mean, f32bits(1.0 / 80), sm))
    for q in range(10):
        k.I('v_pk_add_f32 v[%d:%d], v[%d:%d], v[%d:%d] op_sel_hi:[1,0] neg_lo:[0,1] neg_hi:[0,1]'
            % (X + 2 * q, X + 2 * q + 1, X + 2 * q, X + 2 * q + 1, mean, mean + 1))
    k.I('v_pk_mul_f32 v[%d:%d], v[%d:%d], v[%d:%d]' % (acc, acc + 1, X, X + 1, X, X + 1))
    for q in range(1, 10):
        k.I('v_pk_fma_f32 v[%d:%d], v[%d:%d], v[%d:%d], v[%d:%d]'
            % (acc, acc + 1, X + 2 * q, X + 2 * q + 1, X + 2 * q, X + 2 * q + 1, acc, acc + 1))
    k.I('v_add_f32 v%d, v%d, v%d' % (m2, acc, acc + 1))
    for q in range(10):
        k.I('v_cvt_pk_bf16_f32 v%d, v%d, v%d' % (B + q, X + 2 * q, X + 2 * q + 1))
    k.I('v_mov_b32 v%d, 0' % (B + 10))
    k.I('v_mov_b32 v%d, 0' % (B + 11))
    xsum_g(k, m2, t1)
    for mo in range(5):
        for t in range(3):
            c = '0' if t == 0 else 'v[%d:%d]' % (Dm + 4 * mo, Dm + 4 * mo + 3)
            k.I('v_mfma_f32_16x16x32_bf16 v[%d:%d], %s, v[%d:%d], %s'
                % (Dm + 4 * mo, Dm + 4 * mo + 3, G80(mo, t), B + 4 * t, B + 4 * t + 3, c))
    hi, lo = acc, acc + 1
    k.I('v_cvt_pk_bf16_f32 v%d, v%d, v%d' % (hi, sm, sm))
    k.I('v_and_b32 v%d, 0xffff0000, v%d' % (hi, hi))
    k.I('v_sub_f32 v%d, v%d, v%d' % (lo, sm, hi))
    k.I('v_cvt_pk_bf16_f32 v%d, v%d, v%d' % (hi, hi, lo))
    k.I('v_fmac_f32 v%d, v%d, v%d' % (m2, sm, mean))
    k.I('s_mov_b64 exec, 0xffff')
    k.I('buffer_store_dword v%d, v%d, %s, s%d offen' % (hi, vP, SRD_WS, d2_soff_sgpr))
    if statacc is None:
        k.I('buffer_atomic_add_f32 v%d, v%d, %s, s%d offen' % (sm, vST, SRD_WS, d2_soff_sgpr + 1))
        k.I('buffer_atomic_add_f32 v%d, v%d, %s, s%d offen offset:4' % (m2, vST, SRD_WS, d2_soff_sgpr + 1))
    k.I('s_mov_b64 exec, -1')
    if statacc is not None:
        k.I('v_add_f32 v%d, v%d, v%d' % (statacc, statacc, sm))
        k.I('v_add_f32 v%d, v%d, v%d' % (statacc + 1, statacc + 1, m2))
    for mo in range(5):
        for h in range(2):
            o = B + 2 * mo + h
            o = X + 2 * mo + h
            k.I('v_cvt_pk_bf16_f32 v%d, v%d, v%d' % (o, Dm + 4 * mo + 2 * h, Dm + 4 * mo + 2 * h + 1))
            k.I('s_add_u32 s%d, s%d, %d' % (sbase, d2_soff_sgpr, (8 * mo + h) * 65536))
            k.I('buffer_store_dword v%d, v%d, %s, s%d offen'
                % (o, vP0 if (mo == 0 and h == 0) else vP, SRD_WS, sbase))


def dma_table(k, tab_off, nchunks, lds_base, wave_s, vlane16, st):
    k.I('s_lshl_b32 s%d, s%d, 10' % (st, wave_s))
    k.I('s_add_u32 m0, s%d, %d' % (st, lds_base))
    k.I('s_add_u32 s%d, s%d, %d' % (st, st, tab_off))
    for i in range((nchunks + 3) // 4):
        if i:
            k.I('s_add_u32 m0, m0, 4096')
            k.I('s_add_u32 s%d, s%d, 4096' % (st, st))
        k.I('buffer_load_dwordx4 v%d, %s, s%d offen lds' % (vlane16, SRD_TAB, st))


def stub_kernel(name, main, sreg, value, target):
    k = Kernel(name)
    k.I('s_mov_b32 s%d, %d' % (sreg, value))
    k.I('s_branch %s' % target)
    k.main = main
    return k


def lane_ids(k, vj, vg, vw_s):
    k.I('v_and_b32 v%d, 15, v0' % vj)
    k.I('v_bfe_u32 v%d, v0, 4, 2' % vg)
    k.I('v_lshrrev_b32 v1, 6, v0')
    k.I('v_readfirstlane_b32 s%d, v1' % vw_s)


def gen_wprep(k, base):
    N1, N2 = 30, 30
    k.I('s_cmp_ge_u32 s2, %d' % (base + N1 + N2))
    k.I('s_cbranch_scc1 L_prep_end')
    prologue(k, {SRD_OUT: (32, D * F * 2), 's[40:43]': (40, F * D * 2)})
    SRD_W1, SRD_W2 = SRD_OUT, 's[40:43]'
    lane_ids(k, 2, 3, 44)
    k.I('v_and_b32 v4, 63, v0')
    k.I('v_lshlrev_b32 v8, 4, v4')
    k.I('s_mov_b32 s46, 0x05040100')
    k.I('s_mov_b32 s47, 0x07060302')
    k.I('s_lshl_b32 s59, s44, 14')
    k.I('v_lshrrev_b32 v9, 1, v2')
    k.I('v_lshlrev_b32 v9, 10, v9')
    k.I('v_and_b32 v10, 1, v2')
    k.I('v_lshl_add_u32 v9, v10, 7, v9')
    k.I('v_lshl_add_u32 v9, v3, 8, v9')
    k.I('v_add_u32 v9, s59, v9')
    k.I('v_add_u32 v10, s59, v8')

    def transpose8(R, O):
        for c in range(8):
            for kk in range(4):
                k.I('v_perm_b32 v%d, v%d, v%d, %s' % (O + 4 * c + kk, R + 4 * (2 * kk + 1) + c // 2,
                                                      R + 4 * (2 * kk) + c // 2, 's47' if c % 2 else 's46'))

    def via_lds(O, i, T):
        for c in range(8):
            k.I('ds_write_b128 v9, v[%d:%d] offset:%d' % (O + 4 * c, O + 4 * c + 3, 8192 * i + 16 * c))
        for q in range(8):
            k.I('ds_read_b128 v[%d:%d], v10 offset:%d' % (T + 4 * q, T + 4 * q + 3, 8192 * i + 1024 * q))
    k.I('s_cmp_ge_u32 s2, %d' % (base + N1))
    k.I('s_cbranch_scc1 L_prep_w2')
    k.I('s_sub_u32 s45, s2, %d' % base)
    k.I('s_lshl_b32 s45, s45, 2')
    k.I('s_add_u32 s45, s45, s44')
    k.I('s_lshl_b32 s45, s45, 1')
    k.I('v_mul_u32_u24 v5, %d, v3' % (32 * 3072))
    k.I('v_lshl_add_u32 v5, v2, 4, v5')
    for i in range(2):
        R = 16 + 32 * i
        k.I('s_add_u32 s56, s45, %d' % i)
        k.I('s_mul_i32 s57, s56, 43691')
        k.I('s_lshr_b32 s%d, s57, 19' % (60 + 2 * i))
        k.I('s_mul_i32 s58, s%d, 12' % (60 + 2 * i))
        k.I('s_sub_u32 s%d, s56, s58' % (61 + 2 * i))
        for e in range(8):
            k.I('s_lshl_b32 s50, s%d, 1' % (60 + 2 * i))
            k.I('s_add_u32 s50, s50, %d' % (e // 4))
            k.I('s_mul_i32 s51, s50, 13')
            k.I('s_lshr_b32 s51, s51, 6')
            k.I('s_mul_i32 s52, s51, 5')
            k.I('s_sub_u32 s52, s50, s52')
            k.I('s_lshl_b32 s52, s52, 7')
            k.I('s_add_u32 s52, s52, s51')
            k.I('s_add_u32 s52, s52, %d' % (8 * (e % 4)))
            k.I('s_mul_i32 s52, s52, 3072')
            k.I('s_lshl_b32 s53, s%d, 8' % (61 + 2 * i))
            k.I('s_add_u32 s52, s52, s53')
            k.I('buffer_load_dwordx4 v[%d:%d], v5, %s, s52 offen' % (R + 4 * e, R + 4 * e + 3, SRD_W1))
    for i in range(2):
        R, O, T = 16 + 32 * i, 80 + 32 * i, 144 + 32 * i
        transpose8(R, O)
        via_lds(O, i, T)
        k.I('s_mul_i32 s50, s%d, %d' % (61 + 2 * i, 8 * 20480))
        k.I('s_lshl_b32 s51, s%d, 10' % (60 + 2 * i))
        k.I('s_add_u32 s50, s50, s51')
        for q in range(8):
            k.I('s_add_u32 s51, s50, %d' % (WS_W1F + q * 20480))
            k.I('buffer_store_dwordx4 v[%d:%d], v8, %s, s51 offen %s' % (T + 4 * q, T + 4 * q + 3, SRD_WS, WT))
    k.I('s_endpgm')
    k.label('L_prep_w2')
    k.I('s_sub_u32 s45, s2, %d' % (base + N1))
    k.I('s_lshl_b32 s45, s45, 2')
    k.I('s_add_u32 s45, s45, s44')
    k.I('s_lshl_b32 s45, s45, 1')
    k.I('v_mul_u32_u24 v5, 5120, v3')
    k.I('v_lshl_add_u32 v5, v2, 4, v5')
    for i in range(2):
        R = 16 + 32 * i
        k.I('s_add_u32 s56, s45, %d' % i)
        k.I('s_mul_i32 s57, s56, 52429')
        k.I('s_lshr_b32 s%d, s57, 18' % (60 + 2 * i))
        k.I('s_mul_i32 s58, s%d, 5' % (60 + 2 * i))
        k.I('s_sub_u32 s%d, s56, s58' % (61 + 2 * i))
        for e in range(8):
            k.I('s_lshl_b32 s50, s%d, 5' % (60 + 2 * i))
            k.I('s_add_u32 s50, s50, %d' % (16 * (e // 4) + e % 4))
            k.I('s_mul_i32 s50, s50, 1280')
            k.I('s_lshl_b32 s53, s%d, 8' % (61 + 2 * i))
            k.I('s_add_u32 s50, s50, s53')
            k.I('buffer_load_dwordx4 v[%d:%d], v5, %s, s50 offen' % (R + 4 * e, R + 4 * e + 3, SRD_W2))
    for i in range(2):
        R, O, T = 16 + 32 * i, 80 + 32 * i, 144 + 32 * i
        transpose8(R, O)
        via_lds(O, i, T)
        k.I('s_mul_i32 s50, s%d, 49152' % (61 + 2 * i))
        k.I('s_lshl_b32 s51, s%d, 10' % (60 + 2 * i))
        k.I('s_add_u32 s50, s50, s51')
        for c in range(8):
            k.I('s_add_u32 s52, s50, %d' % (WS_W2FA + c * 245760))
            k.I('buffer_store_dwordx4 v[%d:%d], v8, %s, s52 offen %s' % (O + 4 * c, O + 4 * c + 3, SRD_WS, WT))
        k.I('s_mul_i32 s50, s%d, %d' % (61 + 2 * i, 8 * 49152))
        k.I('s_add_u32 s50, s50, s51')
        for q in range(8):
            k.I('s_add_u32 s52, s50, %d' % (WS_W2FB + q * 49152))
            k.I('buffer_store_dwordx4 v[%d:%d], v8, %s, s52 offen %s' % (T + 4 * q, T + 4 * q + 3, SRD_WS, WT))
    k.label('L_prep_end')
    k.I('s_endpgm')
    return N1 + N2


def gen_k1():
    k = Kernel('k1_kernel')
    NX, NW = 128, 256
    k.I('s_cmp_ge_u32 s2, %d' % (NX + NW))
    k.I('s_cbranch_scc1 %s' % ('L_k1_touch' if TOUCH else ('L_k1_prep' if PREP_IN_K1 else 'L_k1_end')))
    k.stamp()
    prologue(k, {SRD_A: (0, S * D * 2), SRD_B: (8, S * 321 * 2), SRD_C: (16, S * 321 * 2)})
    lane_ids(k, 2, 3, 44)
    k.I('s_mov_b32 s46, 0x05040100')
    k.I('s_mov_b32 s47, 0x07060302')
    k.I('s_cmp_ge_u32 s2, %d' % NX)
    k.I('s_cbranch_scc1 L_k1_w')
    k.I('s_lshl_b32 s45, s2, 4')
    k.I('v_add_u32 v4, s45, v2')
    XL = 512 + 16 * 1024
    R = 16
    k.I('s_mul_i32 s48, s2, 20480')
    k.I('v_lshlrev_b32 v5, 4, v0')
    for i in range(5):
        k.I('s_add_u32 s49, s48, %d' % (4096 * i))
        k.I('buffer_load_dwordx4 v[%d:%d], v5, %s, s49 offen' % (40 + 4 * i, 43 + 4 * i, SRD_A))
    k.I('v_and_b32 v6, 63, v0')
    k.I('v_lshlrev_b32 v6, 4, v6')
    dma_table(k, table_off['G80F'], 15, 512, 44, 6, 50)
    k.I('s_mov_b32 s48, 52429')
    for i in range(5):
        k.I('v_add_u32 v7, %d, v0' % (256 * i))
        k.I('v_mul_lo_u32 v8, v7, s48')
        k.I('v_lshrrev_b32 v8, 22, v8')
        k.I('v_lshlrev_b32 v7, 4, v7')
        k.I('v_lshl_add_u32 v7, v8, 4, v7')
        k.I('ds_write_b128 v7, v[%d:%d] offset:%d' % (40 + 4 * i, 43 + 4 * i, XL))
    k.stamp()
    k.wait_vm0()
    k.barrier()
    k.stamp()
    k.I('v_mul_u32_u24 v5, 1296, v2')
    k.I('v_lshl_add_u32 v5, v3, 6, v5')
    k.I('s_lshl_b32 s49, s44, 2')
    k.I('v_add_u32 v5, s49, v5')
    for mt in range(5):
        for r in range(4):
            k.I('ds_read_b32 v%d, v5 offset:%d' % (R + 4 * mt + r, XL + 256 * mt + 16 * r))
    for q in range(15):
        k.I('ds_read_b128 a[%d:%d], v6 offset:%d' % (4 * q, 4 * q + 3, 512 + 1024 * q))
    k.I('v_lshlrev_b32 v7, 2, v4')
    k.I('v_lshl_add_u32 v7, v3, 17, v7')
    k.I('v_mov_b32 v8, v7')
    k.I('v_cmp_eq_u32 vcc, 0, v3')
    k.I('v_add_u32 v9, %d, v7' % (40 * 65536))
    k.I('v_cndmask_b32 v8, v7, v9, vcc')
    k.I('v_lshlrev_b32 v9, 3, v4')
    k.I('v_mov_b32 v12, 0')
    k.I('v_mov_b32 v13, 0')
    k.I('v_lshlrev_b32 v10, 6, v4')
    k.I('v_lshl_add_u32 v10, v3, 4, v10')
    X, T, PK = 40, 64, 104
    k.I('s_mul_i32 s54, s44, %d' % (5 * 131072))
    k.I('s_add_u32 s54, s54, %d' % WS_XP)
    for mt in range(5):
        pk = PK + 4 * mt
        k.I('v_perm_b32 v%d, v%d, v%d, s46' % (pk, R + 4 * mt + 1, R + 4 * mt))
        k.I('v_perm_b32 v%d, v%d, v%d, s46' % (pk + 1, R + 4 * mt + 3, R + 4 * mt + 2))
        k.I('v_perm_b32 v%d, v%d, v%d, s47' % (pk + 2, R + 4 * mt + 1, R + 4 * mt))
        k.I('v_perm_b32 v%d, v%d, v%d, s47' % (pk + 3, R + 4 * mt + 3, R + 4 * mt + 2))
        k.I('s_add_u32 s55, s54, %d' % (mt * 131072))
        k.I('buffer_store_dwordx4 v[%d:%d], v10, %s, s55 offen %s' % (pk, pk + 3, SRD_WS, WT))
    k.stamp()
    for e in range(2):
        k.I('s_lshl_b32 s51, s44, 1')
        k.I('s_add_u32 s51, s51, %d' % e)
        k.I('s_lshl_b32 s52, s51, 13')
        k.I('s_add_u32 s52, s52, %d' % WS_P)
        for q in range(20):
            if e == 0:
                k.I('v_lshlrev_b32 v%d, 16, v%d' % (X + q, R + q))
            else:
                k.I('v_and_b32 v%d, 0xffff0000, v%d' % (X + q, R + q))
        fwd_epilogue(k, X, T, lambda mo, t: 'a[%d:%d]' % (4 * (3 * mo + t), 4 * (3 * mo + t) + 3),
                     7, 8, 9, 55, 52, statacc=12)
    k.stamp()
    k.I('s_lshl_b32 s51, s44, 7')
    k.I('v_lshl_add_u32 v14, v2, 3, s51')
    k.I('s_mov_b64 exec, 0xffff')
    k.I('ds_write_b64 v14, v[12:13]')
    k.I('s_mov_b64 exec, -1')
    k.barrier()
    k.I('s_cmp_eq_u32 s44, 0')
    k.I('s_cbranch_scc0 L_k1_xdone')
    k.I('v_lshlrev_b32 v14, 3, v2')
    for w in range(4):
        k.I('ds_read_b64 v[%d:%d], v14 offset:%d' % (16 + 2 * w, 17 + 2 * w, 128 * w))
    k.I('v_pk_add_f32 v[16:17], v[16:17], v[18:19]')
    k.I('v_pk_add_f32 v[20:21], v[20:21], v[22:23]')
    k.I('v_pk_add_f32 v[16:17], v[16:17], v[20:21]')
    k.I('v_mov_b32 v18, 0')
    k.I('v_mov_b32 v19, 0')
    k.I('s_mov_b32 s51, %d' % WS_ST)
    k.I('s_mov_b32 s52, %d' % WS_STB)
    k.I('s_mov_b64 exec, 0xffff')
    k.I('buffer_store_dwordx2 v[16:17], v9, %s, s51 offen' % SRD_WS)
    k.I('buffer_store_dwordx2 v[18:19], v9, %s, s52 offen' % SRD_WS)
    k.I('s_mov_b64 exec, -1')
    k.label('L_k1_xdone')
    k.stamp()
    k.wait_vm0()
    k.stamp_flush(0, 44, SRD_WS)
    k.nstamp = 1
    k.I('s_endpgm')
    k.label('L_k1_w')
    k.I('s_sub_u32 s45, s2, %d' % NX)
    k.I('s_lshr_b32 s48, s45, 5')
    k.I('s_and_b32 s49, s45, 31')
    k.I('s_lshl_b32 s49, s49, 2')
    k.I('s_add_u32 s49, s49, s44')
    k.I('s_lshr_b32 s50, s49, 6')
    k.I('s_and_b32 s51, s49, 63')
    k.I('s_and_b32 s52, s51, 15')
    k.I('s_lshr_b32 s53, s51, 4')
    k.I('s_lshl_b32 s54, s50, 4')
    k.I('s_add_u32 s54, s54, s52')
    k.I('s_lshl_b32 s55, s53, 9')
    k.I('s_add_u32 s54, s54, s55')
    k.I('v_and_b32 v4, 63, v0')
    k.I('s_mul_i32 s55, s48, 80')
    k.I('v_add_u32 v5, s55, v4')
    k.I('v_sub_u32 v6, 640, v5')
    k.I('s_cmp_lt_u32 s48, 4')
    k.I('s_cselect_b32 s56, 0, -1')
    k.I('s_cselect_b32 s57, 0, 0x80000000')
    k.I('v_mov_b32 v7, s56')
    k.I('v_cmp_eq_u32 vcc, 0, v7')
    k.I('v_cndmask_b32 v5, v6, v5, vcc')
    k.I('v_lshlrev_b32 v5, 1, v5')
    RE, IM, RE2, IM2 = 16, 32, 48, 64
    for mt in range(4):
        for r in range(4):
            q = 4 * mt + r
            k.I('s_add_u32 s58, s54, %d' % (32 * (4 * r + mt)))
            k.I('s_sub_u32 s59, 0, s58')
            k.I('s_and_b32 s59, s59, 2047')
            k.I('s_cmp_lt_u32 s48, 4')
            k.I('s_cselect_b32 s60, s58, s59')
            k.I('s_mul_i32 s60, s60, 642')
            k.I('buffer_load_ushort v%d, v5, %s, s60 offen' % (RE + q, SRD_B))
            k.I('buffer_load_ushort v%d, v5, %s, s60 offen' % (IM + q, SRD_C))
    k.stamp()
    k.I('s_and_b32 s61, s48, 3')
    k.I('s_cmp_eq_u32 s61, 0')
    k.I('s_cbranch_scc0 L_k1_w_nosym')
    for mt in range(4):
        for r in range(4):
            q = 4 * mt + r
            k.I('s_add_u32 s58, s54, %d' % (32 * (4 * r + mt)))
            k.I('s_sub_u32 s59, 0, s58')
            k.I('s_and_b32 s59, s59, 2047')
            k.I('s_cmp_lt_u32 s48, 4')
            k.I('s_cselect_b32 s60, s59, s58')
            k.I('s_mul_i32 s60, s60, 642')
            k.I('buffer_load_ushort v%d, v5, %s, s60 offen' % (RE2 + q, SRD_B))
            k.I('buffer_load_ushort v%d, v5, %s, s60 offen' % (IM2 + q, SRD_C))
    k.wait_vm0()
    k.I('s_mov_b64 exec, 1')
    for q in range(16):
        k.I('v_lshlrev_b32 v8, 16, v%d' % (RE + q))
        k.I('v_lshlrev_b32 v9, 16, v%d' % (RE2 + q))
        k.I('v_add_f32 v8, v8, v9')
        k.I('v_mul_f32 v8, 0.5, v8')
        k.I('v_lshlrev_b32 v10, 16, v%d' % (IM + q))
        k.I('v_lshlrev_b32 v9, 16, v%d' % (IM2 + q))
        k.I('v_sub_f32 v10, v10, v9')
        k.I('v_mul_f32 v10, 0.5, v10')
        k.I('v_cvt_pk_bf16_f32 v8, v8, v10')
        k.I('v_and_b32 v%d, 0xffff, v8' % (RE + q))
        k.I('v_lshrrev_b32 v%d, 16, v8' % (IM + q))
    k.I('s_mov_b64 exec, -1')
    k.label('L_k1_w_nosym')
    k.wait_vm0()
    k.stamp()
    for q in range(16):
        k.I('v_lshl_or_b32 v%d, v%d, 16, v%d' % (RE + q, IM + q, RE + q))
        k.I('v_xor_b32 v%d, s57, v%d' % (RE + q, RE + q))
    k.I('v_lshlrev_b32 v6, 16, v4')
    k.I('s_lshl_b32 s58, s48, 13')
    k.I('s_lshl_b32 s59, s49, 6')
    k.I('s_add_u32 s58, s58, s59')
    k.I('s_add_u32 s58, s58, %d' % WS_WC)
    k.I('v_cmp_gt_u32 vcc, 41, v4')
    k.I('s_and_saveexec_b64 s[62:63], vcc')
    for mt in range(4):
        k.I('buffer_store_dwordx4 v[%d:%d], v6, %s, s58 offen offset:%d' % (RE + 4 * mt, RE + 4 * mt + 3, SRD_WS, 16 * mt))
    k.stamp()
    k.wait_vm0()
    k.stamp_flush(0, 44, SRD_WS)
    k.nstamp = 1
    k.I('s_endpgm')

    k.label('L_k1_end')
    k.I('s_endpgm')
    if TOUCH:
        k.label('L_k1_touch')
        k.vm, k.lg = [], []
        NT = 64
        k.I('s_cmp_ge_u32 s2, %d' % (NX + NW + NT))
        k.I('s_cbranch_scc1 L_k1_end')
        k.I('s_getpc_b64 s[6:7]')
        k.out.append('L_k1_pc:')
        k.raw('    s_sub_u32 s8, s6, L_k1_pc-k1_kernel')
        k.raw('    s_subb_u32 s9, s7, 0')
        k.I('s_and_b32 s9, s9, 0xffff')
        k.raw('    s_mov_b32 s10, L_text_end-k1_kernel')
        k.I('s_mov_b32 s11, 0x20000')
        k.I('s_getpc_b64 s[6:7]')
        k.raw('    s_add_u32 s6, s6, tab_base@rel32@lo+4')
        k.raw('    s_addc_u32 s7, s7, tab_base@rel32@hi+12')
        k.I('s_mov_b32 s12, s6')
        k.I('s_and_b32 s13, s7, 0xffff')
        k.I('s_mov_b32 s14, %d' % TAB_BYTES)
        k.I('s_mov_b32 s15, 0x20000')
        k.I('s_sub_u32 s16, s2, %d' % (NX + NW))
        k.I('s_lshl_b32 s16, s16, 12')
        k.I('v_lshlrev_b32 v1, 4, v0')
        k.I('buffer_load_dwordx4 v[4:7], v1, s[8:11], s16 offen')
        k.I('buffer_load_dwordx4 v[8:11], v1, s[12:15], s16 offen')
        if TOUCH >= 2:
            k.I('s_load_dwordx4 s[20:23], s[0:1], 32')
            k.wait_lgkm0()
            for n, b in enumerate((24, 28)):
                k.I('s_mov_b32 s%d, s%d' % (b, 20 + 2 * n))
                k.I('s_and_b32 s%d, s%d, 0xffff' % (b + 1, 21 + 2 * n))
                k.I('s_mov_b32 s%d, %d' % (b + 2, D * F * 2))
                k.I('s_mov_b32 s%d, 0x20000' % (b + 3))
            k.I('s_lshl_b32 s17, s16, 3')
            for i in range(8):
                k.I('s_add_u32 s18, s17, %d' % (4096 * i))
                k.I('buffer_load_dwordx4 v[%d:%d], v1, s[24:27], s18 offen' % (12 + 8 * i, 15 + 8 * i))
                k.I('buffer_load_dwordx4 v[%d:%d], v1, s[28:31], s18 offen' % (16 + 8 * i, 19 + 8 * i))
        k.wait_vm0()
        k.I('s_endpgm')
        return k, NX + NW + NT, 512 + 16 * 1024 + 16 * 1296
    if PREP_IN_K1:
        k.label('L_k1_prep')
        k.vm, k.lg = [], []
        n = gen_wprep(k, NX + NW)
        return k, NX + NW + n, 65536
    return k, (NX + NW), 512 + 16 * 1024 + 16 * 1296


HEADER = '''; Kernarg layout for this problem (72 bytes, ptrs only, base s[0:1]):
'''


def build(kernels, launches):
    out = [HEADER.rstrip('\n')]
    for name, grid, lds in launches:
        out.append('; @launch kernel=%s grid=(%d,1,1) block=(256,1,1) lds=%d' % (name, grid, lds))
    out.append('.amdgcn_target "amdgcn-amd-amdhsa--gfx950"')
    out.append('.text')
    for k in kernels:
        out.append('.globl %s' % k.name)
        out.append('.p2align 8')
        out.append('.type %s,@function' % k.name)
        out.append('%s:' % k.name)
        out += k.out
    out.append('L_text_end:')
    out.append('.section .rodata,"a"')
    for k in kernels:
        if getattr(k, 'main', None) is not None:
            k.maxv, k.maxa, k.maxs = k.main.maxv, k.main.maxa, k.main.maxs
        nv = k.maxv + 1
        acc_off = (nv + 3) // 4 * 4
        nfv = acc_off + (k.maxa + 1) if k.maxa >= 0 else nv
        out.append('.p2align 6')
        out.append('.amdhsa_kernel %s' % k.name)
        out.append('  .amdhsa_next_free_vgpr %d' % nfv)
        out.append('  .amdhsa_next_free_sgpr %d' % max(k.maxs + 1, 16))
        out.append('  .amdhsa_accum_offset %d' % acc_off)
        out.append('  .amdhsa_group_segment_fixed_size 0')
        out.append('  .amdhsa_kernarg_size 72')
        out.append('  .amdhsa_user_sgpr_count 2')
        out.append('  .amdhsa_user_sgpr_kernarg_segment_ptr 1')
        out.append('  .amdhsa_system_sgpr_workgroup_id_x 1')
        out.append('  .amdhsa_float_denorm_mode_32 3')
        out.append('  .amdhsa_float_denorm_mode_16_64 3')
        out.append('.end_amdhsa_kernel')
    out.append('.p2align 8')
    out.append('tab_base:')
    for n, w in tables.items():
        out += emit_table('tab_' + n, w)
    return '\n'.join(out) + '\n'


make_tables()
TAB_BYTES = layout_tables()

if __name__ == '__main__':
    if len(sys.argv) > 2 and sys.argv[2] in ('diag', 'real'):
        Kernel.DIAG = True
        Kernel.REAL = sys.argv[2] == 'real'
    ks, launches = [], []
    k, g, l = gen_k1()
    ks.append(k)
    launches.append((k.name, g, l))
    try:
        from gen2 import more_kernels
        more_kernels(ks, launches)
    except ImportError:
        pass
    path = sys.argv[1] if len(sys.argv) > 1 else 'interleave_layers__spectral_gfnet__dense_activation_silu__prompt.s'
    open(path, 'w').write(build(ks, launches))
    print('wrote', path)
```

```python
import numpy as np
from asmlib import Kernel, f32bits
import gen as G
from gen import (prologue, lane_ids, xsum_g, fwd_epilogue, table_off, SRD_WS, SRD_TAB, SRD_A, SRD_B, SRD_C,
                 SRD_OUT, S, D, F)


def vr(b, n=4):
    return 'v[%d:%d]' % (b, b + n - 1)


def ar(b, n=4):
    return 'a[%d:%d]' % (b, b + n - 1)


def bf16_round2(k, a, b, tmp):
    k.I('v_cvt_pk_bf16_f32 v%d, v%d, v%d' % (tmp, a, b))
    k.I('v_lshlrev_b32 v%d, 16, v%d' % (a, tmp))
    k.I('v_and_b32 v%d, 0xffff0000, v%d' % (b, tmp))


def cmul_pk(k, xr, xi, tr, ti, o_r, o_i, conj=False):
    k.I('v_pk_mul_f32 %s, %s, %s' % (vr(o_r, 2), vr(xr, 2), vr(tr, 2)))
    if not conj:
        k.I('v_pk_mul_f32 %s, %s, %s' % (vr(o_i, 2), vr(xr, 2), vr(ti, 2)))
        k.I('v_pk_fma_f32 %s, %s, %s, %s neg_lo:[1,0,0] neg_hi:[1,0,0]' % (vr(o_r, 2), vr(xi, 2), vr(ti, 2), vr(o_r, 2)))
        k.I('v_pk_fma_f32 %s, %s, %s, %s' % (vr(o_i, 2), vr(xi, 2), vr(tr, 2), vr(o_i, 2)))
    else:
        k.I('v_pk_mul_f32 %s, %s, %s' % (vr(o_i, 2), vr(xi, 2), vr(tr, 2)))
        k.I('v_pk_fma_f32 %s, %s, %s, %s' % (vr(o_r, 2), vr(xi, 2), vr(ti, 2), vr(o_r, 2)))
        k.I('v_pk_fma_f32 %s, %s, %s, %s neg_lo:[1,0,0] neg_hi:[1,0,0]' % (vr(o_i, 2), vr(xr, 2), vr(ti, 2), vr(o_i, 2)))


MF = 'v_mfma_f32_16x16x32_bf16'
MF16 = 'v_mfma_f32_16x16x16_bf16'


def gen_c():
    k = Kernel('c1_kernel')
    k.I('s_cmp_ge_u32 s2, 192')
    k.I('s_cbranch_scc1 %s' % ('L_c_end' if G.PREP_IN_K1 else 'L_c_prep'))
    k.I('s_mov_b32 s60, %d' % G.WS_ST)
    k.out.append('L_c_body:')
    k.I('s_and_b32 s40, s2, 7')
    k.I('s_lshr_b32 s41, s2, 3')
    k.I('s_and_b32 s42, s41, 3')
    k.I('s_lshr_b32 s43, s41, 3')
    k.I('s_lshl_b32 s43, s43, 3')
    k.I('s_add_u32 s40, s40, s43')
    k.I('s_lshl_b32 s40, s40, 1')
    k.I('s_bfe_u32 s43, s41, 0x10002')
    k.I('s_add_u32 s40, s40, s43')
    k.I('s_cmp_ge_u32 s40, 41')
    k.I('s_cbranch_scc1 L_c_end')
    k.stamp()
    ST, TW, WW, AZ, TZ, RS, MB, DZ = 16, 144, 176, 192, 200, 202, 210, 218
    aP, aF32, aF64, aF32o = 0, 64, 88, 184
    TABL = 34816

    def early():
        lane_ids(k, 2, 3, 44)
        k.I('v_and_b32 v4, 63, v0')
        k.I('v_lshlrev_b32 v8, 4, v4')
        k.I('v_and_b32 v6, 3, v2')
        k.I('v_lshl_add_u32 v6, v6, 3, v3')
        k.I('v_lshlrev_b32 v6, 2, v6')
        k.I('s_lshl_b32 s48, s40, 3')
        k.I('s_lshl_b32 s49, s42, 1')
        k.I('s_add_u32 s48, s48, s49')
        k.I('s_lshl_b32 s49, s48, 6')
        k.I('s_add_u32 s49, s49, %d' % table_off['TZ'])
        k.I('buffer_load_dword v%d, v6, %s, s49 offen' % (TZ, SRD_TAB))
        k.I('buffer_load_dword v%d, v6, %s, s49 offen offset:16' % (TZ + 1, SRD_TAB))
    prologue(k, {}, early)
    k.I('v_lshl_add_u32 v7, v2, 2, v3')
    k.I('v_lshlrev_b32 v7, 3, v7')
    k.I('s_lshl_b32 s45, s44, 12')
    k.I('v_add_u32 v7, s45, v7')
    for e in range(8):
        k.I('buffer_load_dwordx2 %s, v7, %s, s60 offen offset:%d' % (vr(ST + 2 * e, 2), SRD_WS, 512 * e))
    k.I('v_lshlrev_b32 v5, 13, v3')
    k.I('v_lshl_add_u32 v5, v2, 4, v5')
    k.I('s_lshl_b32 s45, s44, 11')
    k.I('v_add_u32 v5, s45, v5')
    k.I('s_lshl_b32 s46, s40, 16')
    k.I('s_add_u32 s46, s46, %d' % G.WS_P)
    k.I('s_add_u32 s47, s46, 32768')
    for e in range(8):
        for h2 in range(2):
            k.I('buffer_load_dwordx4 %s, v5, %s, s%d offen offset:%d' % (ar(aP + 8 * e + 4 * h2), SRD_WS, 46 + h2, 256 * e))
    k.I('s_and_b32 s51, s44, 1')
    assert table_off['F64'] == table_off['F32'] + 6144 and table_off['TW'] == table_off['F64'] + 24576
    G.dma_table(k, table_off['F32'], 46, TABL, 44, 8, 52)
    dma_mark = k.mark()
    k.I('v_lshlrev_b32 v9, 6, v4')
    k.I('s_lshl_b32 s52, s48, 13')
    k.I('s_lshl_b32 s53, s44, 12')
    k.I('s_add_u32 s52, s52, s53')
    k.I('s_add_u32 s52, s52, %d' % G.WS_WC)
    for mt in range(4):
        k.I('buffer_load_dwordx4 %s, v9, %s, s52 offen offset:%d' % (vr(WW + 4 * mt), SRD_WS, 16 * mt))
    k.I('s_or_b32 s53, s40, s42')
    k.I('s_or_b32 s53, s53, s44')
    k.I('s_cmp_eq_u32 s53, 0')
    k.I('s_cselect_b32 s54, -1, 0')
    k.I('s_mov_b32 s55, 0')
    k.I('v_lshlrev_b32 v6, 8, v4')
    k.I('v_mov_b32 v7, 0')
    k.I('s_mov_b32 s53, %d' % G.WS_CNT)
    k.I('s_mov_b64 exec, s[54:55]')
    k.I('buffer_store_dword v7, v6, %s, s53 offen' % SRD_WS)
    k.I('s_mov_b64 exec, -1')
    k.stamp()
    k.I('v_lshrrev_b32 v10, 2, v2')
    for m in range(4):
        k.I('v_cmp_eq_u32 vcc, %d, v10' % m)
        k.I('v_cndmask_b32 v%d, 0, v%d, vcc' % (AZ + m, TZ))
        k.I('v_cndmask_b32 v%d, 0, v%d, vcc' % (AZ + 4 + m, TZ + 1))
    k.stamp()
    k.I('s_or_b32 s53, s40, s42')
    k.I('s_cmp_eq_u32 s53, 0')
    k.I('s_cselect_b32 s53, 0x%x, 0' % f32bits(-640.0))
    k.I('s_mov_b32 s54, 0x%x' % f32bits(1.0 / 640))
    k.I('s_mov_b32 s55, s54')
    for e in range(8):
        b = ST + 2 * e
        k.I('v_pk_mul_f32 %s, %s, s[54:55]' % (vr(b, 2), vr(b, 2)))
        k.I('v_fma_f32 v%d, -v%d, v%d, v%d' % (b + 1, b, b, b + 1))
        bf16_round2(k, b, b + 1, 13)
        k.I('v_mov_b32 v%d, v%d' % (MB + e, b))
        k.I('v_add_f32 v%d, 0x%x, v%d' % (b + 1, f32bits(1e-5), b + 1))
    for e in range(0, 8, 2):
        b = ST + 2 * e
        bf16_round2(k, b + 1, b + 3, 13)
        k.I('v_sqrt_f32 v%d, v%d' % (b + 1, b + 1))
        k.I('v_sqrt_f32 v%d, v%d' % (b + 3, b + 3))
        bf16_round2(k, b + 1, b + 3, 13)
        k.I('v_rcp_f32 v%d, v%d' % (b + 1, b + 1))
        k.I('v_rcp_f32 v%d, v%d' % (b + 3, b + 3))
        k.I('v_mul_f32 v%d, 0x%x, v%d' % (RS + e, f32bits(1.0 / (S * D)), b + 1))
        k.I('v_mul_f32 v%d, 0x%x, v%d' % (RS + e + 1, f32bits(1.0 / (S * D)), b + 3))
    k.stamp()
    for e in range(8):
        k.I('%s %s, %s, %s, 0' % (MF, vr(DZ + 4 * e), vr(AZ), ar(aP + 8 * e)))
        k.I('%s %s, %s, %s, %s' % (MF, vr(DZ + 4 * e), vr(AZ + 4), ar(aP + 8 * e + 4), vr(DZ + 4 * e)))
    for e in range(8):
        k.I('v_fmac_f32 v%d, s53, v%d' % (DZ + 4 * e, MB + e))
        rs = RS + e
        if rs % 2 == 0:
            src, sel = vr(rs, 2), 'op_sel:[0,0] op_sel_hi:[1,0]'
        else:
            src, sel = vr(rs - 1, 2), 'op_sel:[0,1] op_sel_hi:[1,1]'
        k.I('v_pk_mul_f32 %s, %s, %s %s' % (vr(DZ + 4 * e, 2), vr(DZ + 4 * e, 2), src, sel))
        k.I('v_pk_mul_f32 %s, %s, %s %s' % (vr(DZ + 4 * e + 2, 2), vr(DZ + 4 * e + 2, 2), src, sel))
    ZF = 16
    for arr in range(4):
        for h in range(4):
            k.I('v_cvt_pk_bf16_f32 v%d, v%d, v%d' % (ZF + 4 * arr + h, DZ + 8 * h + arr, DZ + 8 * h + 4 + arr))
    k.I('v_lshlrev_b32 v10, 10, v3')
    k.I('v_lshl_add_u32 v10, v2, 4, v10')
    k.I('s_lshl_b32 s45, s44, 8')
    k.I('v_add_u32 v10, s45, v10')
    for arr in range(4):
        k.I('ds_write_b128 v10, %s offset:%d' % (vr(ZF + 4 * arr), 4096 * arr))
    k.wait_mark(dma_mark)
    k.barrier()
    k.stamp()
    k.I('s_mul_i32 s52, s51, 3072')
    k.I('v_add_u32 v11, s52, v8')
    for var in range(3):
        k.I('ds_read_b128 %s, v11 offset:%d' % (ar(aF32o + 4 * var), TABL + 1024 * var))
    AF, D1, TMP, B3, D3 = 32, 64, 96, 128, 218
    k.I('s_lshr_b32 s45, s44, 1')
    k.I('s_lshl_b32 s45, s45, 13')
    k.I('v_add_u32 v10, s45, v8')
    for c in range(2):
        for m in range(4):
            k.I('ds_read_b128 %s, v10 offset:%d' % (vr(AF + 16 * c + 4 * m), 4096 * c + 1024 * m))
    k.I('s_lshl_b32 s52, s51, 13')
    k.I('s_add_u32 s52, s52, %d' % (TABL + 30720))
    k.I('v_add_u32 v11, s52, v8')
    for c in range(2):
        for m in range(4):
            k.I('ds_read_b128 %s, v11 offset:%d' % (vr(TW + 16 * c + 4 * m), 4096 * c + 1024 * m))
    Fr, Fi, Fn = ar(aF32o), ar(aF32o + 4), ar(aF32o + 8)
    for q in range(24):
        k.I('ds_read_b128 %s, v8 offset:%d' % (ar(aF64 + 4 * q), TABL + 6144 + 1024 * q))
    for q in range(6):
        k.I('ds_read_b128 %s, v8 offset:%d' % (ar(aF32 + 4 * q), TABL + 1024 * q))

    def f64(var, mt, t):
        return ar(aF64 + 4 * ((var * 4 + mt) * 2 + t))

    def weave(mf, fill):
        fi = 0
        for n, m_ in enumerate(mf):
            k.I(m_)
            tgt = len(fill) * (n + 1) // len(mf)
            while fi < tgt:
                k.I(fill[fi])
                fi += 1

    def cmul_ops(xr, xi, tr, ti, o_r, o_i, conj):
        ops = []
        for r in range(4):
            ops.append('v_mul_f32 v%d, v%d, v%d' % (o_r + r, xr + r, tr + r))
            if not conj:
                ops.append('v_mul_f32 v%d, v%d, v%d' % (o_i + r, xr + r, ti + r))
                ops.append('v_fma_f32 v%d, -v%d, v%d, v%d' % (o_r + r, xi + r, ti + r, o_r + r))
                ops.append('v_fmac_f32 v%d, v%d, v%d' % (o_i + r, xi + r, tr + r))
            else:
                ops.append('v_mul_f32 v%d, v%d, v%d' % (o_i + r, xi + r, tr + r))
                ops.append('v_fmac_f32 v%d, v%d, v%d' % (o_r + r, xi + r, ti + r))
                ops.append('v_fma_f32 v%d, -v%d, v%d, v%d' % (o_i + r, xr + r, ti + r, o_i + r))
        return ops

    def pack_ops(Bd, m):
        return ['v_cvt_pk_bf16_f32 v%d, v%d, v%d' % (Bd + 8 * c + 2 * m + h, TMP + 16 * c + 4 * m + 2 * h,
                                                     TMP + 16 * c + 4 * m + 2 * h + 1) for c in range(2) for h in range(2)]
    WR, WI, B5, D5 = 16, 192, 32, 64

    def g1(m):
        return ['%s %s, %s, %s, 0' % (MF, vr(D1 + 4 * m), vr(AF + 4 * m), Fr),
                '%s %s, %s, %s, 0' % (MF, vr(D1 + 16 + 4 * m), vr(AF + 4 * m), Fi),
                '%s %s, %s, %s, %s' % (MF, vr(D1 + 4 * m), vr(AF + 16 + 4 * m), Fn, vr(D1 + 4 * m)),
                '%s %s, %s, %s, %s' % (MF, vr(D1 + 16 + 4 * m), vr(AF + 16 + 4 * m), Fr, vr(D1 + 16 + 4 * m))]

    def g64(Dd, Bb, conj, mt, t):
        vi, vn = (1, 2) if not conj else (2, 1)
        cr = '0' if t == 0 else vr(Dd + 4 * mt)
        ci = '0' if t == 0 else vr(Dd + 16 + 4 * mt)
        return ['%s %s, %s, %s, %s' % (MF, vr(Dd + 4 * mt), f64(0, mt, t), vr(Bb + 4 * t), cr),
                '%s %s, %s, %s, %s' % (MF, vr(Dd + 16 + 4 * mt), f64(0, mt, t), vr(Bb + 8 + 4 * t), ci),
                '%s %s, %s, %s, %s' % (MF, vr(Dd + 4 * mt), f64(vn, mt, t), vr(Bb + 8 + 4 * t), vr(Dd + 4 * mt)),
                '%s %s, %s, %s, %s' % (MF, vr(Dd + 16 + 4 * mt), f64(vi, mt, t), vr(Bb + 4 * t), vr(Dd + 16 + 4 * mt))]

    def T(m):
        return cmul_ops(D1 + 4 * m, D1 + 16 + 4 * m, TW + 4 * m, TW + 16 + 4 * m, TMP + 4 * m, TMP + 16 + 4 * m, False) + pack_ops(B3, m)

    def W(m):
        return cmul_ops(D3 + 4 * m, D3 + 16 + 4 * m, WR + 4 * m, WI + 4 * m, TMP + 4 * m, TMP + 16 + 4 * m, False) + pack_ops(B5, m)

    def Tc(m):
        return cmul_ops(D5 + 4 * m, D5 + 16 + 4 * m, TW + 4 * m, TW + 16 + 4 * m, TMP + 4 * m, TMP + 16 + 4 * m, True)
    wun = []
    for q in range(16):
        wun += ['v_lshlrev_b32 v%d, 16, v%d' % (WR + q, WW + q), 'v_and_b32 v%d, 0xffff0000, v%d' % (WI + q, WW + q)]
    weave(g1(0) + g1(1), wun)
    weave(g1(2), T(0))
    weave(g1(3), T(1))
    k.stamp()
    weave(sum([g64(D3, B3, False, mt, 0) for mt in range(4)], []), T(2) + T(3))
    weave(g64(D3, B3, False, 0, 1) + g64(D3, B3, False, 1, 1), [])
    weave(g64(D3, B3, False, 2, 1), W(0))
    weave(g64(D3, B3, False, 3, 1), W(1))
    k.stamp()
    weave(sum([g64(D5, B5, True, mt, 0) for mt in range(4)], []), W(2) + W(3))
    weave(g64(D5, B5, True, 0, 1) + g64(D5, B5, True, 1, 1), [])
    weave(g64(D5, B5, True, 2, 1), Tc(0))
    weave(g64(D5, B5, True, 3, 1), Tc(1))
    for op in Tc(2) + Tc(3):
        k.I(op)
    L2 = 128
    for c in range(2):
        for r in range(4):
            for mp in range(2):
                k.I('v_cvt_pk_bf16_f32 v%d, v%d, v%d' % (L2 + 8 * c + 2 * r + mp, TMP + 16 * c + 4 * (2 * mp) + r,
                                                         TMP + 16 * c + 4 * (2 * mp + 1) + r))
    LB2, ARR2 = 16384, 4608
    k.I('s_lshr_b32 s45, s44, 1')
    k.I('s_mul_i32 s45, s45, %d' % (2 * ARR2))
    k.I('s_mul_i32 s46, s51, %d' % (16 * 144))
    k.I('s_add_u32 s45, s45, s46')
    k.I('s_add_u32 s45, s45, %d' % LB2)
    k.I('v_mul_u32_u24 v10, 144, v2')
    k.I('v_lshl_add_u32 v10, v3, 5, v10')
    k.I('v_add_u32 v10, s45, v10')
    for c in range(2):
        for h in range(2):
            k.I('ds_write_b128 v10, %s offset:%d' % (vr(L2 + 8 * c + 4 * h), ARR2 * c + 16 * h))
    k.barrier()
    k.stamp()
    k.I('v_lshrrev_b32 v10, 2, v2')
    k.I('v_lshl_add_u32 v10, v3, 3, v10')
    k.I('v_mul_u32_u24 v10, 144, v10')
    k.I('v_and_b32 v11, 3, v2')
    k.I('v_lshl_add_u32 v10, v11, 3, v10')
    k.I('s_lshl_b32 s45, s44, 5')
    k.I('s_add_u32 s45, s45, %d' % LB2)
    k.I('v_add_u32 v10, s45, v10')
    B7 = 32
    for arr in range(4):
        for h in range(2):
            k.I('ds_read_b64_tr_b16 %s, v10 offset:%d' % (vr(B7 + 4 * arr + 2 * h, 2), ARR2 * arr + 576 * h))
    D7 = 64

    def f32(tile, var):
        return ar(aF32 + 4 * (3 * tile + var))
    for col in range(2):
        for mt in range(2):
            dr, di = D7 + 16 * col + 4 * mt, D7 + 16 * col + 8 + 4 * mt
            br, bi = B7 + 8 * col, B7 + 8 * col + 4
            k.I('%s %s, %s, %s, 0' % (MF, vr(dr), f32(mt, 0), vr(br)))
            k.I('%s %s, %s, %s, 0' % (MF, vr(di), f32(mt, 0), vr(bi)))
            k.I('%s %s, %s, %s, %s' % (MF, vr(dr), f32(mt, 1), vr(bi), vr(dr)))
            k.I('%s %s, %s, %s, %s' % (MF, vr(di), f32(mt, 2), vr(br), vr(di)))
    k.I('v_lshl_add_u32 v10, v3, 8, v2')
    k.I('s_lshl_b32 s45, s44, 4')
    k.I('v_add_u32 v10, s45, v10')
    k.I('v_lshlrev_b32 v10, 4, v10')
    k.I('s_lshr_b32 s45, s40, 1')
    k.I('s_lshl_b32 s45, s45, 2')
    k.I('s_add_u32 s45, s45, s42')
    k.I('s_lshl_b32 s45, s45, 15')
    k.I('s_and_b32 s46, s40, 1')
    k.I('s_lshl_b32 s46, s46, 3')
    k.I('s_add_u32 s45, s45, s46')
    k.I('s_add_u32 s45, s45, %d' % G.WS_ZP)
    k.I('s_add_u32 s46, s45, 16384')
    O = 96
    for mt in range(2):
        for r in range(4):
            o = O + 2 * (4 * mt + r)
            for col in range(2):
                k.I('v_cvt_pk_bf16_f32 v%d, v%d, v%d' % (o + col, D7 + 16 * col + 4 * mt + r, D7 + 16 * col + 8 + 4 * mt + r))
            k.I('buffer_store_dwordx2 %s, v10, %s, s%d offen offset:%d' % (vr(o, 2), SRD_WS, 45 + mt, 1024 * r))
    k.stamp()
    k.wait_vm0()
    k.stamp_flush(1, 44, SRD_WS)
    k.label('L_c_end')
    k.I('s_endpgm')
    nprep = 0
    if not G.PREP_IN_K1:
        k.label('L_c_prep')
        k.vm, k.lg = [], []
        nprep = G.gen_wprep(k, 192)
    return k, 192, TABL + 48 * 1024, nprep


def gen_c8():
    k = Kernel('c1_kernel')
    k.lgw = 3
    k.I('s_cmp_ge_u32 s2, 192')
    k.I('s_cbranch_scc1 %s' % ('L_c_end' if G.PREP_IN_K1 else 'L_c_prep'))
    k.I('s_mov_b32 s60, %d' % G.WS_ST)
    k.out.append('L_c_body:')
    k.I('s_and_b32 s40, s2, 7')
    k.I('s_lshr_b32 s41, s2, 3')
    k.I('s_and_b32 s42, s41, 3')
    k.I('s_lshr_b32 s43, s41, 3')
    k.I('s_lshl_b32 s43, s43, 3')
    k.I('s_add_u32 s40, s40, s43')
    k.I('s_lshl_b32 s40, s40, 1')
    k.I('s_bfe_u32 s43, s41, 0x10002')
    k.I('s_add_u32 s40, s40, s43')
    k.I('s_cmp_ge_u32 s40, 41')
    k.I('s_cbranch_scc1 L_c_end')
    k.stamp()
    ST, TW, WW, AZ, TZ, RS, MB, DZ = 16, 24, 40, 48, 56, 58, 62, 68
    aP, aF64, aF32o, aF7 = 0, 0, 48, 60
    TABL = 34816
    EX1 = TABL + 48 * 1024
    EX2 = EX1 + 32768

    def early():
        lane_ids(k, 2, 3, 44)
        k.I('v_and_b32 v4, 63, v0')
        k.I('v_lshlrev_b32 v8, 4, v4')
        k.I('v_and_b32 v6, 3, v2')
        k.I('v_lshl_add_u32 v6, v6, 3, v3')
        k.I('v_lshlrev_b32 v6, 2, v6')
        k.I('s_lshl_b32 s48, s40, 3')
        k.I('s_lshl_b32 s49, s42, 1')
        k.I('s_add_u32 s48, s48, s49')
        k.I('s_lshl_b32 s49, s48, 6')
        k.I('s_add_u32 s49, s49, %d' % table_off['TZ'])
        k.I('buffer_load_dword v%d, v6, %s, s49 offen' % (TZ, SRD_TAB))
        k.I('buffer_load_dword v%d, v6, %s, s49 offen offset:16' % (TZ + 1, SRD_TAB))
    prologue(k, {}, early)
    k.I('s_lshr_b32 s56, s44, 2')
    k.I('s_bfe_u32 s51, s44, 0x10001')
    k.I('s_and_b32 s57, s44, 1')
    k.I('v_lshl_add_u32 v7, v2, 2, v3')
    k.I('v_lshlrev_b32 v7, 3, v7')
    k.I('s_lshl_b32 s45, s44, 11')
    k.I('v_add_u32 v7, s45, v7')
    for e in range(4):
        k.I('buffer_load_dwordx2 %s, v7, %s, s60 offen offset:%d' % (vr(ST + 2 * e, 2), SRD_WS, 512 * e))
    k.I('v_lshlrev_b32 v5, 13, v3')
    k.I('v_lshl_add_u32 v5, v2, 4, v5')
    k.I('s_lshl_b32 s45, s44, 10')
    k.I('v_add_u32 v5, s45, v5')
    k.I('s_lshl_b32 s46, s40, 16')
    k.I('s_add_u32 s46, s46, %d' % G.WS_P)
    k.I('s_add_u32 s47, s46, 32768')
    for e in range(4):
        for h2 in range(2):
            k.I('buffer_load_dwordx4 %s, v5, %s, s%d offen offset:%d' % (ar(aP + 8 * e + 4 * h2), SRD_WS, 46 + h2, 256 * e))
    G.dma_table(k, table_off['F32'], 46, TABL, 44, 8, 52, nw=8)
    dma_mark = k.mark()
    k.I('v_lshlrev_b32 v9, 6, v4')
    k.I('s_lshl_b32 s52, s48, 13')
    k.I('s_lshr_b32 s53, s44, 1')
    k.I('s_lshl_b32 s53, s53, 12')
    k.I('s_add_u32 s52, s52, s53')
    k.I('s_lshl_b32 s53, s57, 5')
    k.I('s_add_u32 s52, s52, s53')
    k.I('s_add_u32 s52, s52, %d' % G.WS_WC)
    for l in range(2):
        k.I('buffer_load_dwordx4 %s, v9, %s, s52 offen offset:%d' % (vr(WW + 4 * l), SRD_WS, 16 * l))
    k.I('s_or_b32 s53, s40, s42')
    k.I('s_or_b32 s53, s53, s44')
    k.I('s_cmp_eq_u32 s53, 0')
    k.I('s_cselect_b32 s54, -1, 0')
    k.I('s_mov_b32 s55, 0')
    k.I('v_lshlrev_b32 v6, 8, v4')
    k.I('v_mov_b32 v7, 0')
    k.I('s_mov_b32 s53, %d' % G.WS_CNT)
    k.I('s_mov_b64 exec, s[54:55]')
    k.I('buffer_store_dword v7, v6, %s, s53 offen' % SRD_WS)
    k.I('s_mov_b64 exec, -1')
    k.stamp()
    k.I('v_lshrrev_b32 v10, 2, v2')
    for m in range(4):
        k.I('v_cmp_eq_u32 vcc, %d, v10' % m)
        k.I('v_cndmask_b32 v%d, 0, v%d, vcc' % (AZ + m, TZ))
        k.I('v_cndmask_b32 v%d, 0, v%d, vcc' % (AZ + 4 + m, TZ + 1))
    k.I('s_or_b32 s53, s40, s42')
    k.I('s_cmp_eq_u32 s53, 0')
    k.I('s_cselect_b32 s53, 0x%x, 0' % f32bits(-640.0))
    k.I('s_mov_b32 s54, 0x%x' % f32bits(1.0 / 640))
    for e in range(4):
        b = ST + 2 * e
        k.I('v_mul_f32 v%d, s54, v%d' % (b, b))
        k.I('v_mul_f32 v%d, s54, v%d' % (b + 1, b + 1))
        k.I('v_fma_f32 v%d, -v%d, v%d, v%d' % (b + 1, b, b, b + 1))
        bf16_round2(k, b, b + 1, 13)
        k.I('v_mov_b32 v%d, v%d' % (MB + e, b))
        k.I('v_add_f32 v%d, 0x%x, v%d' % (b + 1, f32bits(1e-5), b + 1))
    for e in range(0, 4, 2):
        b = ST + 2 * e
        bf16_round2(k, b + 1, b + 3, 13)
        k.I('v_sqrt_f32 v%d, v%d' % (b + 1, b + 1))
        k.I('v_sqrt_f32 v%d, v%d' % (b + 3, b + 3))
        bf16_round2(k, b + 1, b + 3, 13)
        k.I('v_rcp_f32 v%d, v%d' % (b + 1, b + 1))
        k.I('v_rcp_f32 v%d, v%d' % (b + 3, b + 3))
        k.I('v_mul_f32 v%d, 0x%x, v%d' % (RS + e, f32bits(1.0 / (S * D)), b + 1))
        k.I('v_mul_f32 v%d, 0x%x, v%d' % (RS + e + 1, f32bits(1.0 / (S * D)), b + 3))
    k.stamp()
    for e in range(4):
        k.I('%s %s, %s, %s, 0' % (MF, vr(DZ + 4 * e), vr(AZ), ar(aP + 8 * e)))
        k.I('%s %s, %s, %s, %s' % (MF, vr(DZ + 4 * e), vr(AZ + 4), ar(aP + 8 * e + 4), vr(DZ + 4 * e)))
    for e in range(4):
        k.I('v_fmac_f32 v%d, s53, v%d' % (DZ + 4 * e, MB + e))
        for a_ in range(4):
            k.I('v_mul_f32 v%d, v%d, v%d' % (DZ + 4 * e + a_, DZ + 4 * e + a_, RS + e))
    ZF = 16
    for arr in range(4):
        for h in range(2):
            k.I('v_cvt_pk_bf16_f32 v%d, v%d, v%d' % (ZF + 2 * arr + h, DZ + 8 * h + arr, DZ + 8 * h + 4 + arr))
    k.I('v_lshlrev_b32 v10, 10, v3')
    k.I('v_lshl_add_u32 v10, v2, 4, v10')
    k.I('s_lshr_b32 s45, s44, 1')
    k.I('s_lshl_b32 s45, s45, 8')
    k.I('s_lshl_b32 s46, s57, 3')
    k.I('s_add_u32 s45, s45, s46')
    k.I('v_add_u32 v10, s45, v10')
    for arr in range(4):
        k.I('ds_write_b64 v10, %s offset:%d' % (vr(ZF + 2 * arr, 2), 4096 * arr))
    k.wait_mark(dma_mark)
    k.barrier()
    k.stamp()
    AF, D1, TMP, BB, DP, RX = 84, 100, 116, 132, 140, 100
    WR, WI = 16, 48
    k.I('s_mul_i32 s52, s51, 3072')
    k.I('v_add_u32 v11, s52, v8')
    for var in range(3):
        k.I('ds_read_b128 %s, v11 offset:%d' % (ar(aF32o + 4 * var), TABL + 1024 * var))
    k.I('s_lshl_b32 s45, s56, 13')
    k.I('s_lshl_b32 s46, s57, 11')
    k.I('s_add_u32 s45, s45, s46')
    k.I('v_add_u32 v10, s45, v8')
    for c in range(2):
        for l in range(2):
            k.I('ds_read_b128 %s, v10 offset:%d' % (vr(AF + 8 * c + 4 * l), 4096 * c + 1024 * l))
    k.I('s_lshl_b32 s52, s51, 13')
    k.I('s_add_u32 s52, s52, s46')
    k.I('s_add_u32 s52, s52, %d' % (TABL + 30720))
    k.I('v_add_u32 v11, s52, v8')
    for c in range(2):
        for l in range(2):
            k.I('ds_read_b128 %s, v11 offset:%d' % (vr(TW + 8 * c + 4 * l), 4096 * c + 1024 * l))
    k.I('s_mul_i32 s52, s57, 5120')
    k.I('s_add_u32 s52, s52, %d' % (TABL + 6144))
    k.I('v_add_u32 v11, s52, v8')
    k.I('s_mul_i32 s52, s57, 3072')
    k.I('s_sub_u32 s52, %d, s52' % (TABL + 6144 + 4096))
    k.I('v_add_u32 v12, s52, v8')
    for var in range(3):
        for l in range(4):
            k.I('ds_read_b128 %s, v%d offset:%d' % (ar(aF64 + 4 * (4 * var + l)), 11 if l < 2 else 12, 8192 * var + 2048 * (l % 2)))
    k.I('s_mul_i32 s52, s56, 3072')
    k.I('v_add_u32 v11, s52, v8')
    for var in range(3):
        k.I('ds_read_b128 %s, v11 offset:%d' % (ar(aF7 + 4 * var), TABL + 1024 * var))
    Fr, Fi, Fn = ar(aF32o), ar(aF32o + 4), ar(aF32o + 8)

    def cmul(xr, xi, tr, ti, o_r, o_i, conj):
        for r in range(4):
            k.I('v_mul_f32 v%d, v%d, v%d' % (o_r + r, xr + r, tr + r))
            if not conj:
                k.I('v_mul_f32 v%d, v%d, v%d' % (o_i + r, xr + r, ti + r))
                k.I('v_fma_f32 v%d, -v%d, v%d, v%d' % (o_r + r, xi + r, ti + r, o_r + r))
                k.I('v_fmac_f32 v%d, v%d, v%d' % (o_i + r, xi + r, tr + r))
            else:
                k.I('v_mul_f32 v%d, v%d, v%d' % (o_i + r, xi + r, tr + r))
                k.I('v_fmac_f32 v%d, v%d, v%d' % (o_r + r, xi + r, ti + r))
                k.I('v_fma_f32 v%d, -v%d, v%d, v%d' % (o_i + r, xr + r, ti + r, o_i + r))

    def packB():
        for c in range(2):
            for l in range(2):
                for h in range(2):
                    k.I('v_cvt_pk_bf16_f32 v%d, v%d, v%d' % (BB + 4 * c + 2 * l + h, TMP + 8 * c + 4 * l + 2 * h, TMP + 8 * c + 4 * l + 2 * h + 1))
    for l in range(2):
        k.I('%s %s, %s, %s, 0' % (MF, vr(D1 + 4 * l), vr(AF + 4 * l), Fr))
        k.I('%s %s, %s, %s, 0' % (MF, vr(D1 + 8 + 4 * l), vr(AF + 4 * l), Fi))
        k.I('%s %s, %s, %s, %s' % (MF, vr(D1 + 4 * l), vr(AF + 8 + 4 * l), Fn, vr(D1 + 4 * l)))
        k.I('%s %s, %s, %s, %s' % (MF, vr(D1 + 8 + 4 * l), vr(AF + 8 + 4 * l), Fr, vr(D1 + 8 + 4 * l)))
    for q in range(8):
        k.I('v_lshlrev_b32 v%d, 16, v%d' % (WR + q, WW + q))
        k.I('v_and_b32 v%d, 0xffff0000, v%d' % (WI + q, WW + q))
    k.I('s_lshl_b32 s45, s44, 12')
    k.I('v_add_u32 v13, s45, v8')
    k.I('v_xor_b32 v14, 4096, v13')
    k.I('v_add_u32 v13, %d, v13' % EX1)
    k.I('v_add_u32 v14, %d, v14' % EX1)
    for l in range(2):
        cmul(D1 + 4 * l, D1 + 8 + 4 * l, TW + 4 * l, TW + 8 + 4 * l, TMP + 4 * l, TMP + 8 + 4 * l, False)
    packB()
    k.stamp()

    def dft64_half(conj, off):
        vi, vn = (1, 2) if not conj else (2, 1)
        F = lambda var, l: ar(aF64 + 4 * (4 * var + l))
        for l in (2, 3, 0, 1):
            dr, di = DP + 4 * l, DP + 16 + 4 * l
            k.I('%s %s, %s, %s, 0' % (MF, vr(dr), F(0, l), vr(BB)))
            k.I('%s %s, %s, %s, 0' % (MF, vr(di), F(0, l), vr(BB + 4)))
            k.I('%s %s, %s, %s, %s' % (MF, vr(dr), F(vn, l), vr(BB + 4), vr(dr)))
            k.I('%s %s, %s, %s, %s' % (MF, vr(di), F(vi, l), vr(BB), vr(di)))
        for c in range(2):
            for l in range(2):
                k.I('ds_write_b128 v13, %s offset:%d' % (vr(DP + 16 * c + 8 + 4 * l), off + 2048 * c + 1024 * l))
        k.barrier()
        for c in range(2):
            for l in range(2):
                k.I('ds_read_b128 %s, v14 offset:%d' % (vr(RX + 8 * c + 4 * l), off + 2048 * c + 1024 * l))
        for c in range(2):
            for q in range(8):
                k.I('v_add_f32 v%d, v%d, v%d' % (DP + 16 * c + q, DP + 16 * c + q, RX + 8 * c + q))
    dft64_half(False, 0)
    for l in range(2):
        cmul(DP + 4 * l, DP + 16 + 4 * l, WR + 4 * l, WI + 4 * l, TMP + 4 * l, TMP + 8 + 4 * l, False)
    packB()
    k.stamp()
    dft64_half(True, 32768)
    for l in range(2):
        cmul(DP + 4 * l, DP + 16 + 4 * l, TW + 4 * l, TW + 8 + 4 * l, TMP + 4 * l, TMP + 8 + 4 * l, True)
    L2 = BB
    for c in range(2):
        for r in range(4):
            k.I('v_cvt_pk_bf16_f32 v%d, v%d, v%d' % (L2 + 4 * c + r, TMP + 8 * c + r, TMP + 8 * c + 4 + r))
    LB2, ARR2 = 16384, 4608
    k.I('s_mul_i32 s45, s56, %d' % (2 * ARR2))
    k.I('s_mul_i32 s46, s51, %d' % (16 * 144))
    k.I('s_add_u32 s45, s45, s46')
    k.I('s_lshl_b32 s46, s57, 2')
    k.I('s_add_u32 s45, s45, s46')
    k.I('s_add_u32 s45, s45, %d' % LB2)
    k.I('v_mul_u32_u24 v10, 144, v2')
    k.I('v_lshl_add_u32 v10, v3, 5, v10')
    k.I('v_add_u32 v10, s45, v10')
    for c in range(2):
        for r in range(4):
            k.I('ds_write_b32 v10, v%d offset:%d' % (L2 + 4 * c + r, ARR2 * c + 8 * r))
    k.barrier()
    k.stamp()
    k.I('s_and_b32 s58, s44, 3')
    k.I('v_lshrrev_b32 v10, 2, v2')
    k.I('v_lshl_add_u32 v10, v3, 3, v10')
    k.I('v_mul_u32_u24 v10, 144, v10')
    k.I('v_and_b32 v11, 3, v2')
    k.I('v_lshl_add_u32 v10, v11, 3, v10')
    k.I('s_lshl_b32 s45, s58, 5')
    k.I('s_add_u32 s45, s45, %d' % LB2)
    k.I('v_add_u32 v10, s45, v10')
    B7, D7 = 84, 100
    for arr in range(4):
        for h in range(2):
            k.I('ds_read_b64_tr_b16 %s, v10 offset:%d' % (vr(B7 + 4 * arr + 2 * h, 2), ARR2 * arr + 576 * h))
    for col in range(2):
        dr, di = D7 + 8 * col, D7 + 8 * col + 4
        br, bi = B7 + 8 * col, B7 + 8 * col + 4
        k.I('%s %s, %s, %s, 0' % (MF, vr(dr), ar(aF7), vr(br)))
        k.I('%s %s, %s, %s, 0' % (MF, vr(di), ar(aF7), vr(bi)))
        k.I('%s %s, %s, %s, %s' % (MF, vr(dr), ar(aF7 + 4), vr(bi), vr(dr)))
        k.I('%s %s, %s, %s, %s' % (MF, vr(di), ar(aF7 + 8), vr(br), vr(di)))
    k.I('v_lshl_add_u32 v10, v3, 8, v2')
    k.I('s_lshl_b32 s45, s58, 4')
    k.I('v_add_u32 v10, s45, v10')
    k.I('v_lshlrev_b32 v10, 4, v10')
    k.I('s_lshr_b32 s45, s40, 1')
    k.I('s_lshl_b32 s45, s45, 2')
    k.I('s_add_u32 s45, s45, s42')
    k.I('s_lshl_b32 s45, s45, 15')
    k.I('s_and_b32 s46, s40, 1')
    k.I('s_lshl_b32 s46, s46, 3')
    k.I('s_add_u32 s45, s45, s46')
    k.I('s_lshl_b32 s46, s56, 14')
    k.I('s_add_u32 s45, s45, s46')
    k.I('s_add_u32 s45, s45, %d' % G.WS_ZP)
    O = 116
    for r in range(4):
        o = O + 2 * r
        for col in range(2):
            k.I('v_cvt_pk_bf16_f32 v%d, v%d, v%d' % (o + col, D7 + 8 * col + r, D7 + 8 * col + 4 + r))
        k.I('buffer_store_dwordx2 %s, v10, %s, s45 offen offset:%d' % (vr(o, 2), SRD_WS, 1024 * r))
    k.stamp()
    k.wait_vm0()
    k.stamp_flush(1, 44, SRD_WS)
    k.label('L_c_end')
    k.I('s_endpgm')
    nprep = 0
    if not G.PREP_IN_K1:
        k.label('L_c_prep')
        k.vm, k.lg = [], []
        nprep = G.gen_wprep(k, 192, nw=8)
    return k, 192, EX2 + 32768, nprep


def more_kernels(ks, launches):
    kc, gc, lc, nprep = gen_c8() if G.C8 else gen_c()
    ks.append(kc)
    kc2 = G.stub_kernel('c2_kernel', kc, 60, G.WS_STB, 'L_c_body')
    ks.append(kc2)
    launches.append((kc.name, gc + nprep, lc))
    try:
        from gen3 import gemm_kernels
        gemm_kernels(ks, launches, (kc2.name, gc, lc))
    except ImportError:
        pass
```

```python
import sys
import numpy as np
from asmlib import Kernel, pack_bf16, f32bits, emit_table

import os
S, D, F = 2048, 640, 1536
PREP_IN_K1 = os.environ.get('PREP_IN_K1', '0') == '1'
TOUCH = int(os.environ.get('TOUCH', '1'))
WT = os.environ.get('WT', '')
C8 = os.environ.get('C8', '0') == '1'
PI = np.pi

WS_W1F = 0x0
WS_W2FA = 0x200000
WS_W2FB = 0x400000
WS_WC = 0x600000
WS_P = 0x900000
WS_ST = 0xC00000
WS_STB = 0xC10000
WS_CNT = 0xC20000
WS_ZP = 0xD00000
WS_XP = 0x1000000
WS_X1P = 0x1300000
WS_X1N = 0x1600000
WS_H = 0x1900000
WS_HB = 0x2000000
WS_SIZE = 0x10000000

SRD_WS = 's[8:11]'
SRD_TAB = 's[12:15]'
SRD_A = 's[16:19]'
SRD_B = 's[20:23]'
SRD_C = 's[24:27]'
SRD_OUT = 's[28:31]'

tables = {}
table_off = {}


def add_table(name, words):
    tables[name] = np.asarray(words, dtype=np.uint32).reshape(-1)


def layout_tables():
    off = 0
    for n, w in tables.items():
        table_off[n] = off
        off += (len(w) * 4 + 255) // 256 * 256
    return off


def make_tables():
    T = np.zeros((5, 3, 64, 8))
    for mo in range(5):
        for t in range(3):
            for l in range(64):
                i, g = l % 16, l // 16
                n = 16 * mo + i
                k1, c = n // 2, n % 2
                for e in range(8):
                    mt, r = 2 * t + e // 4, e % 4
                    if mt >= 5:
                        continue
                    d1 = 16 * mt + 4 * g + r
                    if k1 == 0:
                        v = np.cos(PI * d1) if c == 0 else 0.0
                    else:
                        v = np.cos(2 * PI * k1 * d1 / 80) if c == 0 else -np.sin(2 * PI * k1 * d1 / 80)
                    T[mo, t, l, e] = v
    add_table('G80F', pack_bf16(T))
    T = np.zeros((41 * 8, 2, 8, 2))
    for k1 in range(41):
        for k2 in range(8):
            k = k1 + 80 * k2
            for d2 in range(8):
                th = 2 * PI * ((k * d2) % 640) / 640
                cr, ci = np.cos(th), -np.sin(th)
                if k1 == 0:
                    T[k1 * 8 + k2, 0, d2] = (cr, cr)
                    T[k1 * 8 + k2, 1, d2] = (ci, ci)
                else:
                    T[k1 * 8 + k2, 0, d2] = (cr, -ci)
                    T[k1 * 8 + k2, 1, d2] = (ci, cr)
    add_table('TZ', pack_bf16(T))
    T = np.zeros((2, 3, 64, 8))
    for tile in range(2):
        for l in range(64):
            i, g = l % 16, l // 16
            for e in range(8):
                a, b = 16 * tile + i, 8 * g + e
                th = 2 * PI * ((a * b) % 32) / 32
                T[tile, 0, l, e] = np.cos(th)
                T[tile, 1, l, e] = -np.sin(th)
                T[tile, 2, l, e] = np.sin(th)
    add_table('F32', pack_bf16(T))
    T = np.zeros((3, 4, 2, 64, 8))
    for mt in range(4):
        for t in range(2):
            for l in range(64):
                i, g = l % 16, l // 16
                for e in range(8):
                    a, b = 4 * i + mt, 16 * g + 4 * (e % 4) + 2 * t + e // 4
                    th = 2 * PI * ((a * b) % 64) / 64
                    T[0, mt, t, l, e] = np.cos(th)
                    T[1, mt, t, l, e] = -np.sin(th)
                    T[2, mt, t, l, e] = np.sin(th)
    add_table('F64', pack_bf16(T))
    T = np.zeros((2, 2, 4, 64, 4))
    for nt in range(2):
        for m in range(4):
            for l in range(64):
                j, g = l % 16, l // 16
                for r in range(4):
                    s2, k1p = 16 * g + 4 * r + m, 16 * nt + j
                    th = 2 * PI * (s2 * k1p) / 2048
                    T[nt, 0, m, l, r] = np.cos(th)
                    T[nt, 1, m, l, r] = -np.sin(th)
    add_table('TW', f32bits(T))
    T = np.zeros((22, 64, 2, 4))
    for k1 in range(41):
        for l in range(64):
            i, g = l % 16, l // 16
            d2, cp = i // 2, i % 2
            for e in range(4):
                k2, c = 2 * g + e // 2, e % 2
                ph = 2 * PI * (((k1 + 80 * k2) * d2) % 640) / 640
                if cp == 0:
                    v = np.cos(ph) if c == 0 else -np.sin(ph)
                else:
                    v = np.sin(ph) if c == 0 else np.cos(ph)
                T[k1 // 2, l, k1 % 2, e] = v
    add_table('TA', pack_bf16(T))
    T = np.zeros((5, 3, 64, 8))
    for mt in range(5):
        for t in range(3):
            for l in range(64):
                i, g = l % 16, l // 16
                d1 = 16 * mt + i
                for e in range(8):
                    k1, cp = 16 * t + 4 * g + e // 2, e % 2
                    if k1 > 40:
                        continue
                    th = 2 * PI * ((k1 * d1) % 80) / 80
                    if k1 in (0, 40):
                        v = np.cos(th) if cp == 0 else 0.0
                    else:
                        v = 2 * np.cos(th) if cp == 0 else -2 * np.sin(th)
                    T[mt, t, l, e] = v
    add_table('G80I', pack_bf16(T))


def prologue(k, need, early=None):
    k.I('s_load_dwordx2 s[4:5], s[0:1], 64')
    tmp = 32
    items = list(need.items())
    for n, (srd, (ko, nb)) in enumerate(items):
        k.I('s_load_dwordx2 s[%d:%d], s[0:1], %d' % (tmp + 2 * n, tmp + 2 * n + 1, ko))
    k.I('s_getpc_b64 s[6:7]')
    k.raw('    s_add_u32 s6, s6, tab_base@rel32@lo+4')
    k.raw('    s_addc_u32 s7, s7, tab_base@rel32@hi+12')
    k.I('s_mov_b32 s12, s6')
    k.I('s_and_b32 s13, s7, 0xffff')
    k.I('s_mov_b32 s14, %d' % TAB_BYTES)
    k.I('s_mov_b32 s15, 0x20000')
    if early is not None:
        early()
    k.wait_lgkm0()
    k.I('s_mov_b32 s8, s4')
    k.I('s_and_b32 s9, s5, 0xffff')
    k.I('s_mov_b32 s10, 0x%x' % WS_SIZE)
    k.I('s_mov_b32 s11, 0x20000')
    for n, (srd, (ko, nb)) in enumerate(items):
        b = int(srd[2:srd.index(':')])
        k.I('s_mov_b32 s%d, s%d' % (b, tmp + 2 * n))
        k.I('s_and_b32 s%d, s%d, 0xffff' % (b + 1, tmp + 2 * n + 1))
        k.I('s_mov_b32 s%d, %d' % (b + 2, nb))
        k.I('s_mov_b32 s%d, 0x20000' % (b + 3))


def xsum_g(k, reg, tmp):
    k.I('v_mov_b32 v%d, v%d' % (tmp, reg))
    k.I('v_permlane32_swap_b32 v%d, v%d' % (reg, tmp))
    k.I('v_add_f32 v%d, v%d, v%d' % (reg, reg, tmp))
    k.I('v_mov_b32 v%d, v%d' % (tmp, reg))
    k.I('v_permlane16_swap_b32 v%d, v%d' % (reg, tmp))
    k.I('v_add_f32 v%d, v%d, v%d' % (reg, reg, tmp))


def fwd_epilogue(k, X, T, G80, vP, vP0, vST, sbase, d2_soff_sgpr, statacc=None):
    sm, t1, mean, m2 = T, T + 1, T + 2, T + 3
    acc = T + 4
    B = T + 8
    Dm = T + 20
    k.I('v_pk_add_f32 v[%d:%d], v[%d:%d], v[%d:%d]' % (acc, acc + 1, X, X + 1, X + 2, X + 3))
    for q in range(2, 10):
        k.I('v_pk_add_f32 v[%d:%d], v[%d:%d], v[%d:%d]' % (acc, acc + 1, acc, acc + 1, X + 2 * q, X + 2 * q + 1))
    k.I('v_add_f32 v%d, v%d, v%d' % (sm, acc, acc + 1))
    xsum_g(k, sm, t1)
    k.I('v_mul_f32 v%d, 0x%x, v%d' % (mean, f32bits(1.0 / 80), sm))
    for q in range(10):
        k.I('v_pk_add_f32 v[%d:%d], v[%d:%d], v[%d:%d] op_sel_hi:[1,0] neg_lo:[0,1] neg_hi:[0,1]'
            % (X + 2 * q, X + 2 * q + 1, X + 2 * q, X + 2 * q + 1, mean, mean + 1))
    k.I('v_pk_mul_f32 v[%d:%d], v[%d:%d], v[%d:%d]' % (acc, acc + 1, X, X + 1, X, X + 1))
    for q in range(1, 10):
        k.I('v_pk_fma_f32 v[%d:%d], v[%d:%d], v[%d:%d], v[%d:%d]'
            % (acc, acc + 1, X + 2 * q, X + 2 * q + 1, X + 2 * q, X + 2 * q + 1, acc, acc + 1))
    k.I('v_add_f32 v%d, v%d, v%d' % (m2, acc, acc + 1))
    for q in range(10):
        k.I('v_cvt_pk_bf16_f32 v%d, v%d, v%d' % (B + q, X + 2 * q, X + 2 * q + 1))
    k.I('v_mov_b32 v%d, 0' % (B + 10))
    k.I('v_mov_b32 v%d, 0' % (B + 11))
    xsum_g(k, m2, t1)
    for mo in range(5):
        for t in range(3):
            c = '0' if t == 0 else 'v[%d:%d]' % (Dm + 4 * mo, Dm + 4 * mo + 3)
            k.I('v_mfma_f32_16x16x32_bf16 v[%d:%d], %s, v[%d:%d], %s'
                % (Dm + 4 * mo, Dm + 4 * mo + 3, G80(mo, t), B + 4 * t, B + 4 * t + 3, c))
    hi, lo = acc, acc + 1
    k.I('v_cvt_pk_bf16_f32 v%d, v%d, v%d' % (hi, sm, sm))
    k.I('v_and_b32 v%d, 0xffff0000, v%d' % (hi, hi))
    k.I('v_sub_f32 v%d, v%d, v%d' % (lo, sm, hi))
    k.I('v_cvt_pk_bf16_f32 v%d, v%d, v%d' % (hi, hi, lo))
    k.I('v_fmac_f32 v%d, v%d, v%d' % (m2, sm, mean))
    k.I('s_mov_b64 exec, 0xffff')
    k.I('buffer_store_dword v%d, v%d, %s, s%d offen' % (hi, vP, SRD_WS, d2_soff_sgpr))
    if statacc is None:
        k.I('buffer_atomic_add_f32 v%d, v%d, %s, s%d offen' % (sm, vST, SRD_WS, d2_soff_sgpr + 1))
        k.I('buffer_atomic_add_f32 v%d, v%d, %s, s%d offen offset:4' % (m2, vST, SRD_WS, d2_soff_sgpr + 1))
    k.I('s_mov_b64 exec, -1')
    if statacc is not None:
        k.I('v_add_f32 v%d, v%d, v%d' % (statacc, statacc, sm))
        k.I('v_add_f32 v%d, v%d, v%d' % (statacc + 1, statacc + 1, m2))
    for mo in range(5):
        for h in range(2):
            o = B + 2 * mo + h
            o = X + 2 * mo + h
            k.I('v_cvt_pk_bf16_f32 v%d, v%d, v%d' % (o, Dm + 4 * mo + 2 * h, Dm + 4 * mo + 2 * h + 1))
            k.I('s_add_u32 s%d, s%d, %d' % (sbase, d2_soff_sgpr, (8 * mo + h) * 65536))
            k.I('buffer_store_dword v%d, v%d, %s, s%d offen'
                % (o, vP0 if (mo == 0 and h == 0) else vP, SRD_WS, sbase))


def dma_table(k, tab_off, nchunks, lds_base, wave_s, vlane16, st, nw=4):
    k.I('s_lshl_b32 s%d, s%d, 10' % (st, wave_s))
    k.I('s_add_u32 m0, s%d, %d' % (st, lds_base))
    k.I('s_add_u32 s%d, s%d, %d' % (st, st, tab_off))
    for i in range((nchunks + nw - 1) // nw):
        if i:
            k.I('s_add_u32 m0, m0, %d' % (1024 * nw))
            k.I('s_add_u32 s%d, s%d, %d' % (st, st, 1024 * nw))
        k.I('buffer_load_dwordx4 v%d, %s, s%d offen lds' % (vlane16, SRD_TAB, st))


def stub_kernel(name, main, sreg, value, target):
    k = Kernel(name)
    k.I('s_mov_b32 s%d, %d' % (sreg, value))
    k.I('s_branch %s' % target)
    k.main = main
    return k


def lane_ids(k, vj, vg, vw_s):
    k.I('v_and_b32 v%d, 15, v0' % vj)
    k.I('v_bfe_u32 v%d, v0, 4, 2' % vg)
    k.I('v_lshrrev_b32 v1, 6, v0')
    k.I('v_readfirstlane_b32 s%d, v1' % vw_s)


def gen_wprep(k, base, nw=4):
    N1, N2 = 120 // nw, 120 // nw
    LG = {4: 2, 8: 3}[nw]
    k.I('s_cmp_ge_u32 s2, %d' % (base + N1 + N2))
    k.I('s_cbranch_scc1 L_prep_end')
    prologue(k, {SRD_OUT: (32, D * F * 2), 's[40:43]': (40, F * D * 2)})
    SRD_W1, SRD_W2 = SRD_OUT, 's[40:43]'
    lane_ids(k, 2, 3, 44)
    k.I('v_and_b32 v4, 63, v0')
    k.I('v_lshlrev_b32 v8, 4, v4')
    k.I('s_mov_b32 s46, 0x05040100')
    k.I('s_mov_b32 s47, 0x07060302')
    k.I('s_lshl_b32 s59, s44, 14')
    k.I('v_lshrrev_b32 v9, 1, v2')
    k.I('v_lshlrev_b32 v9, 10, v9')
    k.I('v_and_b32 v10, 1, v2')
    k.I('v_lshl_add_u32 v9, v10, 7, v9')
    k.I('v_lshl_add_u32 v9, v3, 8, v9')
    k.I('v_add_u32 v9, s59, v9')
    k.I('v_add_u32 v10, s59, v8')

    def transpose8(R, O):
        for c in range(8):
            for kk in range(4):
                k.I('v_perm_b32 v%d, v%d, v%d, %s' % (O + 4 * c + kk, R + 4 * (2 * kk + 1) + c // 2,
                                                      R + 4 * (2 * kk) + c // 2, 's47' if c % 2 else 's46'))

    def via_lds(O, i, T):
        for c in range(8):
            k.I('ds_write_b128 v9, v[%d:%d] offset:%d' % (O + 4 * c, O + 4 * c + 3, 8192 * i + 16 * c))
        for q in range(8):
            k.I('ds_read_b128 v[%d:%d], v10 offset:%d' % (T + 4 * q, T + 4 * q + 3, 8192 * i + 1024 * q))
    k.I('s_cmp_ge_u32 s2, %d' % (base + N1))
    k.I('s_cbranch_scc1 L_prep_w2')
    k.I('s_sub_u32 s45, s2, %d' % base)
    k.I('s_lshl_b32 s45, s45, %d' % LG)
    k.I('s_add_u32 s45, s45, s44')
    k.I('s_lshl_b32 s45, s45, 1')
    k.I('v_mul_u32_u24 v5, %d, v3' % (32 * 3072))
    k.I('v_lshl_add_u32 v5, v2, 4, v5')
    for i in range(2):
        R = 16 + 32 * i
        k.I('s_add_u32 s56, s45, %d' % i)
        k.I('s_mul_i32 s57, s56, 43691')
        k.I('s_lshr_b32 s%d, s57, 19' % (60 + 2 * i))
        k.I('s_mul_i32 s58, s%d, 12' % (60 + 2 * i))
        k.I('s_sub_u32 s%d, s56, s58' % (61 + 2 * i))
        for e in range(8):
            k.I('s_lshl_b32 s50, s%d, 1' % (60 + 2 * i))
            k.I('s_add_u32 s50, s50, %d' % (e // 4))
            k.I('s_mul_i32 s51, s50, 13')
            k.I('s_lshr_b32 s51, s51, 6')
            k.I('s_mul_i32 s52, s51, 5')
            k.I('s_sub_u32 s52, s50, s52')
            k.I('s_lshl_b32 s52, s52, 7')
            k.I('s_add_u32 s52, s52, s51')
            k.I('s_add_u32 s52, s52, %d' % (8 * (e % 4)))
            k.I('s_mul_i32 s52, s52, 3072')
            k.I('s_lshl_b32 s53, s%d, 8' % (61 + 2 * i))
            k.I('s_add_u32 s52, s52, s53')
            k.I('buffer_load_dwordx4 v[%d:%d], v5, %s, s52 offen' % (R + 4 * e, R + 4 * e + 3, SRD_W1))
    for i in range(2):
        R, O, T = 16 + 32 * i, 80 + 32 * i, 16 + 32 * i
        transpose8(R, O)
        via_lds(O, i, T)
        k.I('s_mul_i32 s50, s%d, %d' % (61 + 2 * i, 8 * 20480))
        k.I('s_lshl_b32 s51, s%d, 10' % (60 + 2 * i))
        k.I('s_add_u32 s50, s50, s51')
        for q in range(8):
            k.I('s_add_u32 s51, s50, %d' % (WS_W1F + q * 20480))
            k.I('buffer_store_dwordx4 v[%d:%d], v8, %s, s51 offen %s' % (T + 4 * q, T + 4 * q + 3, SRD_WS, WT))
    k.I('s_endpgm')
    k.label('L_prep_w2')
    k.I('s_sub_u32 s45, s2, %d' % (base + N1))
    k.I('s_lshl_b32 s45, s45, %d' % LG)
    k.I('s_add_u32 s45, s45, s44')
    k.I('s_lshl_b32 s45, s45, 1')
    k.I('v_mul_u32_u24 v5, 5120, v3')
    k.I('v_lshl_add_u32 v5, v2, 4, v5')
    for i in range(2):
        R = 16 + 32 * i
        k.I('s_add_u32 s56, s45, %d' % i)
        k.I('s_mul_i32 s57, s56, 52429')
        k.I('s_lshr_b32 s%d, s57, 18' % (60 + 2 * i))
        k.I('s_mul_i32 s58, s%d, 5' % (60 + 2 * i))
        k.I('s_sub_u32 s%d, s56, s58' % (61 + 2 * i))
        for e in range(8):
            k.I('s_lshl_b32 s50, s%d, 5' % (60 + 2 * i))
            k.I('s_add_u32 s50, s50, %d' % (16 * (e // 4) + e % 4))
            k.I('s_mul_i32 s50, s50, 1280')
            k.I('s_lshl_b32 s53, s%d, 8' % (61 + 2 * i))
            k.I('s_add_u32 s50, s50, s53')
            k.I('buffer_load_dwordx4 v[%d:%d], v5, %s, s50 offen' % (R + 4 * e, R + 4 * e + 3, SRD_W2))
    for i in range(2):
        R, O, T = 16 + 32 * i, 80 + 32 * i, 16 + 32 * i
        transpose8(R, O)
        via_lds(O, i, T)
        k.I('s_mul_i32 s50, s%d, 49152' % (61 + 2 * i))
        k.I('s_lshl_b32 s51, s%d, 10' % (60 + 2 * i))
        k.I('s_add_u32 s50, s50, s51')
        for c in range(8):
            k.I('s_add_u32 s52, s50, %d' % (WS_W2FA + c * 245760))
            k.I('buffer_store_dwordx4 v[%d:%d], v8, %s, s52 offen %s' % (O + 4 * c, O + 4 * c + 3, SRD_WS, WT))
        k.I('s_mul_i32 s50, s%d, %d' % (61 + 2 * i, 8 * 49152))
        k.I('s_add_u32 s50, s50, s51')
        for q in range(8):
            k.I('s_add_u32 s52, s50, %d' % (WS_W2FB + q * 49152))
            k.I('buffer_store_dwordx4 v[%d:%d], v8, %s, s52 offen %s' % (T + 4 * q, T + 4 * q + 3, SRD_WS, WT))
    k.label('L_prep_end')
    k.I('s_endpgm')
    return N1 + N2


def gen_k1():
    k = Kernel('k1_kernel')
    NX, NW = 128, 256
    k.I('s_cmp_ge_u32 s2, %d' % (NX + NW))
    k.I('s_cbranch_scc1 %s' % ('L_k1_touch' if TOUCH else ('L_k1_prep' if PREP_IN_K1 else 'L_k1_end')))
    k.stamp()
    prologue(k, {SRD_A: (0, S * D * 2), SRD_B: (8, S * 321 * 2), SRD_C: (16, S * 321 * 2)})
    lane_ids(k, 2, 3, 44)
    k.I('s_mov_b32 s46, 0x05040100')
    k.I('s_mov_b32 s47, 0x07060302')
    k.I('s_cmp_ge_u32 s2, %d' % NX)
    k.I('s_cbranch_scc1 L_k1_w')
    k.I('s_lshl_b32 s45, s2, 4')
    k.I('v_add_u32 v4, s45, v2')
    XL = 512 + 16 * 1024
    R = 16
    k.I('s_mul_i32 s48, s2, 20480')
    k.I('v_lshlrev_b32 v5, 4, v0')
    for i in range(5):
        k.I('s_add_u32 s49, s48, %d' % (4096 * i))
        k.I('buffer_load_dwordx4 v[%d:%d], v5, %s, s49 offen' % (40 + 4 * i, 43 + 4 * i, SRD_A))
    k.I('v_and_b32 v6, 63, v0')
    k.I('v_lshlrev_b32 v6, 4, v6')
    dma_table(k, table_off['G80F'], 15, 512, 44, 6, 50)
    k.I('s_mov_b32 s48, 52429')
    for i in range(5):
        k.I('v_add_u32 v7, %d, v0' % (256 * i))
        k.I('v_mul_lo_u32 v8, v7, s48')
        k.I('v_lshrrev_b32 v8, 22, v8')
        k.I('v_lshlrev_b32 v7, 4, v7')
        k.I('v_lshl_add_u32 v7, v8, 4, v7')
        k.I('ds_write_b128 v7, v[%d:%d] offset:%d' % (40 + 4 * i, 43 + 4 * i, XL))
    k.stamp()
    k.wait_vm0()
    k.barrier()
    k.stamp()
    k.I('v_mul_u32_u24 v5, 1296, v2')
    k.I('v_lshl_add_u32 v5, v3, 6, v5')
    k.I('s_lshl_b32 s49, s44, 2')
    k.I('v_add_u32 v5, s49, v5')
    for mt in range(5):
        for r in range(4):
            k.I('ds_read_b32 v%d, v5 offset:%d' % (R + 4 * mt + r, XL + 256 * mt + 16 * r))
    for q in range(15):
        k.I('ds_read_b128 a[%d:%d], v6 offset:%d' % (4 * q, 4 * q + 3, 512 + 1024 * q))
    k.I('v_lshlrev_b32 v7, 2, v4')
    k.I('v_lshl_add_u32 v7, v3, 17, v7')
    k.I('v_mov_b32 v8, v7')
    k.I('v_cmp_eq_u32 vcc, 0, v3')
    k.I('v_add_u32 v9, %d, v7' % (40 * 65536))
    k.I('v_cndmask_b32 v8, v7, v9, vcc')
    k.I('v_lshlrev_b32 v9, 3, v4')
    k.I('v_mov_b32 v12, 0')
    k.I('v_mov_b32 v13, 0')
    k.I('v_lshlrev_b32 v10, 6, v4')
    k.I('v_lshl_add_u32 v10, v3, 4, v10')
    X, T, PK = 40, 64, 104
    k.I('s_mul_i32 s54, s44, %d' % (5 * 131072))
    k.I('s_add_u32 s54, s54, %d' % WS_XP)
    for mt in range(5):
        pk = PK + 4 * mt
        k.I('v_perm_b32 v%d, v%d, v%d, s46' % (pk, R + 4 * mt + 1, R + 4 * mt))
        k.I('v_perm_b32 v%d, v%d, v%d, s46' % (pk + 1, R + 4 * mt + 3, R + 4 * mt + 2))
        k.I('v_perm_b32 v%d, v%d, v%d, s47' % (pk + 2, R + 4 * mt + 1, R + 4 * mt))
        k.I('v_perm_b32 v%d, v%d, v%d, s47' % (pk + 3, R + 4 * mt + 3, R + 4 * mt + 2))
        k.I('s_add_u32 s55, s54, %d' % (mt * 131072))
        k.I('buffer_store_dwordx4 v[%d:%d], v10, %s, s55 offen %s' % (pk, pk + 3, SRD_WS, WT))
    k.stamp()
    for e in range(2):
        k.I('s_lshl_b32 s51, s44, 1')
        k.I('s_add_u32 s51, s51, %d' % e)
        k.I('s_lshl_b32 s52, s51, 13')
        k.I('s_add_u32 s52, s52, %d' % WS_P)
        for q in range(20):
            if e == 0:
                k.I('v_lshlrev_b32 v%d, 16, v%d' % (X + q, R + q))
            else:
                k.I('v_and_b32 v%d, 0xffff0000, v%d' % (X + q, R + q))
        fwd_epilogue(k, X, T, lambda mo, t: 'a[%d:%d]' % (4 * (3 * mo + t), 4 * (3 * mo + t) + 3),
                     7, 8, 9, 55, 52, statacc=12)
    k.stamp()
    k.I('s_lshl_b32 s51, s44, 7')
    k.I('v_lshl_add_u32 v14, v2, 3, s51')
    k.I('s_mov_b64 exec, 0xffff')
    k.I('ds_write_b64 v14, v[12:13]')
    k.I('s_mov_b64 exec, -1')
    k.barrier()
    k.I('s_cmp_eq_u32 s44, 0')
    k.I('s_cbranch_scc0 L_k1_xdone')
    k.I('v_lshlrev_b32 v14, 3, v2')
    for w in range(4):
        k.I('ds_read_b64 v[%d:%d], v14 offset:%d' % (16 + 2 * w, 17 + 2 * w, 128 * w))
    k.I('v_pk_add_f32 v[16:17], v[16:17], v[18:19]')
    k.I('v_pk_add_f32 v[20:21], v[20:21], v[22:23]')
    k.I('v_pk_add_f32 v[16:17], v[16:17], v[20:21]')
    k.I('v_mov_b32 v18, 0')
    k.I('v_mov_b32 v19, 0')
    k.I('s_mov_b32 s51, %d' % WS_ST)
    k.I('s_mov_b32 s52, %d' % WS_STB)
    k.I('s_mov_b64 exec, 0xffff')
    k.I('buffer_store_dwordx2 v[16:17], v9, %s, s51 offen' % SRD_WS)
    k.I('buffer_store_dwordx2 v[18:19], v9, %s, s52 offen' % SRD_WS)
    k.I('s_mov_b64 exec, -1')
    k.label('L_k1_xdone')
    k.stamp()
    k.wait_vm0()
    k.stamp_flush(0, 44, SRD_WS)
    k.nstamp = 1
    k.I('s_endpgm')
    k.label('L_k1_w')
    k.I('s_sub_u32 s45, s2, %d' % NX)
    k.I('s_lshr_b32 s48, s45, 5')
    k.I('s_and_b32 s49, s45, 31')
    k.I('s_lshl_b32 s49, s49, 2')
    k.I('s_add_u32 s49, s49, s44')
    k.I('s_lshr_b32 s50, s49, 6')
    k.I('s_and_b32 s51, s49, 63')
    k.I('s_and_b32 s52, s51, 15')
    k.I('s_lshr_b32 s53, s51, 4')
    k.I('s_lshl_b32 s54, s50, 4')
    k.I('s_add_u32 s54, s54, s52')
    k.I('s_lshl_b32 s55, s53, 9')
    k.I('s_add_u32 s54, s54, s55')
    k.I('v_and_b32 v4, 63, v0')
    k.I('s_mul_i32 s55, s48, 80')
    k.I('v_add_u32 v5, s55, v4')
    k.I('v_sub_u32 v6, 640, v5')
    k.I('s_cmp_lt_u32 s48, 4')
    k.I('s_cselect_b32 s56, 0, -1')
    k.I('s_cselect_b32 s57, 0, 0x80000000')
    k.I('v_mov_b32 v7, s56')
    k.I('v_cmp_eq_u32 vcc, 0, v7')
    k.I('v_cndmask_b32 v5, v6, v5, vcc')
    k.I('v_lshlrev_b32 v5, 1, v5')
    RE, IM, RE2, IM2 = 16, 32, 48, 64
    for mt in range(4):
        for r in range(4):
            q = 4 * mt + r
            k.I('s_add_u32 s58, s54, %d' % (32 * (4 * r + mt)))
            k.I('s_sub_u32 s59, 0, s58')
            k.I('s_and_b32 s59, s59, 2047')
            k.I('s_cmp_lt_u32 s48, 4')
            k.I('s_cselect_b32 s60, s58, s59')
            k.I('s_mul_i32 s60, s60, 642')
            k.I('buffer_load_ushort v%d, v5, %s, s60 offen' % (RE + q, SRD_B))
            k.I('buffer_load_ushort v%d, v5, %s, s60 offen' % (IM + q, SRD_C))
    k.stamp()
    k.I('s_and_b32 s61, s48, 3')
    k.I('s_cmp_eq_u32 s61, 0')
    k.I('s_cbranch_scc0 L_k1_w_nosym')
    for mt in range(4):
        for r in range(4):
            q = 4 * mt + r
            k.I('s_add_u32 s58, s54, %d' % (32 * (4 * r + mt)))
            k.I('s_sub_u32 s59, 0, s58')
            k.I('s_and_b32 s59, s59, 2047')
            k.I('s_cmp_lt_u32 s48, 4')
            k.I('s_cselect_b32 s60, s59, s58')
            k.I('s_mul_i32 s60, s60, 642')
            k.I('buffer_load_ushort v%d, v5, %s, s60 offen' % (RE2 + q, SRD_B))
            k.I('buffer_load_ushort v%d, v5, %s, s60 offen' % (IM2 + q, SRD_C))
    k.wait_vm0()
    k.I('s_mov_b64 exec, 1')
    for q in range(16):
        k.I('v_lshlrev_b32 v8, 16, v%d' % (RE + q))
        k.I('v_lshlrev_b32 v9, 16, v%d' % (RE2 + q))
        k.I('v_add_f32 v8, v8, v9')
        k.I('v_mul_f32 v8, 0.5, v8')
        k.I('v_lshlrev_b32 v10, 16, v%d' % (IM + q))
        k.I('v_lshlrev_b32 v9, 16, v%d' % (IM2 + q))
        k.I('v_sub_f32 v10, v10, v9')
        k.I('v_mul_f32 v10, 0.5, v10')
        k.I('v_cvt_pk_bf16_f32 v8, v8, v10')
        k.I('v_and_b32 v%d, 0xffff, v8' % (RE + q))
        k.I('v_lshrrev_b32 v%d, 16, v8' % (IM + q))
    k.I('s_mov_b64 exec, -1')
    k.label('L_k1_w_nosym')
    k.wait_vm0()
    k.stamp()
    for q in range(16):
        k.I('v_lshl_or_b32 v%d, v%d, 16, v%d' % (RE + q, IM + q, RE + q))
        k.I('v_xor_b32 v%d, s57, v%d' % (RE + q, RE + q))
    k.I('v_lshlrev_b32 v6, 16, v4')
    k.I('s_lshl_b32 s58, s48, 13')
    k.I('s_lshl_b32 s59, s49, 6')
    k.I('s_add_u32 s58, s58, s59')
    k.I('s_add_u32 s58, s58, %d' % WS_WC)
    k.I('v_cmp_gt_u32 vcc, 41, v4')
    k.I('s_and_saveexec_b64 s[62:63], vcc')
    for mt in range(4):
        k.I('buffer_store_dwordx4 v[%d:%d], v6, %s, s58 offen offset:%d' % (RE + 4 * mt, RE + 4 * mt + 3, SRD_WS, 16 * mt))
    k.stamp()
    k.wait_vm0()
    k.stamp_flush(0, 44, SRD_WS)
    k.nstamp = 1
    k.I('s_endpgm')

    k.label('L_k1_end')
    k.I('s_endpgm')
    if TOUCH:
        k.label('L_k1_touch')
        k.vm, k.lg = [], []
        NT = 64
        k.I('s_cmp_ge_u32 s2, %d' % (NX + NW + NT))
        k.I('s_cbranch_scc1 L_k1_end')
        k.I('s_getpc_b64 s[6:7]')
        k.out.append('L_k1_pc:')
        k.raw('    s_sub_u32 s8, s6, L_k1_pc-k1_kernel')
        k.raw('    s_subb_u32 s9, s7, 0')
        k.I('s_and_b32 s9, s9, 0xffff')
        k.raw('    s_mov_b32 s10, L_text_end-k1_kernel')
        k.I('s_mov_b32 s11, 0x20000')
        k.I('s_getpc_b64 s[6:7]')
        k.raw('    s_add_u32 s6, s6, tab_base@rel32@lo+4')
        k.raw('    s_addc_u32 s7, s7, tab_base@rel32@hi+12')
        k.I('s_mov_b32 s12, s6')
        k.I('s_and_b32 s13, s7, 0xffff')
        k.I('s_mov_b32 s14, %d' % TAB_BYTES)
        k.I('s_mov_b32 s15, 0x20000')
        k.I('s_sub_u32 s16, s2, %d' % (NX + NW))
        k.I('s_lshl_b32 s16, s16, 12')
        k.I('v_lshlrev_b32 v1, 4, v0')
        k.I('buffer_load_dwordx4 v[4:7], v1, s[8:11], s16 offen')
        k.I('buffer_load_dwordx4 v[8:11], v1, s[12:15], s16 offen')
        if TOUCH >= 2:
            k.I('s_load_dwordx4 s[20:23], s[0:1], 32')
            k.wait_lgkm0()
            for n, b in enumerate((24, 28)):
                k.I('s_mov_b32 s%d, s%d' % (b, 20 + 2 * n))
                k.I('s_and_b32 s%d, s%d, 0xffff' % (b + 1, 21 + 2 * n))
                k.I('s_mov_b32 s%d, %d' % (b + 2, D * F * 2))
                k.I('s_mov_b32 s%d, 0x20000' % (b + 3))
            k.I('s_lshl_b32 s17, s16, 3')
            for i in range(8):
                k.I('s_add_u32 s18, s17, %d' % (4096 * i))
                k.I('buffer_load_dwordx4 v[%d:%d], v1, s[24:27], s18 offen' % (12 + 8 * i, 15 + 8 * i))
                k.I('buffer_load_dwordx4 v[%d:%d], v1, s[28:31], s18 offen' % (16 + 8 * i, 19 + 8 * i))
        k.wait_vm0()
        k.I('s_endpgm')
        return k, NX + NW + NT, 512 + 16 * 1024 + 16 * 1296
    if PREP_IN_K1:
        k.label('L_k1_prep')
        k.vm, k.lg = [], []
        n = gen_wprep(k, NX + NW)
        return k, NX + NW + n, 65536
    return k, (NX + NW), 512 + 16 * 1024 + 16 * 1296


HEADER = '''; Kernarg layout for this problem (72 bytes, ptrs only, base s[0:1]):
'''


def build(kernels, launches):
    out = [HEADER.rstrip('\n')]
    for name, grid, lds in launches:
        blk = 512 if name in ('c1_kernel', 'c2_kernel') and C8 else 256
        out.append('; @launch kernel=%s grid=(%d,1,1) block=(%d,1,1) lds=%d' % (name, grid, blk, lds))
    out.append('.amdgcn_target "amdgcn-amd-amdhsa--gfx950"')
    out.append('.text')
    for k in kernels:
        out.append('.globl %s' % k.name)
        out.append('.p2align 8')
        out.append('.type %s,@function' % k.name)
        out.append('%s:' % k.name)
        out += k.out
    out.append('L_text_end:')
    out.append('.section .rodata,"a"')
    for k in kernels:
        if getattr(k, 'main', None) is not None:
            k.maxv, k.maxa, k.maxs = k.main.maxv, k.main.maxa, k.main.maxs
        nv = k.maxv + 1
        acc_off = (nv + 3) // 4 * 4
        nfv = acc_off + (k.maxa + 1) if k.maxa >= 0 else nv
        out.append('.p2align 6')
        out.append('.amdhsa_kernel %s' % k.name)
        out.append('  .amdhsa_next_free_vgpr %d' % nfv)
        out.append('  .amdhsa_next_free_sgpr %d' % max(k.maxs + 1, 16))
        out.append('  .amdhsa_accum_offset %d' % acc_off)
        out.append('  .amdhsa_group_segment_fixed_size 0')
        out.append('  .amdhsa_kernarg_size 72')
        out.append('  .amdhsa_user_sgpr_count 2')
        out.append('  .amdhsa_user_sgpr_kernarg_segment_ptr 1')
        out.append('  .amdhsa_system_sgpr_workgroup_id_x 1')
        out.append('  .amdhsa_float_denorm_mode_32 3')
        out.append('  .amdhsa_float_denorm_mode_16_64 3')
        out.append('.end_amdhsa_kernel')
    out.append('.p2align 8')
    out.append('tab_base:')
    for n, w in tables.items():
        out += emit_table('tab_' + n, w)
    return '\n'.join(out) + '\n'


make_tables()
TAB_BYTES = layout_tables()

if __name__ == '__main__':
    if len(sys.argv) > 2 and sys.argv[2] in ('diag', 'real'):
        Kernel.DIAG = True
        Kernel.REAL = sys.argv[2] == 'real'
    ks, launches = [], []
    k, g, l = gen_k1()
    ks.append(k)
    launches.append((k.name, g, l))
    try:
        from gen2 import more_kernels
        more_kernels(ks, launches)
    except ImportError:
        pass
    path = sys.argv[1] if len(sys.argv) > 1 else 'interleave_layers__spectral_gfnet__dense_activation_silu__prompt.s'
    open(path, 'w').write(build(ks, launches))
    print('wrote', path)
```

```python
import sys
import numpy as np
from asmlib import Kernel, pack_bf16, f32bits, emit_table

import os
S, D, F = 2048, 640, 1536
PREP_IN_K1 = os.environ.get('PREP_IN_K1', '0') == '1'
TOUCH = int(os.environ.get('TOUCH', '1'))
WT = os.environ.get('WT', '')
C8 = os.environ.get('C8', '0') == '1'
PI = np.pi

WS_W1F = 0x0
WS_W2FA = 0x200000
WS_W2FB = 0x400000
WS_WC = 0x600000
WS_P = 0x900000
WS_ST = 0xC00000
WS_STB = 0xC10000
WS_CNT = 0xC20000
WS_ZP = 0xD00000
WS_XP = 0x1000000
WS_X1P = 0x1300000
WS_X1N = 0x1600000
WS_H = 0x1900000
WS_HB = 0x2000000
WS_SIZE = 0x10000000

SRD_WS = 's[8:11]'
SRD_TAB = 's[12:15]'
SRD_A = 's[16:19]'
SRD_B = 's[20:23]'
SRD_C = 's[24:27]'
SRD_OUT = 's[28:31]'

tables = {}
table_off = {}


def add_table(name, words):
    tables[name] = np.asarray(words, dtype=np.uint32).reshape(-1)


def layout_tables():
    off = 0
    for n, w in tables.items():
        table_off[n] = off
        off += (len(w) * 4 + 255) // 256 * 256
    return off


def make_tables():
    T = np.zeros((5, 3, 64, 8))
    for mo in range(5):
        for t in range(3):
            for l in range(64):
                i, g = l % 16, l // 16
                n = 16 * mo + i
                k1, c = n // 2, n % 2
                for e in range(8):
                    mt, r = 2 * t + e // 4, e % 4
                    if mt >= 5:
                        continue
                    d1 = 16 * mt + 4 * g + r
                    if k1 == 0:
                        v = np.cos(PI * d1) if c == 0 else 0.0
                    else:
                        v = np.cos(2 * PI * k1 * d1 / 80) if c == 0 else -np.sin(2 * PI * k1 * d1 / 80)
                    T[mo, t, l, e] = v
    add_table('G80F', pack_bf16(T))
    T = np.zeros((41 * 8, 2, 8, 2))
    for k1 in range(41):
        for k2 in range(8):
            k = k1 + 80 * k2
            for d2 in range(8):
                th = 2 * PI * ((k * d2) % 640) / 640
                cr, ci = np.cos(th), -np.sin(th)
                if k1 == 0:
                    T[k1 * 8 + k2, 0, d2] = (cr, cr)
                    T[k1 * 8 + k2, 1, d2] = (ci, ci)
                else:
                    T[k1 * 8 + k2, 0, d2] = (cr, -ci)
                    T[k1 * 8 + k2, 1, d2] = (ci, cr)
    add_table('TZ', pack_bf16(T))
    T = np.zeros((2, 3, 64, 8))
    for tile in range(2):
        for l in range(64):
            i, g = l % 16, l // 16
            for e in range(8):
                a, b = 16 * tile + i, 8 * g + e
                th = 2 * PI * ((a * b) % 32) / 32
                T[tile, 0, l, e] = np.cos(th)
                T[tile, 1, l, e] = -np.sin(th)
                T[tile, 2, l, e] = np.sin(th)
    add_table('F32', pack_bf16(T))
    T = np.zeros((3, 4, 2, 64, 8))
    for mt in range(4):
        for t in range(2):
            for l in range(64):
                i, g = l % 16, l // 16
                for e in range(8):
                    a, b = 4 * i + mt, 16 * g + 4 * (e % 4) + 2 * t + e // 4
                    th = 2 * PI * ((a * b) % 64) / 64
                    T[0, mt, t, l, e] = np.cos(th)
                    T[1, mt, t, l, e] = -np.sin(th)
                    T[2, mt, t, l, e] = np.sin(th)
    add_table('F64', pack_bf16(T))
    T = np.zeros((2, 2, 4, 64, 4))
    for nt in range(2):
        for m in range(4):
            for l in range(64):
                j, g = l % 16, l // 16
                for r in range(4):
                    s2, k1p = 16 * g + 4 * r + m, 16 * nt + j
                    th = 2 * PI * (s2 * k1p) / 2048
                    T[nt, 0, m, l, r] = np.cos(th)
                    T[nt, 1, m, l, r] = -np.sin(th)
    add_table('TW', f32bits(T))
    T = np.zeros((22, 64, 2, 4))
    for k1 in range(41):
        for l in range(64):
            i, g = l % 16, l // 16
            d2, cp = i // 2, i % 2
            for e in range(4):
                k2, c = 2 * g + e // 2, e % 2
                ph = 2 * PI * (((k1 + 80 * k2) * d2) % 640) / 640
                if cp == 0:
                    v = np.cos(ph) if c == 0 else -np.sin(ph)
                else:
                    v = np.sin(ph) if c == 0 else np.cos(ph)
                T[k1 // 2, l, k1 % 2, e] = v
    add_table('TA', pack_bf16(T))
    T = np.zeros((5, 3, 64, 8))
    for mt in range(5):
        for t in range(3):
            for l in range(64):
                i, g = l % 16, l // 16
                d1 = 16 * mt + i
                for e in range(8):
                    k1, cp = 16 * t + 4 * g + e // 2, e % 2
                    if k1 > 40:
                        continue
                    th = 2 * PI * ((k1 * d1) % 80) / 80
                    if k1 in (0, 40):
                        v = np.cos(th) if cp == 0 else 0.0
                    else:
                        v = 2 * np.cos(th) if cp == 0 else -2 * np.sin(th)
                    T[mt, t, l, e] = v
    add_table('G80I', pack_bf16(T))


def prologue(k, need, early=None):
    k.I('s_load_dwordx2 s[4:5], s[0:1], 64')
    tmp = 32
    items = list(need.items())
    for n, (srd, (ko, nb)) in enumerate(items):
        k.I('s_load_dwordx2 s[%d:%d], s[0:1], %d' % (tmp + 2 * n, tmp + 2 * n + 1, ko))
    k.I('s_getpc_b64 s[6:7]')
    k.raw('    s_add_u32 s6, s6, tab_base@rel32@lo+4')
    k.raw('    s_addc_u32 s7, s7, tab_base@rel32@hi+12')
    k.I('s_mov_b32 s12, s6')
    k.I('s_and_b32 s13, s7, 0xffff')
    k.I('s_mov_b32 s14, %d' % TAB_BYTES)
    k.I('s_mov_b32 s15, 0x20000')
    if early is not None:
        early()
    k.wait_lgkm0()
    k.I('s_mov_b32 s8, s4')
    k.I('s_and_b32 s9, s5, 0xffff')
    k.I('s_mov_b32 s10, 0x%x' % WS_SIZE)
    k.I('s_mov_b32 s11, 0x20000')
    for n, (srd, (ko, nb)) in enumerate(items):
        b = int(srd[2:srd.index(':')])
        k.I('s_mov_b32 s%d, s%d' % (b, tmp + 2 * n))
        k.I('s_and_b32 s%d, s%d, 0xffff' % (b + 1, tmp + 2 * n + 1))
        k.I('s_mov_b32 s%d, %d' % (b + 2, nb))
        k.I('s_mov_b32 s%d, 0x20000' % (b + 3))


def xsum_g(k, reg, tmp):
    k.I('v_mov_b32 v%d, v%d' % (tmp, reg))
    k.I('v_permlane32_swap_b32 v%d, v%d' % (reg, tmp))
    k.I('v_add_f32 v%d, v%d, v%d' % (reg, reg, tmp))
    k.I('v_mov_b32 v%d, v%d' % (tmp, reg))
    k.I('v_permlane16_swap_b32 v%d, v%d' % (reg, tmp))
    k.I('v_add_f32 v%d, v%d, v%d' % (reg, reg, tmp))


def fwd_epilogue(k, X, T, G80, vP, vP0, vST, sbase, d2_soff_sgpr, statacc=None):
    sm, t1, mean, m2 = T, T + 1, T + 2, T + 3
    acc = T + 4
    B = T + 8
    Dm = T + 20
    k.I('v_pk_add_f32 v[%d:%d], v[%d:%d], v[%d:%d]' % (acc, acc + 1, X, X + 1, X + 2, X + 3))
    for q in range(2, 10):
        k.I('v_pk_add_f32 v[%d:%d], v[%d:%d], v[%d:%d]' % (acc, acc + 1, acc, acc + 1, X + 2 * q, X + 2 * q + 1))
    k.I('v_add_f32 v%d, v%d, v%d' % (sm, acc, acc + 1))
    xsum_g(k, sm, t1)
    k.I('v_mul_f32 v%d, 0x%x, v%d' % (mean, f32bits(1.0 / 80), sm))
    for q in range(10):
        k.I('v_pk_add_f32 v[%d:%d], v[%d:%d], v[%d:%d] op_sel_hi:[1,0] neg_lo:[0,1] neg_hi:[0,1]'
            % (X + 2 * q, X + 2 * q + 1, X + 2 * q, X + 2 * q + 1, mean, mean + 1))
    k.I('v_pk_mul_f32 v[%d:%d], v[%d:%d], v[%d:%d]' % (acc, acc + 1, X, X + 1, X, X + 1))
    for q in range(1, 10):
        k.I('v_pk_fma_f32 v[%d:%d], v[%d:%d], v[%d:%d], v[%d:%d]'
            % (acc, acc + 1, X + 2 * q, X + 2 * q + 1, X + 2 * q, X + 2 * q + 1, acc, acc + 1))
    k.I('v_add_f32 v%d, v%d, v%d' % (m2, acc, acc + 1))
    for q in range(10):
        k.I('v_cvt_pk_bf16_f32 v%d, v%d, v%d' % (B + q, X + 2 * q, X + 2 * q + 1))
    k.I('v_mov_b32 v%d, 0' % (B + 10))
    k.I('v_mov_b32 v%d, 0' % (B + 11))
    xsum_g(k, m2, t1)
    for mo in range(5):
        for t in range(3):
            c = '0' if t == 0 else 'v[%d:%d]' % (Dm + 4 * mo, Dm + 4 * mo + 3)
            k.I('v_mfma_f32_16x16x32_bf16 v[%d:%d], %s, v[%d:%d], %s'
                % (Dm + 4 * mo, Dm + 4 * mo + 3, G80(mo, t), B + 4 * t, B + 4 * t + 3, c))
    hi, lo = acc, acc + 1
    k.I('v_cvt_pk_bf16_f32 v%d, v%d, v%d' % (hi, sm, sm))
    k.I('v_and_b32 v%d, 0xffff0000, v%d' % (hi, hi))
    k.I('v_sub_f32 v%d, v%d, v%d' % (lo, sm, hi))
    k.I('v_cvt_pk_bf16_f32 v%d, v%d, v%d' % (hi, hi, lo))
    k.I('v_fmac_f32 v%d, v%d, v%d' % (m2, sm, mean))
    k.I('s_mov_b64 exec, 0xffff')
    k.I('buffer_store_dword v%d, v%d, %s, s%d offen' % (hi, vP, SRD_WS, d2_soff_sgpr))
    if statacc is None:
        k.I('buffer_atomic_add_f32 v%d, v%d, %s, s%d offen' % (sm, vST, SRD_WS, d2_soff_sgpr + 1))
        k.I('buffer_atomic_add_f32 v%d, v%d, %s, s%d offen offset:4' % (m2, vST, SRD_WS, d2_soff_sgpr + 1))
    k.I('s_mov_b64 exec, -1')
    if statacc is not None:
        k.I('v_add_f32 v%d, v%d, v%d' % (statacc, statacc, sm))
        k.I('v_add_f32 v%d, v%d, v%d' % (statacc + 1, statacc + 1, m2))
    for mo in range(5):
        for h in range(2):
            o = B + 2 * mo + h
            o = X + 2 * mo + h
            k.I('v_cvt_pk_bf16_f32 v%d, v%d, v%d' % (o, Dm + 4 * mo + 2 * h, Dm + 4 * mo + 2 * h + 1))
            k.I('s_add_u32 s%d, s%d, %d' % (sbase, d2_soff_sgpr, (8 * mo + h) * 65536))
            k.I('buffer_store_dword v%d, v%d, %s, s%d offen'
                % (o, vP0 if (mo == 0 and h == 0) else vP, SRD_WS, sbase))


def dma_table(k, tab_off, nchunks, lds_base, wave_s, vlane16, st, nw=4):
    k.I('s_lshl_b32 s%d, s%d, 10' % (st, wave_s))
    k.I('s_add_u32 m0, s%d, %d' % (st, lds_base))
    k.I('s_add_u32 s%d, s%d, %d' % (st, st, tab_off))
    for i in range((nchunks + nw - 1) // nw):
        if i:
            k.I('s_add_u32 m0, m0, %d' % (1024 * nw))
            k.I('s_add_u32 s%d, s%d, %d' % (st, st, 1024 * nw))
        k.I('buffer_load_dwordx4 v%d, %s, s%d offen lds' % (vlane16, SRD_TAB, st))


def stub_kernel(name, main, sreg, value, target):
    k = Kernel(name)
    k.I('s_mov_b32 s%d, %d' % (sreg, value))
    k.I('s_branch %s' % target)
    k.main = main
    return k


def lane_ids(k, vj, vg, vw_s):
    k.I('v_and_b32 v%d, 15, v0' % vj)
    k.I('v_bfe_u32 v%d, v0, 4, 2' % vg)
    k.I('v_lshrrev_b32 v1, 6, v0')
    k.I('v_readfirstlane_b32 s%d, v1' % vw_s)


def gen_wprep(k, base, nw=4):
    T1_, T2_ = int(os.environ.get('PT1', '2')), int(os.environ.get('PT2', '2'))
    N1, N2 = 240 // (nw * T1_), 240 // (nw * T2_)
    LG = {4: 2, 8: 3}[nw]
    k.I('s_cmp_ge_u32 s2, %d' % (base + N1 + N2))
    k.I('s_cbranch_scc1 L_prep_end')
    prologue(k, {SRD_OUT: (32, D * F * 2), 's[40:43]': (40, F * D * 2)})
    SRD_W1, SRD_W2 = SRD_OUT, 's[40:43]'
    lane_ids(k, 2, 3, 44)
    k.I('v_and_b32 v4, 63, v0')
    k.I('v_lshlrev_b32 v8, 4, v4')
    k.I('s_mov_b32 s46, 0x05040100')
    k.I('s_mov_b32 s47, 0x07060302')
    k.I('s_lshl_b32 s59, s44, 14')
    k.I('v_lshrrev_b32 v9, 1, v2')
    k.I('v_lshlrev_b32 v9, 10, v9')
    k.I('v_and_b32 v10, 1, v2')
    k.I('v_lshl_add_u32 v9, v10, 7, v9')
    k.I('v_lshl_add_u32 v9, v3, 8, v9')
    k.I('v_add_u32 v9, s59, v9')
    k.I('v_add_u32 v10, s59, v8')

    def transpose8(R, O):
        for c in range(8):
            for kk in range(4):
                k.I('v_perm_b32 v%d, v%d, v%d, %s' % (O + 4 * c + kk, R + 4 * (2 * kk + 1) + c // 2,
                                                      R + 4 * (2 * kk) + c // 2, 's47' if c % 2 else 's46'))

    def via_lds(O, i, T):
        for c in range(8):
            k.I('ds_write_b128 v9, v[%d:%d] offset:%d' % (O + 4 * c, O + 4 * c + 3, 8192 * i + 16 * c))
        for q in range(8):
            k.I('ds_read_b128 v[%d:%d], v10 offset:%d' % (T + 4 * q, T + 4 * q + 3, 8192 * i + 1024 * q))
    k.I('s_cmp_ge_u32 s2, %d' % (base + N1))
    k.I('s_cbranch_scc1 L_prep_w2')
    k.I('s_sub_u32 s45, s2, %d' % base)
    k.I('s_lshl_b32 s45, s45, %d' % LG)
    k.I('s_add_u32 s45, s45, s44')
    k.I('s_mul_i32 s45, s45, %d' % T1_)
    k.I('v_mul_u32_u24 v5, %d, v3' % (32 * 3072))
    k.I('v_lshl_add_u32 v5, v2, 4, v5')
    for i in range(T1_):
        R = 16 + 32 * i
        k.I('s_add_u32 s56, s45, %d' % i)
        k.I('s_mul_i32 s57, s56, 43691')
        k.I('s_lshr_b32 s%d, s57, 19' % (60 + 2 * i))
        k.I('s_mul_i32 s58, s%d, 12' % (60 + 2 * i))
        k.I('s_sub_u32 s%d, s56, s58' % (61 + 2 * i))
        for e in range(8):
            k.I('s_lshl_b32 s50, s%d, 1' % (60 + 2 * i))
            k.I('s_add_u32 s50, s50, %d' % (e // 4))
            k.I('s_mul_i32 s51, s50, 13')
            k.I('s_lshr_b32 s51, s51, 6')
            k.I('s_mul_i32 s52, s51, 5')
            k.I('s_sub_u32 s52, s50, s52')
            k.I('s_lshl_b32 s52, s52, 7')
            k.I('s_add_u32 s52, s52, s51')
            k.I('s_add_u32 s52, s52, %d' % (8 * (e % 4)))
            k.I('s_mul_i32 s52, s52, 3072')
            k.I('s_lshl_b32 s53, s%d, 8' % (61 + 2 * i))
            k.I('s_add_u32 s52, s52, s53')
            k.I('buffer_load_dwordx4 v[%d:%d], v5, %s, s52 offen' % (R + 4 * e, R + 4 * e + 3, SRD_W1))
    for i in range(T1_):
        R, O, T = 16 + 32 * i, 80 + 32 * i, 16 + 32 * i
        transpose8(R, O)
        via_lds(O, i, T)
        k.I('s_mul_i32 s50, s%d, %d' % (61 + 2 * i, 8 * 20480))
        k.I('s_lshl_b32 s51, s%d, 10' % (60 + 2 * i))
        k.I('s_add_u32 s50, s50, s51')
        for q in range(8):
            k.I('s_add_u32 s51, s50, %d' % (WS_W1F + q * 20480))
            k.I('buffer_store_dwordx4 v[%d:%d], v8, %s, s51 offen %s' % (T + 4 * q, T + 4 * q + 3, SRD_WS, WT))
    k.I('s_endpgm')
    k.label('L_prep_w2')
    k.I('s_sub_u32 s45, s2, %d' % (base + N1))
    k.I('s_lshl_b32 s45, s45, %d' % LG)
    k.I('s_add_u32 s45, s45, s44')
    k.I('s_mul_i32 s45, s45, %d' % T2_)
    k.I('v_mul_u32_u24 v5, 5120, v3')
    k.I('v_lshl_add_u32 v5, v2, 4, v5')
    for i in range(T2_):
        R = 16 + 32 * i
        k.I('s_add_u32 s56, s45, %d' % i)
        k.I('s_mul_i32 s57, s56, 52429')
        k.I('s_lshr_b32 s%d, s57, 18' % (60 + 2 * i))
        k.I('s_mul_i32 s58, s%d, 5' % (60 + 2 * i))
        k.I('s_sub_u32 s%d, s56, s58' % (61 + 2 * i))
        for e in range(8):
            k.I('s_lshl_b32 s50, s%d, 5' % (60 + 2 * i))
            k.I('s_add_u32 s50, s50, %d' % (16 * (e // 4) + e % 4))
            k.I('s_mul_i32 s50, s50, 1280')
            k.I('s_lshl_b32 s53, s%d, 8' % (61 + 2 * i))
            k.I('s_add_u32 s50, s50, s53')
            k.I('buffer_load_dwordx4 v[%d:%d], v5, %s, s50 offen' % (R + 4 * e, R + 4 * e + 3, SRD_W2))
    for i in range(T2_):
        R, O, T = 16 + 32 * i, 80 + 32 * i, 16 + 32 * i
        transpose8(R, O)
        via_lds(O, i, T)
        k.I('s_mul_i32 s50, s%d, 49152' % (61 + 2 * i))
        k.I('s_lshl_b32 s51, s%d, 10' % (60 + 2 * i))
        k.I('s_add_u32 s50, s50, s51')
        for c in range(8):
            k.I('s_add_u32 s52, s50, %d' % (WS_W2FA + c * 245760))
            k.I('buffer_store_dwordx4 v[%d:%d], v8, %s, s52 offen %s' % (O + 4 * c, O + 4 * c + 3, SRD_WS, WT))
        k.I('s_mul_i32 s50, s%d, %d' % (61 + 2 * i, 8 * 49152))
        k.I('s_add_u32 s50, s50, s51')
        for q in range(8):
            k.I('s_add_u32 s52, s50, %d' % (WS_W2FB + q * 49152))
            k.I('buffer_store_dwordx4 v[%d:%d], v8, %s, s52 offen %s' % (T + 4 * q, T + 4 * q + 3, SRD_WS, WT))
    k.label('L_prep_end')
    k.I('s_endpgm')
    return N1 + N2


def gen_k1():
    k = Kernel('k1_kernel')
    NX, NW = 128, 256
    k.I('s_cmp_ge_u32 s2, %d' % (NX + NW))
    k.I('s_cbranch_scc1 %s' % ('L_k1_touch' if TOUCH else ('L_k1_prep' if PREP_IN_K1 else 'L_k1_end')))
    k.stamp()
    prologue(k, {SRD_A: (0, S * D * 2), SRD_B: (8, S * 321 * 2), SRD_C: (16, S * 321 * 2)})
    lane_ids(k, 2, 3, 44)
    k.I('s_mov_b32 s46, 0x05040100')
    k.I('s_mov_b32 s47, 0x07060302')
    k.I('s_cmp_ge_u32 s2, %d' % NX)
    k.I('s_cbranch_scc1 L_k1_w')
    k.I('s_lshl_b32 s45, s2, 4')
    k.I('v_add_u32 v4, s45, v2')
    XL = 512 + 16 * 1024
    R = 16
    k.I('s_mul_i32 s48, s2, 20480')
    k.I('v_lshlrev_b32 v5, 4, v0')
    for i in range(5):
        k.I('s_add_u32 s49, s48, %d' % (4096 * i))
        k.I('buffer_load_dwordx4 v[%d:%d], v5, %s, s49 offen' % (40 + 4 * i, 43 + 4 * i, SRD_A))
    k.I('v_and_b32 v6, 63, v0')
    k.I('v_lshlrev_b32 v6, 4, v6')
    dma_table(k, table_off['G80F'], 15, 512, 44, 6, 50)
    k.I('s_mov_b32 s48, 52429')
    for i in range(5):
        k.I('v_add_u32 v7, %d, v0' % (256 * i))
        k.I('v_mul_lo_u32 v8, v7, s48')
        k.I('v_lshrrev_b32 v8, 22, v8')
        k.I('v_lshlrev_b32 v7, 4, v7')
        k.I('v_lshl_add_u32 v7, v8, 4, v7')
        k.I('ds_write_b128 v7, v[%d:%d] offset:%d' % (40 + 4 * i, 43 + 4 * i, XL))
    k.stamp()
    k.wait_vm0()
    k.barrier()
    k.stamp()
    k.I('v_mul_u32_u24 v5, 1296, v2')
    k.I('v_lshl_add_u32 v5, v3, 6, v5')
    k.I('s_lshl_b32 s49, s44, 2')
    k.I('v_add_u32 v5, s49, v5')
    for mt in range(5):
        for r in range(4):
            k.I('ds_read_b32 v%d, v5 offset:%d' % (R + 4 * mt + r, XL + 256 * mt + 16 * r))
    for q in range(15):
        k.I('ds_read_b128 a[%d:%d], v6 offset:%d' % (4 * q, 4 * q + 3, 512 + 1024 * q))
    k.I('v_lshlrev_b32 v7, 2, v4')
    k.I('v_lshl_add_u32 v7, v3, 17, v7')
    k.I('v_mov_b32 v8, v7')
    k.I('v_cmp_eq_u32 vcc, 0, v3')
    k.I('v_add_u32 v9, %d, v7' % (40 * 65536))
    k.I('v_cndmask_b32 v8, v7, v9, vcc')
    k.I('v_lshlrev_b32 v9, 3, v4')
    k.I('v_mov_b32 v12, 0')
    k.I('v_mov_b32 v13, 0')
    k.I('v_lshlrev_b32 v10, 6, v4')
    k.I('v_lshl_add_u32 v10, v3, 4, v10')
    X, T, PK = 40, 64, 104
    k.I('s_mul_i32 s54, s44, %d' % (5 * 131072))
    k.I('s_add_u32 s54, s54, %d' % WS_XP)
    for mt in range(5):
        pk = PK + 4 * mt
        k.I('v_perm_b32 v%d, v%d, v%d, s46' % (pk, R + 4 * mt + 1, R + 4 * mt))
        k.I('v_perm_b32 v%d, v%d, v%d, s46' % (pk + 1, R + 4 * mt + 3, R + 4 * mt + 2))
        k.I('v_perm_b32 v%d, v%d, v%d, s47' % (pk + 2, R + 4 * mt + 1, R + 4 * mt))
        k.I('v_perm_b32 v%d, v%d, v%d, s47' % (pk + 3, R + 4 * mt + 3, R + 4 * mt + 2))
        k.I('s_add_u32 s55, s54, %d' % (mt * 131072))
        k.I('buffer_store_dwordx4 v[%d:%d], v10, %s, s55 offen %s' % (pk, pk + 3, SRD_WS, WT))
    k.stamp()
    for e in range(2):
        k.I('s_lshl_b32 s51, s44, 1')
        k.I('s_add_u32 s51, s51, %d' % e)
        k.I('s_lshl_b32 s52, s51, 13')
        k.I('s_add_u32 s52, s52, %d' % WS_P)
        for q in range(20):
            if e == 0:
                k.I('v_lshlrev_b32 v%d, 16, v%d' % (X + q, R + q))
            else:
                k.I('v_and_b32 v%d, 0xffff0000, v%d' % (X + q, R + q))
        fwd_epilogue(k, X, T, lambda mo, t: 'a[%d:%d]' % (4 * (3 * mo + t), 4 * (3 * mo + t) + 3),
                     7, 8, 9, 55, 52, statacc=12)
    k.stamp()
    k.I('s_lshl_b32 s51, s44, 7')
    k.I('v_lshl_add_u32 v14, v2, 3, s51')
    k.I('s_mov_b64 exec, 0xffff')
    k.I('ds_write_b64 v14, v[12:13]')
    k.I('s_mov_b64 exec, -1')
    k.barrier()
    k.I('s_cmp_eq_u32 s44, 0')
    k.I('s_cbranch_scc0 L_k1_xdone')
    k.I('v_lshlrev_b32 v14, 3, v2')
    for w in range(4):
        k.I('ds_read_b64 v[%d:%d], v14 offset:%d' % (16 + 2 * w, 17 + 2 * w, 128 * w))
    k.I('v_pk_add_f32 v[16:17], v[16:17], v[18:19]')
    k.I('v_pk_add_f32 v[20:21], v[20:21], v[22:23]')
    k.I('v_pk_add_f32 v[16:17], v[16:17], v[20:21]')
    k.I('v_mov_b32 v18, 0')
    k.I('v_mov_b32 v19, 0')
    k.I('s_mov_b32 s51, %d' % WS_ST)
    k.I('s_mov_b32 s52, %d' % WS_STB)
    k.I('s_mov_b64 exec, 0xffff')
    k.I('buffer_store_dwordx2 v[16:17], v9, %s, s51 offen' % SRD_WS)
    k.I('buffer_store_dwordx2 v[18:19], v9, %s, s52 offen' % SRD_WS)
    k.I('s_mov_b64 exec, -1')
    k.label('L_k1_xdone')
    k.stamp()
    k.wait_vm0()
    k.stamp_flush(0, 44, SRD_WS)
    k.nstamp = 1
    k.I('s_endpgm')
    k.label('L_k1_w')
    k.I('s_sub_u32 s45, s2, %d' % NX)
    k.I('s_lshr_b32 s48, s45, 5')
    k.I('s_and_b32 s49, s45, 31')
    k.I('s_lshl_b32 s49, s49, 2')
    k.I('s_add_u32 s49, s49, s44')
    k.I('s_lshr_b32 s50, s49, 6')
    k.I('s_and_b32 s51, s49, 63')
    k.I('s_and_b32 s52, s51, 15')
    k.I('s_lshr_b32 s53, s51, 4')
    k.I('s_lshl_b32 s54, s50, 4')
    k.I('s_add_u32 s54, s54, s52')
    k.I('s_lshl_b32 s55, s53, 9')
    k.I('s_add_u32 s54, s54, s55')
    k.I('v_and_b32 v4, 63, v0')
    k.I('s_mul_i32 s55, s48, 80')
    k.I('v_add_u32 v5, s55, v4')
    k.I('v_sub_u32 v6, 640, v5')
    k.I('s_cmp_lt_u32 s48, 4')
    k.I('s_cselect_b32 s56, 0, -1')
    k.I('s_cselect_b32 s57, 0, 0x80000000')
    k.I('v_mov_b32 v7, s56')
    k.I('v_cmp_eq_u32 vcc, 0, v7')
    k.I('v_cndmask_b32 v5, v6, v5, vcc')
    k.I('v_lshlrev_b32 v5, 1, v5')
    RE, IM, RE2, IM2 = 16, 32, 48, 64
    for mt in range(4):
        for r in range(4):
            q = 4 * mt + r
            k.I('s_add_u32 s58, s54, %d' % (32 * (4 * r + mt)))
            k.I('s_sub_u32 s59, 0, s58')
            k.I('s_and_b32 s59, s59, 2047')
            k.I('s_cmp_lt_u32 s48, 4')
            k.I('s_cselect_b32 s60, s58, s59')
            k.I('s_mul_i32 s60, s60, 642')
            k.I('buffer_load_ushort v%d, v5, %s, s60 offen' % (RE + q, SRD_B))
            k.I('buffer_load_ushort v%d, v5, %s, s60 offen' % (IM + q, SRD_C))
    k.stamp()
    k.I('s_and_b32 s61, s48, 3')
    k.I('s_cmp_eq_u32 s61, 0')
    k.I('s_cbranch_scc0 L_k1_w_nosym')
    for mt in range(4):
        for r in range(4):
            q = 4 * mt + r
            k.I('s_add_u32 s58, s54, %d' % (32 * (4 * r + mt)))
            k.I('s_sub_u32 s59, 0, s58')
            k.I('s_and_b32 s59, s59, 2047')
            k.I('s_cmp_lt_u32 s48, 4')
            k.I('s_cselect_b32 s60, s59, s58')
            k.I('s_mul_i32 s60, s60, 642')
            k.I('buffer_load_ushort v%d, v5, %s, s60 offen' % (RE2 + q, SRD_B))
            k.I('buffer_load_ushort v%d, v5, %s, s60 offen' % (IM2 + q, SRD_C))
    k.wait_vm0()
    k.I('s_mov_b64 exec, 1')
    for q in range(16):
        k.I('v_lshlrev_b32 v8, 16, v%d' % (RE + q))
        k.I('v_lshlrev_b32 v9, 16, v%d' % (RE2 + q))
        k.I('v_add_f32 v8, v8, v9')
        k.I('v_mul_f32 v8, 0.5, v8')
        k.I('v_lshlrev_b32 v10, 16, v%d' % (IM + q))
        k.I('v_lshlrev_b32 v9, 16, v%d' % (IM2 + q))
        k.I('v_sub_f32 v10, v10, v9')
        k.I('v_mul_f32 v10, 0.5, v10')
        k.I('v_cvt_pk_bf16_f32 v8, v8, v10')
        k.I('v_and_b32 v%d, 0xffff, v8' % (RE + q))
        k.I('v_lshrrev_b32 v%d, 16, v8' % (IM + q))
    k.I('s_mov_b64 exec, -1')
    k.label('L_k1_w_nosym')
    k.wait_vm0()
    k.stamp()
    for q in range(16):
        k.I('v_lshl_or_b32 v%d, v%d, 16, v%d' % (RE + q, IM + q, RE + q))
        k.I('v_xor_b32 v%d, s57, v%d' % (RE + q, RE + q))
    k.I('v_lshlrev_b32 v6, 16, v4')
    k.I('s_lshl_b32 s58, s48, 13')
    k.I('s_lshl_b32 s59, s49, 6')
    k.I('s_add_u32 s58, s58, s59')
    k.I('s_add_u32 s58, s58, %d' % WS_WC)
    k.I('v_cmp_gt_u32 vcc, 41, v4')
    k.I('s_and_saveexec_b64 s[62:63], vcc')
    for mt in range(4):
        k.I('buffer_store_dwordx4 v[%d:%d], v6, %s, s58 offen offset:%d' % (RE + 4 * mt, RE + 4 * mt + 3, SRD_WS, 16 * mt))
    k.stamp()
    k.wait_vm0()
    k.stamp_flush(0, 44, SRD_WS)
    k.nstamp = 1
    k.I('s_endpgm')

    k.label('L_k1_end')
    k.I('s_endpgm')
    if TOUCH:
        k.label('L_k1_touch')
        k.vm, k.lg = [], []
        NT = 64
        k.I('s_cmp_ge_u32 s2, %d' % (NX + NW + NT))
        k.I('s_cbranch_scc1 L_k1_end')
        k.I('s_getpc_b64 s[6:7]')
        k.out.append('L_k1_pc:')
        k.raw('    s_sub_u32 s8, s6, L_k1_pc-k1_kernel')
        k.raw('    s_subb_u32 s9, s7, 0')
        k.I('s_and_b32 s9, s9, 0xffff')
        k.raw('    s_mov_b32 s10, L_text_end-k1_kernel')
        k.I('s_mov_b32 s11, 0x20000')
        k.I('s_getpc_b64 s[6:7]')
        k.raw('    s_add_u32 s6, s6, tab_base@rel32@lo+4')
        k.raw('    s_addc_u32 s7, s7, tab_base@rel32@hi+12')
        k.I('s_mov_b32 s12, s6')
        k.I('s_and_b32 s13, s7, 0xffff')
        k.I('s_mov_b32 s14, %d' % TAB_BYTES)
        k.I('s_mov_b32 s15, 0x20000')
        k.I('s_sub_u32 s16, s2, %d' % (NX + NW))
        k.I('s_lshl_b32 s16, s16, 12')
        k.I('v_lshlrev_b32 v1, 4, v0')
        k.I('buffer_load_dwordx4 v[4:7], v1, s[8:11], s16 offen')
        k.I('buffer_load_dwordx4 v[8:11], v1, s[12:15], s16 offen')
        if TOUCH >= 2:
            k.I('s_load_dwordx4 s[20:23], s[0:1], 32')
            k.wait_lgkm0()
            for n, b in enumerate((24, 28)):
                k.I('s_mov_b32 s%d, s%d' % (b, 20 + 2 * n))
                k.I('s_and_b32 s%d, s%d, 0xffff' % (b + 1, 21 + 2 * n))
                k.I('s_mov_b32 s%d, %d' % (b + 2, D * F * 2))
                k.I('s_mov_b32 s%d, 0x20000' % (b + 3))
            k.I('s_lshl_b32 s17, s16, 3')
            for i in range(8):
                k.I('s_add_u32 s18, s17, %d' % (4096 * i))
                k.I('buffer_load_dwordx4 v[%d:%d], v1, s[24:27], s18 offen' % (12 + 8 * i, 15 + 8 * i))
                k.I('buffer_load_dwordx4 v[%d:%d], v1, s[28:31], s18 offen' % (16 + 8 * i, 19 + 8 * i))
        k.wait_vm0()
        k.I('s_endpgm')
        return k, NX + NW + NT, 512 + 16 * 1024 + 16 * 1296
    if PREP_IN_K1:
        k.label('L_k1_prep')
        k.vm, k.lg = [], []
        n = gen_wprep(k, NX + NW)
        return k, NX + NW + n, 65536
    return k, (NX + NW), 512 + 16 * 1024 + 16 * 1296


HEADER = '''; Kernarg layout for this problem (72 bytes, ptrs only, base s[0:1]):
'''


def build(kernels, launches):
    out = [HEADER.rstrip('\n')]
    for name, grid, lds in launches:
        blk = 512 if name in ('c1_kernel', 'c2_kernel') and C8 else 256
        out.append('; @launch kernel=%s grid=(%d,1,1) block=(%d,1,1) lds=%d' % (name, grid, blk, lds))
    out.append('.amdgcn_target "amdgcn-amd-amdhsa--gfx950"')
    out.append('.text')
    for k in kernels:
        out.append('.globl %s' % k.name)
        out.append('.p2align 8')
        out.append('.type %s,@function' % k.name)
        out.append('%s:' % k.name)
        out += k.out
    out.append('L_text_end:')
    out.append('.section .rodata,"a"')
    for k in kernels:
        if getattr(k, 'main', None) is not None:
            k.maxv, k.maxa, k.maxs = k.main.maxv, k.main.maxa, k.main.maxs
        nv = k.maxv + 1
        acc_off = (nv + 3) // 4 * 4
        nfv = acc_off + (k.maxa + 1) if k.maxa >= 0 else nv
        out.append('.p2align 6')
        out.append('.amdhsa_kernel %s' % k.name)
        out.append('  .amdhsa_next_free_vgpr %d' % nfv)
        out.append('  .amdhsa_next_free_sgpr %d' % max(k.maxs + 1, 16))
        out.append('  .amdhsa_accum_offset %d' % acc_off)
        out.append('  .amdhsa_group_segment_fixed_size 0')
        out.append('  .amdhsa_kernarg_size 72')
        out.append('  .amdhsa_user_sgpr_count 2')
        out.append('  .amdhsa_user_sgpr_kernarg_segment_ptr 1')
        out.append('  .amdhsa_system_sgpr_workgroup_id_x 1')
        out.append('  .amdhsa_float_denorm_mode_32 3')
        out.append('  .amdhsa_float_denorm_mode_16_64 3')
        out.append('.end_amdhsa_kernel')
    out.append('.p2align 8')
    out.append('tab_base:')
    for n, w in tables.items():
        out += emit_table('tab_' + n, w)
    return '\n'.join(out) + '\n'


make_tables()
TAB_BYTES = layout_tables()

if __name__ == '__main__':
    if len(sys.argv) > 2 and sys.argv[2] in ('diag', 'real'):
        Kernel.DIAG = True
        Kernel.REAL = sys.argv[2] == 'real'
    ks, launches = [], []
    k, g, l = gen_k1()
    ks.append(k)
    launches.append((k.name, g, l))
    try:
        from gen2 import more_kernels
        more_kernels(ks, launches)
    except ImportError:
        pass
    path = sys.argv[1] if len(sys.argv) > 1 else 'interleave_layers__spectral_gfnet__dense_activation_silu__prompt.s'
    open(path, 'w').write(build(ks, launches))
    print('wrote', path)
```
